```python
import torch

def _softmax(x, axis=-1):
    return torch.softmax(x, dim=axis)
def _gelu(x):
    return torch.nn.functional.gelu(x, approximate="tanh")
def _silu(x):
    return torch.nn.functional.silu(x)
def _sigmoid(x):
    return torch.sigmoid(x)
def _layernorm(x, axis=-1, eps=1e-5):
    m = x.mean(dim=axis, keepdim=True)
    v = x.var(dim=axis, keepdim=True, unbiased=False)
    return (x - m) / torch.sqrt(v + eps)
def _scatter_add(tgt, idx, src, axis=0):
    return tgt.clone().index_add_(axis, idx, src)
def _segment_sum(src, seg, n):
    out = torch.zeros((n,) + src.shape[1:], dtype=src.dtype)
    return out.index_add_(0, seg, src)
def _pad(x, pw):
    flat = tuple(v for pair in reversed(pw) for v in pair)
    return torch.nn.functional.pad(x, flat)

kernel_name = 'interleave_layers__sliding_block_cached__swiglu_ffn__decode'

def setup_inputs():

    _w = (lambda a: (lambda t: t.to(torch.bfloat16) if t.is_floating_point() else t)(torch.as_tensor(a)))
    def _A_setup():
        B, Sq, D = 1, 1, 448
        Hq, Hkv, Sk, Dh = 16, 8, 65536, 256
        assert Hq % Hkv == 0, (Hq, Hkv)
        return {
            "x": _w((lambda *s: torch.randn(*s, dtype=torch.bfloat16) * 0.05)(B, Sq, D)),
            "k_cache": _w((lambda *s: torch.randn(*s, dtype=torch.bfloat16) * 1.6)(B, Hkv, Sk, Dh)),
            "v_cache": _w((lambda *s: torch.randn(*s, dtype=torch.bfloat16) * 1.6)(B, Hkv, Sk, Dh)),
            "wq": _w((lambda *s: torch.randn(*s, dtype=torch.bfloat16) * 1.6)(D, Hq * Dh) * (D ** -0.5)),
            "wo": _w((lambda *s: torch.randn(*s, dtype=torch.bfloat16) * 1.6)(Hq * Dh, D) * ((Hq * Dh) ** -0.5)),
        }
    _A_in = _A_setup()

    def _B_setup():
        B, S, D, F = 1, 1, 448, 1792
        return {
            "x": _w((lambda *s: torch.randn(*s, dtype=torch.bfloat16) * 0.05)(B, S, D)),
            "w_gate": _w((lambda *s: torch.randn(*s, dtype=torch.bfloat16) * 0.05)(D, F)),
            "w_up": _w((lambda *s: torch.randn(*s, dtype=torch.bfloat16) * 0.05)(D, F)),
            "w_down": _w((lambda *s: torch.randn(*s, dtype=torch.bfloat16) * 0.05)(F, D)),
        }
    _B_in = _B_setup()

    return {
        "A_x": _A_in["x"],
        "A_k_cache": _A_in["k_cache"],
        "A_v_cache": _A_in["v_cache"],
        "A_wq": _A_in["wq"],
        "A_wo": _A_in["wo"],
        "B_x": _B_in["x"],
        "B_w_gate": _B_in["w_gate"],
        "B_w_up": _B_in["w_up"],
        "B_w_down": _B_in["w_down"],
    }

def reference(A_x, A_k_cache, A_v_cache, A_wq, A_wo, B_x, B_w_gate, B_w_up, B_w_down):
    def _A_ref(x, k_cache, v_cache, wq, wo):
        B, Sq, D = x.shape
        Hq, Dh = 16, 256
        Hkv, Sk = k_cache.shape[1], k_cache.shape[2]
        W = min(4096, max(256, Sk // 4))
        rep = Hq // Hkv
        q = (lambda x, *d: x.permute(*d))((x @ wq).reshape(B, Sq, Hq, Dh), 0, 2, 1, 3)
        k = (lambda x, n, axis: torch.repeat_interleave(x, n, dim=axis))(k_cache[:, :, Sk - W:, :], rep, axis=1)
        v = (lambda x, n, axis: torch.repeat_interleave(x, n, dim=axis))(v_cache[:, :, Sk - W:, :], rep, axis=1)
        scores = torch.einsum("bhqd,bhkd->bhqk", q, k) * (Dh ** -0.5)
        p = _softmax(scores, axis=-1)
        o = torch.einsum("bhqk,bhkd->bhqd", p, v)
        return (lambda x, *d: x.permute(*d))(o, 0, 2, 1, 3).reshape(B, Sq, Hq * Dh) @ wo

    def _B_ref(x, w_gate, w_up, w_down):
        g = _silu(x @ w_gate)
        u = x @ w_up
        return (g * u) @ w_down

    x = A_x
    x = x + _A_ref(_layernorm(x, axis=-1), A_k_cache, A_v_cache, A_wq, A_wo)
    x = x + _B_ref(_layernorm(x, axis=-1), B_w_gate, B_w_up, B_w_down)
    x = x + _A_ref(_layernorm(x, axis=-1), A_k_cache, A_v_cache, A_wq, A_wo)
    x = x + _B_ref(_layernorm(x, axis=-1), B_w_gate, B_w_up, B_w_down)
    return x
```

```python
import sys, math

NAME = "interleave_layers__sliding_block_cached__swiglu_ffn__decode"
KNAME = NAME + "_kernel"

WS_EPOCH = 0
WS_HB = 0x1000
WS_QB = 0x2000
WS_MLB = 0xA000
WS_ZB = 0x10000
WS_OB = 0x100000
WS_YB = 0x200000
WS_TS = 0x400000
WS_SIZE = 0x800000

L_XS = 0x0000
L_TL = 0x1000
L_OS = 0x1040
L_QS = 0x1400
L_OP = 0x2400
L_MLP = 0x4400
L_WQ = 0x4800
L_GU = 0x8000
LDS_BYTES = 0xB800

POLL_LIMIT = 20000
LOG2E = 1.4426950408889634


def f32hex(x):
    import struct
    return "0x%08x" % struct.unpack("<I", struct.pack("<f", x))[0]


class Gen:
    def __init__(self, ts=False, mimic=True):
        self.L = []
        self.ts = ts
        self.mimic = mimic
        self.uid = 0
        self.nts = 0

    def __call__(self, s):
        for line in s.strip("\n").split("\n"):
            self.L.append("    " + line.strip() if line.strip() and not line.strip().endswith(":") else line.strip())

    def label(self, base):
        self.uid += 1
        return f"L_{base}_{self.uid}"

    def nop(self, n):
        while n > 0:
            k = min(n, 16)
            self(f"s_nop {k-1}")
            n -= k

    def stamp(self, idx, vts):
        if not self.ts:
            return
        self(f"""
        s_memrealtime s[96:97]
        s_waitcnt lgkmcnt(0)
        v_writelane_b32 v{vts}, s96, {idx}
        """)

    def pub(self, store_txt):
        a = self.label("slow"); b = self.label("pubd")
        self(f"""
        s_cmp_eq_u32 s7, 0
        s_cbranch_scc1 {a}
        {store_txt}
        s_branch {b}
        {a}:
        {store_txt} sc1
        {b}:
        """)

    def poll(self, loads, check):
        a = self.label("poll"); b = self.label("polld")
        self("s_mov_b32 s34, 0")
        self(f"{a}:")
        loads()
        self("s_waitcnt vmcnt(0)")
        check()
        self(f"""
        s_cmp_eq_u64 vcc, 0
        s_cbranch_scc1 {b}
        s_add_u32 s34, s34, 1
        s_cmp_lt_u32 s34, {POLL_LIMIT}
        s_cbranch_scc1 {a}
        {b}:
        """)

    def sentinel_check(self, regs, tmp):
        regs = list(regs)
        first = True
        while len(regs) > 0:
            if first:
                if len(regs) >= 3:
                    self(f"v_max3_u32 v{tmp}, v{regs[0]}, v{regs[1]}, v{regs[2]}"); regs = regs[3:]
                elif len(regs) == 2:
                    self(f"v_max_u32 v{tmp}, v{regs[0]}, v{regs[1]}"); regs = []
                else:
                    self(f"v_mov_b32 v{tmp}, v{regs[0]}"); regs = []
                first = False
            elif len(regs) >= 2:
                self(f"v_max3_u32 v{tmp}, v{tmp}, v{regs[0]}, v{regs[1]}"); regs = regs[2:]
            else:
                self(f"v_max_u32 v{tmp}, v{tmp}, v{regs[0]}"); regs = []
        self(f"v_cmp_eq_u32 vcc, -1, v{tmp}")


def srd(g, d, lo, hi, nbytes):
    g(f"""
    s_mov_b32 s{d}, s{lo}
    s_mov_b32 s{d+1}, s{hi}
    s_mov_b32 s{d+2}, {nbytes}
    s_mov_b32 s{d+3}, 0x00020000
    """)


def srd_off(g, d, lo, hi, soff, nbytes):
    g(f"""
    s_add_u32 s{d}, s{lo}, s{soff}
    s_addc_u32 s{d+1}, s{hi}, 0
    s_mov_b32 s{d+2}, {nbytes}
    s_mov_b32 s{d+3}, 0x00020000
    """)


def mfma(d, a, b, c):
    cs = "0" if c is None else f"v[{c}:{c+3}]"
    return f"v_mfma_f32_16x16x32_bf16 v[{d}:{d+3}], v[{a}:{a+3}], v[{b}:{b+3}], {cs}"


def a_wave(g):
    KA = 16; VB = 80; VL = 144
    QBR = 144; QG = 176; S0 = 184; S1 = 188; P = 192; PM = (196, 200); D0 = 204; D1 = 208; DL = 212; ONES = 216
    T0, T1, T2, T3 = 220, 221, 222, 223
    M2 = 224; E = 226
    CO = 234
    CM = 242
    VTS = 255
    vK, vV, vQG, vQSW, vQSR, vOPW, vMLW, vOPR, vPUB, vMLR = 3, 4, 5, 6, 7, 8, 9, 10, 11, 12
    g("; ---------------- A wave ----------------")
    if g.ts:
        g(f"v_mov_b32 v{VTS}, 0")
    g.stamp(0, VTS)
    g(f"""
    s_lshl_b32 s28, s4, 25
    s_lshl_b32 s29, s5, 16
    s_add_u32 s28, s28, s29
    s_lshl_b32 s29, s3, 14
    s_add_u32 s28, s28, s29
    s_add_u32 s28, s28, {61440*512}
    """)
    srd_off(g, 12, 66, 67, 28, 16384)
    srd_off(g, 16, 68, 69, 28, 16384)
    g(f"""
    v_lshlrev_b32 v{vK}, 9, v1
    v_lshl_add_u32 v{vK}, v2, 4, v{vK}
    v_lshlrev_b32 v{vV}, 11, v2
    v_lshl_add_u32 v{vV}, v1, 4, v{vV}
    s_movk_i32 s30, 0x2000
    """)
    for t in range(2):
        for j in range(8):
            r = KA + t*32 + j*4
            g(f"buffer_load_dwordx4 v[{r}:{r+3}], v{vK}, s[12:15], {'s30' if t else '0'} offen offset:{j*64} nt")
    for t in range(2):
        for rr in range(4):
            for hf in range(2):
                r = VL + (t*8 + rr*2 + hf)*4
                g(f"buffer_load_dwordx4 v[{r}:{r+3}], v{vV}, s[16:19], {'s30' if t else '0'} offen offset:{rr*512+hf*256} nt")
    g(f"""
    v_lshlrev_b32 v{vQG}, 4, v0
    s_lshl_b32 s28, s3, 10
    s_add_u32 s28, s28, {L_QS}
    v_lshlrev_b32 v{vQSW}, 3, v0
    v_add_u32 v{vQSW}, s28, v{vQSW}
    v_lshrrev_b32 v{T0}, 3, v1
    v_lshlrev_b32 v{vQSR}, 9, v{T0}
    v_lshl_add_u32 v{vQSR}, v2, 4, v{vQSR}
    v_add_u32 v{vQSR}, s28, v{vQSR}
    s_lshl_b32 s28, s3, 11
    s_add_u32 s28, s28, {L_OP}
    v_lshlrev_b32 v{vOPW}, 5, v0
    v_add_u32 v{vOPW}, s28, v{vOPW}
    s_lshl_b32 s28, s3, 4
    s_add_u32 s28, s28, {L_MLP}
    v_lshrrev_b32 v{T1}, 5, v0
    v_lshlrev_b32 v{vMLW}, 3, v{T1}
    v_add_u32 v{vMLW}, s28, v{vMLW}
    s_lshl_b32 s28, s3, 9
    v_lshlrev_b32 v{vPUB}, 3, v0
    v_add_u32 v{vPUB}, s28, v{vPUB}
    v_add_u32 v{vOPR}, {L_OP}, v{vPUB}
    s_lshr_b32 s28, s3, 1
    s_lshl_b32 s28, s28, 3
    s_add_u32 s28, s28, {L_MLP}
    v_mov_b32 v{vMLR}, s28
    v_cmp_eq_u32 s[36:37], v{T0}, v{T1}
    v_mov_b32 v{ONES}, 0x3f803f80
    v_mov_b32 v{ONES+1}, 0x3f803f80
    v_mov_b32 v{ONES+2}, 0x3f803f80
    v_mov_b32 v{ONES+3}, 0x3f803f80
    s_mov_b32 s38, {f32hex(LOG2E/16.0)}
    s_mov_b32 s39, 0x05040100
    s_mov_b32 s44, 0x07060302
    s_mov_b32 s40, 0x01010101
    s_mov_b32 s41, 0x01010101
    s_barrier
    v_mov_b32 v{T0}, {L_TL}
    ds_read_b32 v{T1}, v{T0}
    s_waitcnt lgkmcnt(0)
    v_readfirstlane_b32 s6, v{T1}
    """)
    g.stamp(1, VTS)
    g("s_waitcnt vmcnt(0)")
    g.stamp(2, VTS)
    for hf in range(2):
        for t in range(2):
            for q in range(2):
                x = VL + (t*8 + (2*q)*2 + hf)*4
                y = VL + (t*8 + (2*q+1)*2 + hf)*4
                for d in range(4):
                    p = 2*t + q
                    g(f"v_perm_b32 v{VB + (hf*8 + 2*d)*4 + p}, v{y+d}, v{x+d}, s39")
                    g(f"v_perm_b32 v{VB + (hf*8 + 2*d + 1)*4 + p}, v{y+d}, v{x+d}, s44")
    for layer in range(2):
        sb = 3 + layer*8
        g(f"""
        s_lshl_b32 s28, s4, 11
        s_add_u32 s28, s28, {WS_QB + layer*8*2048}
        """)
        def loads():
            g(f"buffer_load_dwordx4 v[{QG}:{QG+3}], v{vQG}, s[8:11], s28 offen sc1")
            g(f"buffer_load_dwordx4 v[{QG+4}:{QG+7}], v{vQG}, s[8:11], s28 offen offset:1024 sc1")
        def check():
            g(f"""
            v_xor_b32 v{T0}, s6, v{QG+1}
            v_xor_b32 v{T1}, s6, v{QG+3}
            v_xor_b32 v{T2}, s6, v{QG+5}
            v_xor_b32 v{T3}, s6, v{QG+7}
            v_or3_b32 v{T0}, v{T0}, v{T1}, v{T2}
            v_or_b32 v{T0}, v{T0}, v{T3}
            v_cmp_ne_u32 vcc, 0, v{T0}
            """)
        g.poll(loads, check)
        g.stamp(sb, VTS)
        g(f"""
        ds_write2_b32 v{vQSW}, v{QG}, v{QG+2} offset0:0 offset1:1
        ds_write2_b32 v{vQSW}, v{QG+4}, v{QG+6} offset0:128 offset1:129
        s_waitcnt lgkmcnt(0)
        """)
        for j in range(8):
            g(f"ds_read_b128 v[{QBR+4*j}:{QBR+4*j+3}], v{vQSR} offset:{j*64}")
        for j in range(8):
            g(f"s_waitcnt lgkmcnt({7-j})")
            g(mfma(S0, KA + j*4, QBR + 4*j, None if j == 0 else S0))
            g(mfma(S1, KA + 32 + j*4, QBR + 4*j, None if j == 0 else S1))
        g.nop(8)
        g(f"""
        v_max3_f32 v{M2}, v{S0}, v{S0+1}, v{S0+2}
        v_max3_f32 v{M2}, v{M2}, v{S0+3}, v{S1}
        v_max3_f32 v{M2}, v{M2}, v{S1+1}, v{S1+2}
        v_max_f32 v{M2}, v{M2}, v{S1+3}
        v_mov_b32 v{T0}, v{M2}
        s_nop 1
        v_permlane16_swap_b32 v{M2}, v{T0}
        s_nop 1
        v_max_f32 v{M2}, v{M2}, v{T0}
        v_mov_b32 v{T0}, v{M2}
        s_nop 1
        v_permlane32_swap_b32 v{M2}, v{T0}
        s_nop 1
        v_max_f32 v{M2}, v{M2}, v{T0}
        v_mul_f32 v{M2}, s38, v{M2}
        """)
        for k in range(8):
            g(f"v_fma_f32 v{E+k}, v{S0+k}, s38, -v{M2}")
        for k in range(8):
            g(f"v_exp_f32 v{E+k}, v{E+k}")
        g(f"""
        v_mov_b32_dpp v{T0}, v{M2} row_ror:8 row_mask:0xf bank_mask:0xf
        v_cvt_pk_bf16_f32 v{P}, v{E}, v{E+1}
        v_cvt_pk_bf16_f32 v{P+1}, v{E+2}, v{E+3}
        v_cvt_pk_bf16_f32 v{P+2}, v{E+4}, v{E+5}
        v_cvt_pk_bf16_f32 v{P+3}, v{E+6}, v{E+7}
        v_cndmask_b32 v{M2}, v{T0}, v{M2}, s[36:37]
        s_mov_b64 s[42:43], s[40:41]
        """)
        def pm(v):
            b = PM[v & 1]
            for k in range(4):
                g(f"v_cndmask_b32 v{b+k}, 0, v{P+k}, s[42:43]")
            g("s_lshl_b64 s[42:43], s[42:43], 1")
        pm(0)
        g(mfma(DL, P, ONES, None))
        g("s_nop 0")
        for v in range(8):
            b = PM[v & 1]
            hf = v >> 2; tt = v & 3
            g(mfma(D0, b, VB + (hf*8 + tt)*4, None if v == 0 else D0))
            g(mfma(D1, b, VB + (hf*8 + tt + 4)*4, None if v == 0 else D1))
            if v < 7:
                pm(v + 1)
                g("s_nop 0")
        g(f"v_mov_b32 v{M2+1}, v{DL}")
        g.nop(8)
        g(f"""
        ds_write_b128 v{vOPW}, v[{D0}:{D0+3}]
        ds_write_b128 v{vOPW}, v[{D1}:{D1+3}] offset:16
        s_mov_b64 s[32:33], exec
        s_mov_b32 exec_lo, 1
        s_mov_b32 exec_hi, 1
        ds_write_b64 v{vMLW}, v[{M2}:{M2+1}]
        s_mov_b64 exec, s[32:33]
        s_waitcnt lgkmcnt(0)
        """)
        g.stamp(sb+1, VTS)
        g("s_barrier")
        for a in range(4):
            g(f"ds_read_b64 v[{CM+2*a}:{CM+2*a+1}], v{vMLR} offset:{a*16}")
        for a in range(4):
            g(f"ds_read_b64 v[{CO+2*a}:{CO+2*a+1}], v{vOPR} offset:{a*2048}")
        if layer == 0:
            g(f"""
            v_mov_b32 v{T0}, {L_TL}
            ds_read_b32 v{T1}, v{T0} offset:4
            """)
            g("s_waitcnt lgkmcnt(0)")
            g(f"v_readfirstlane_b32 s7, v{T1}")
        else:
            g("s_waitcnt lgkmcnt(4)")
        g(f"""
        v_max3_f32 v{M2}, v{CM}, v{CM+2}, v{CM+4}
        v_max_f32 v{M2}, v{M2}, v{CM+6}
        v_sub_f32 v{E}, v{CM}, v{M2}
        v_sub_f32 v{E+1}, v{CM+2}, v{M2}
        v_sub_f32 v{E+2}, v{CM+4}, v{M2}
        v_sub_f32 v{E+3}, v{CM+6}, v{M2}
        v_exp_f32 v{E}, v{E}
        v_exp_f32 v{E+1}, v{E+1}
        v_exp_f32 v{E+2}, v{E+2}
        v_exp_f32 v{E+3}, v{E+3}
        s_waitcnt lgkmcnt(0)
        v_mul_f32 v{T0}, v{E}, v{CO}
        v_mul_f32 v{T1}, v{E}, v{CO+1}
        v_mul_f32 v{M2+1}, v{E}, v{CM+1}
        """)
        for a in range(1, 4):
            g(f"""
            v_fmac_f32 v{T0}, v{E+a}, v{CO+2*a}
            v_fmac_f32 v{T1}, v{E+a}, v{CO+2*a+1}
            v_fmac_f32 v{M2+1}, v{E+a}, v{CM+2*a+1}
            """)
        g(f"""
        s_lshl_b32 s28, s4, 16
        s_lshl_b32 s29, s5, 11
        s_add_u32 s28, s28, s29
        s_add_u32 s28, s28, {WS_OB + layer*8*65536}
        """)
        g.pub(f"buffer_store_dwordx2 v[{T0}:{T1}], v{vPUB}, s[8:11], s28 offen")
        lab = g.label("noml")
        g(f"""
        s_bitcmp1_b32 s3, 0
        s_cbranch_scc1 {lab}
        s_lshl_b32 s28, s4, 9
        s_lshl_b32 s29, s5, 4
        s_add_u32 s28, s28, s29
        s_lshl_b32 s29, s3, 2
        s_add_u32 s28, s28, s29
        s_add_u32 s28, s28, {WS_MLB + layer*8*512}
        v_mov_b32 v{T2}, 0
        s_mov_b64 s[32:33], exec
        s_mov_b64 exec, 1
        """)
        g.pub(f"buffer_store_dwordx2 v[{M2}:{M2+1}], v{T2}, s[8:11], s28 offen")
        g(f"""
        s_mov_b64 exec, s[32:33]
        {lab}:
        """)
        g.stamp(sb+2, VTS)
        if layer == 0:
            g("s_barrier\ns_barrier\ns_barrier")
    dump_ts(g, VTS)
    g("s_endpgm")


def dump_ts(g, vts):
    if not g.ts:
        return
    g(f"""
    s_mov_b64 exec, -1
    s_lshl_b32 s28, s2, 11
    s_lshl_b32 s29, s3, 8
    s_add_u32 s28, s28, s29
    s_add_u32 s28, s28, {WS_TS}
    v_lshlrev_b32 v1, 2, v0
    buffer_store_dword v{vts}, v1, s[8:11], s28 offen
    """)


X0 = 10
WBQ = 16; WBG = 72; WO = 128; WD = 160; XA = 176
ACC = 232; CSQ = 236; CSG = 237; W_ONES = 240; XST = 244; SS1 = 248; SS2 = 249
U0, U1, U2, U3, U4 = 250, 251, 252, 253, 254
W_VTS = 255
vCOL, vXSW, vXA_, vXSt, vTR, vHA, vHM, vRB, vZW = 3, 4, 5, 6, 7, 8, 9, 12, 13
YP = 14


def gemv16(g, xs_off, WB, CS, out):
    g(f"""
    v_mov_b32 v{XST}, 0
    v_mov_b32 v{XST+1}, 0
    v_mov_b32 v{XST+2}, 0
    v_mov_b32 v{XST+3}, 0
    s_mov_b64 exec, s[36:37]
    ds_read_b128 v[{XST}:{XST+3}], v{vXSt} offset:{xs_off}
    s_mov_b64 exec, -1
    """)
    for j in range(14):
        g(f"ds_read_b128 v[{XA+4*j}:{XA+4*j+3}], v{vXA_} offset:{xs_off + j*64}")
    dpp = "row_mask:0xf bank_mask:0xf bound_ctrl:0"
    side = []
    side.append([f"v_dot2_f32_bf16 v{SS1}, v{XST}, v{W_ONES}, 0",
                 f"v_dot2_f32_bf16 v{SS2}, v{XST}, v{XST}, 0",
                 f"v_dot2_f32_bf16 v{SS1}, v{XST+1}, v{W_ONES}, v{SS1}"])
    side.append([f"v_dot2_f32_bf16 v{SS2}, v{XST+1}, v{XST+1}, v{SS2}",
                 f"v_dot2_f32_bf16 v{SS1}, v{XST+2}, v{W_ONES}, v{SS1}",
                 f"v_dot2_f32_bf16 v{SS2}, v{XST+2}, v{XST+2}, v{SS2}"])
    side.append([f"v_dot2_f32_bf16 v{SS1}, v{XST+3}, v{W_ONES}, v{SS1}",
                 f"v_dot2_f32_bf16 v{SS2}, v{XST+3}, v{XST+3}, v{SS2}",
                 "s_nop 2"])
    for sh in (1, 2, 4, 8):
        side.append([f"v_add_f32_dpp v{SS1}, v{SS1}, v{SS1} row_shr:{sh} {dpp}",
                     f"v_add_f32_dpp v{SS2}, v{SS2}, v{SS2} row_shr:{sh} {dpp}",
                     "s_nop 0"])
    side.append([f"v_add_f32_dpp v{SS1}, v{SS1}, v{SS1} row_bcast:15 row_mask:0xa bank_mask:0xf",
                 f"v_add_f32_dpp v{SS2}, v{SS2}, v{SS2} row_bcast:15 row_mask:0xa bank_mask:0xf",
                 "s_nop 0"])
    side.append([f"v_add_f32_dpp v{SS1}, v{SS1}, v{SS1} row_bcast:31 row_mask:0xc bank_mask:0xf",
                 f"v_add_f32_dpp v{SS2}, v{SS2}, v{SS2} row_bcast:31 row_mask:0xc bank_mask:0xf",
                 "s_nop 0"])
    side.append([f"v_readlane_b32 s46, v{SS1}, 63",
                 f"v_readlane_b32 s47, v{SS2}, 63",
                 f"v_mov_b32 v{U0}, s45",
                 "s_nop 0"])
    side.append([f"v_mul_f32 v{U1}, s46, v{U0}",
                 f"v_mul_f32 v{U2}, s47, v{U0}",
                 f"v_fma_f32 v{U2}, -v{U1}, v{U1}, v{U2}",
                 f"v_max_f32 v{U2}, 0, v{U2}"])
    if g.mimic:
        side.append([f"v_cvt_pk_bf16_f32 v{U3}, v{U1}, v{U2}",
                     f"v_lshlrev_b32 v{U1}, 16, v{U3}",
                     f"v_and_b32 v{U2}, 0xffff0000, v{U3}",
                     f"v_add_f32 v{U2}, s48, v{U2}"])
        side.append([f"v_cvt_pk_bf16_f32 v{U3}, v{U2}, v{U2}",
                     f"v_lshlrev_b32 v{U2}, 16, v{U3}",
                     f"v_sqrt_f32 v{U2}, v{U2}",
                     "s_nop 0"])
        side.append([f"v_cvt_pk_bf16_f32 v{U3}, v{U2}, v{U2}",
                     f"v_lshlrev_b32 v{U2}, 16, v{U3}",
                     f"v_rcp_f32 v{U2}, v{U2}"])
    else:
        side.append([f"v_add_f32 v{U2}, s48, v{U2}",
                     f"v_rsq_f32 v{U2}, v{U2}"])
    assert len(side) <= 14
    g("s_waitcnt lgkmcnt(14)")
    for j in range(14):
        g(f"s_waitcnt lgkmcnt({13-j})")
        g(mfma(ACC, XA + 4*j, WB + 4*j, None if j == 0 else ACC))
        if j < len(side):
            for s in side[j]:
                g(s)
    g.nop(8)
    g(f"""
    v_fma_f32 v{out}, -v{U1}, v{CS}, v{ACC}
    v_mul_f32 v{out}, v{out}, v{U2}
    """)


def load_WB(g, img, WB, CS):
    for j in range(14):
        g(f"ds_read_b64_tr_b16 v[{WB+4*j}:{WB+4*j+1}], v{vTR} offset:{img + j*1024}")
        g(f"ds_read_b64_tr_b16 v[{WB+4*j+2}:{WB+4*j+3}], v{vTR} offset:{img + j*1024 + 128}")
        if j % 4 == 3:
            g("s_waitcnt lgkmcnt(0)")
    g("s_waitcnt lgkmcnt(0)")
    for j in range(14):
        g(mfma(ACC, W_ONES, WB + 4*j, None if j == 0 else ACC))
    g.nop(8)
    g(f"v_mov_b32 v{CS}, v{ACC}")


def q_stage(g, layer, xs_idx):
    gemv16(g, L_XS + xs_idx*1024, WBQ, CSQ, U4)
    g(f"""
    s_nop 1
    v_mov_b32_dpp v{U3}, v{U4} quad_perm:[1,0,3,2] row_mask:0xf bank_mask:0xf
    v_mov_b32 v{YP+1}, s6
    v_cvt_pk_bf16_f32 v{YP}, v{U4}, v{U3}
    v_lshlrev_b32 v{U0}, 2, v0
    s_lshl_b32 s28, s4, 11
    s_lshl_b32 s29, s5, 6
    s_add_u32 s28, s28, s29
    s_add_u32 s28, s28, {WS_QB + layer*8*2048}
    s_mov_b64 exec, 0x5555
    """)
    st = f"buffer_store_dwordx2 v[{YP}:{YP+1}], v{U0}, s[8:11], s28 offen"
    if layer == 0:
        g(st + " sc1")
    else:
        g.pub(st)
    g("s_mov_b64 exec, -1")


def reducer(g, stage, nprod):
    lab = g.label("nored")
    g(f"""
    s_cmp_lg_u32 s3, 5
    s_cbranch_scc1 {lab}
    s_cmp_ge_u32 s5, 14
    s_cbranch_scc1 {lab}
    s_lshl_b32 s28, s4, 16
    s_lshl_b32 s29, s5, 7
    s_add_u32 s28, s28, s29
    s_add_u32 s28, s28, {WS_YB + stage*8*65536}
    s_add_u32 s29, s28, 16384
    s_add_u32 s30, s28, 32768
    s_add_u32 s31, s28, 49152
    """)
    R = XA
    if nprod == 28:
        for k in range(4):
            g(f"v_mov_b32 v{R+12+k}, 0")
    def loads():
        for u in range(3):
            g(f"buffer_load_dwordx4 v[{R+4*u}:{R+4*u+3}], v{vRB}, s[8:11], s{28+u} offen sc1")
        if nprod == 28:
            g("s_mov_b32 exec_lo, 0x00ff00ff\ns_mov_b32 exec_hi, 0x00ff00ff")
        g(f"buffer_load_dwordx4 v[{R+12}:{R+15}], v{vRB}, s[8:11], s31 offen sc1")
        if nprod == 28:
            g("s_mov_b64 exec, -1")
    def check():
        g.sentinel_check(range(R, R+16), U0)
    g.poll(loads, check)
    for k in range(4):
        g(f"v_add_f32 v{R+k}, v{R+k}, v{R+4+k}")
        g(f"v_add_f32 v{R+8+k}, v{R+8+k}, v{R+12+k}")
    for k in range(4):
        g(f"v_add_f32 v{R+k}, v{R+k}, v{R+8+k}")
    g("s_nop 0")
    for sh in (2, 4, 8):
        for k in range(4):
            g(f"v_add_f32_dpp v{R+k}, v{R+k}, v{R+k} row_ror:{sh} row_mask:0xf bank_mask:0xf")
    g(f"""
    s_lshl_b32 s28, s4, 11
    s_lshl_b32 s29, s5, 7
    s_add_u32 s28, s28, s29
    s_add_u32 s28, s28, {WS_ZB + stage*8*2048}
    s_mov_b32 exec_lo, 0x00030003
    s_mov_b32 exec_hi, 0x00030003
    buffer_store_dwordx4 v[{R}:{R+3}], v{vZW}, s[8:11], s28 offen sc1
    s_mov_b64 exec, -1
    {lab}:
    """)


def x_gather(g, stage, xs_idx):
    R = XA
    g("s_mov_b64 exec, s[36:37]")
    def loads():
        for hh in range(8):
            g(f"s_mov_b32 s28, {WS_ZB + (stage*8 + hh)*2048}")
            g(f"buffer_load_dwordx2 v[{R+2*hh}:{R+2*hh+1}], v{vCOL}, s[8:11], s28 offen sc1")
    def check():
        g.sentinel_check(range(R, R+16), U0)
    g.poll(loads, check)
    g(f"""
    v_pk_add_f32 v[{R}:{R+1}], v[{R}:{R+1}], v[{R+2}:{R+3}]
    v_pk_add_f32 v[{R+4}:{R+5}], v[{R+4}:{R+5}], v[{R+6}:{R+7}]
    v_pk_add_f32 v[{R+8}:{R+9}], v[{R+8}:{R+9}], v[{R+10}:{R+11}]
    v_pk_add_f32 v[{R+12}:{R+13}], v[{R+12}:{R+13}], v[{R+14}:{R+15}]
    v_pk_add_f32 v[{R}:{R+1}], v[{R}:{R+1}], v[{R+4}:{R+5}]
    v_pk_add_f32 v[{R+8}:{R+9}], v[{R+8}:{R+9}], v[{R+12}:{R+13}]
    v_pk_add_f32 v[{R}:{R+1}], v[{R}:{R+1}], v[{R+8}:{R+9}]
    """)
    if g.mimic:
        g(f"""
        v_cvt_pk_bf16_f32 v{U4}, v{R}, v{R+1}
        v_lshlrev_b32 v{R}, 16, v{U4}
        v_and_b32 v{R+1}, 0xffff0000, v{U4}
        """)
    g(f"""
    v_pk_add_f32 v[{X0}:{X0+1}], v[{X0}:{X0+1}], v[{R}:{R+1}]
    v_cvt_pk_bf16_f32 v{U4}, v{X0}, v{X0+1}
    """)
    if xs_idx is not None:
        g(f"ds_write_b32 v{vXSW}, v{U4} offset:{L_XS + xs_idx*1024}")
    g(f"""
    v_lshlrev_b32 v{X0}, 16, v{U4}
    v_and_b32 v{X0+1}, 0xffff0000, v{U4}
    s_mov_b64 exec, -1
    """)


def pub_y(g, stage):
    g(f"""
    s_lshl_b32 s28, s4, 16
    s_lshl_b32 s29, s5, 11
    s_add_u32 s28, s28, s29
    s_add_u32 s28, s28, {WS_YB + stage*8*65536}
    s_mov_b64 exec, s[36:37]
    """)
    g.pub(f"buffer_store_dwordx2 v[{YP}:{YP+1}], v{vCOL}, s[8:11], s28 offen")
    g("s_mov_b64 exec, -1")


def hop_a(g, layer):
    R = XA
    g(f"""
    s_lshl_b32 s28, s4, 16
    s_lshl_b32 s29, s5, 6
    s_add_u32 s28, s28, s29
    s_add_u32 s28, s28, {WS_OB + layer*8*65536}
    s_add_u32 s29, s28, 32768
    s_lshl_b32 s30, s4, 9
    s_lshr_b32 s31, s5, 4
    s_lshl_b32 s31, s31, 3
    s_add_u32 s30, s30, s31
    s_add_u32 s30, s30, {WS_MLB + layer*8*512}
    """)
    def loads():
        g(f"buffer_load_dwordx2 v[{R+8}:{R+9}], v{vHM}, s[8:11], s30 offen sc1")
        g(f"buffer_load_dwordx2 v[{R+10}:{R+11}], v{vHM}, s[8:11], s30 offen offset:256 sc1")
        g(f"buffer_load_dwordx4 v[{R}:{R+3}], v{vHA}, s[8:11], s28 offen sc1")
        g(f"buffer_load_dwordx4 v[{R+4}:{R+7}], v{vHA}, s[8:11], s29 offen sc1")
    def check():
        g.sentinel_check(range(R, R+12), U0)
    g.poll(loads, check)
    g(f"v_max_f32 v{U0}, v{R+8}, v{R+10}")
    for sh in (1, 2, 4, 8):
        g("s_nop 1")
        g(f"v_max_f32_dpp v{U0}, v{U0}, v{U0} row_ror:{sh} row_mask:0xf bank_mask:0xf")
    g(f"""
    v_sub_f32 v{U1}, v{R+8}, v{U0}
    v_sub_f32 v{U2}, v{R+10}, v{U0}
    v_exp_f32 v{U1}, v{U1}
    v_exp_f32 v{U2}, v{U2}
    s_nop 0
    v_mul_f32 v{U3}, v{U1}, v{R+9}
    v_mul_f32 v{R}, v{U1}, v{R}
    v_mul_f32 v{R+1}, v{U1}, v{R+1}
    v_mul_f32 v{R+2}, v{U1}, v{R+2}
    v_mul_f32 v{R+3}, v{U1}, v{R+3}
    v_fmac_f32 v{U3}, v{U2}, v{R+11}
    v_fmac_f32 v{R}, v{U2}, v{R+4}
    v_fmac_f32 v{R+1}, v{U2}, v{R+5}
    v_fmac_f32 v{R+2}, v{U2}, v{R+6}
    v_fmac_f32 v{R+3}, v{U2}, v{R+7}
    """)
    for sh in (1, 2, 4, 8):
        for r in (U3, R, R+1, R+2, R+3):
            g(f"v_add_f32_dpp v{r}, v{r}, v{r} row_ror:{sh} row_mask:0xf bank_mask:0xf")
    g(f"""
    v_rcp_f32 v{U3}, v{U3}
    v_lshlrev_b32 v{U0}, 4, v2
    v_mul_f32 v{R}, v{U3}, v{R}
    v_mul_f32 v{R+1}, v{U3}, v{R+1}
    v_mul_f32 v{R+2}, v{U3}, v{R+2}
    v_mul_f32 v{R+3}, v{U3}, v{R+3}
    """)
    if g.mimic:
        g(f"""
        v_cvt_pk_bf16_f32 v{U1}, v{R}, v{R+1}
        v_cvt_pk_bf16_f32 v{U2}, v{R+2}, v{R+3}
        v_lshlrev_b32 v{R}, 16, v{U1}
        v_and_b32 v{R+1}, 0xffff0000, v{U1}
        v_lshlrev_b32 v{R+2}, 16, v{U2}
        v_and_b32 v{R+3}, 0xffff0000, v{U2}
        """)
    g(f"""
    s_mov_b32 exec_lo, 0x00010001
    s_mov_b32 exec_hi, 0x00010001
    ds_write_b128 v{U0}, v[{R}:{R+3}] offset:{L_OS}
    s_mov_b64 exec, -1
    s_waitcnt lgkmcnt(0)
    """)


def w_wave(g):
    g("; ---------------- W wave ----------------")
    if g.ts:
        g(f"v_mov_b32 v{W_VTS}, 0")
    g.stamp(0, W_VTS)
    g(f"""
    s_sub_u32 s35, s3, 4
    v_cmp_gt_u32 s[36:37], 56, v0
    s_mul_i32 s28, s35, 448
    v_lshlrev_b32 v{vCOL}, 3, v0
    v_add_u32 v{vCOL}, s28, v{vCOL}
    v_lshrrev_b32 v{vXSW}, 1, v{vCOL}
    v_lshlrev_b32 v{vXA_}, 4, v2
    v_lshlrev_b32 v{vXSt}, 4, v0
    v_lshrrev_b32 v{U0}, 2, v1
    v_lshl_add_u32 v{U0}, v2, 3, v{U0}
    v_lshlrev_b32 v{vTR}, 5, v{U0}
    v_and_b32 v{U0}, 3, v1
    v_lshl_add_u32 v{vTR}, v{U0}, 3, v{vTR}
    v_lshlrev_b32 v{vHA}, 11, v1
    v_lshl_add_u32 v{vHA}, v2, 4, v{vHA}
    v_lshlrev_b32 v{vHM}, 4, v1
    v_and_b32 v{U0}, 1, v1
    v_lshl_add_u32 v{U0}, v2, 1, v{U0}
    v_lshlrev_b32 v{vZW}, 4, v{U0}
    v_lshrrev_b32 v{U1}, 1, v1
    v_lshl_add_u32 v{vRB}, v{U1}, 11, v{vZW}
    v_mov_b32 v{W_ONES}, 0x3f803f80
    v_mov_b32 v{W_ONES+1}, 0x3f803f80
    v_mov_b32 v{W_ONES+2}, 0x3f803f80
    v_mov_b32 v{W_ONES+3}, 0x3f803f80
    s_mov_b32 s45, {f32hex(1.0/448.0)}
    s_mov_b32 s48, {f32hex(1e-5)}
    s_mov_b32 s49, {f32hex(-LOG2E)}
    """)
    srd(g, 12, 64, 65, 896)
    g(f"""
    s_mov_b64 exec, s[36:37]
    buffer_load_dword v{U4}, v{vXSW}, s[12:15], 0 offen
    s_mov_b64 exec, -1
    """)
    l1 = g.label("w1"); l2 = g.label("w2"); l3 = g.label("w3"); lj = g.label("wj")

    def wo_down_loads():
        g(f"""
        s_lshl_b32 s28, s4, 9
        s_lshl_b32 s29, s5, 4
        s_add_u32 s28, s28, s29
        s_mul_i32 s28, s28, 896
        """)
        srd_off(g, 24, 72, 73, 28, 16*896)
        g("s_mov_b64 exec, s[36:37]")
        for r in range(16):
            g(f"s_movk_i32 s28, {r*896}")
            g(f"buffer_load_dword v{WO+2*r+1}, v{vXSW}, s[24:27], s28 offen nt")
        g(f"""
        s_mul_i32 s28, s4, 224
        s_lshl_b32 s29, s5, 3
        s_add_u32 s28, s28, s29
        s_mul_i32 s28, s28, 896
        s_cmp_lt_u32 s5, 28
        s_cselect_b32 s28, s28, 0
        s_cselect_b32 s29, {8*896}, 0
        """)
        srd_off(g, 56, 80, 81, 28, "s29")
        for f in range(8):
            g(f"s_movk_i32 s28, {f*896}")
            g(f"buffer_load_dword v{WD+2*f+1}, v{vXSW}, s[56:59], s28 offen nt")
        g("s_mov_b64 exec, -1")

    def xs0(n):
        g(f"""
        s_waitcnt vmcnt({n})
        s_mov_b64 exec, s[36:37]
        ds_write_b32 v{vXSW}, v{U4} offset:{L_XS}
        v_lshlrev_b32 v{X0}, 16, v{U4}
        v_and_b32 v{X0+1}, 0xffff0000, v{U4}
        s_mov_b64 exec, -1
        """)

    g(f"""
    s_cmp_eq_u32 s35, 1
    s_cbranch_scc1 {l1}
    s_cmp_eq_u32 s35, 3
    s_cbranch_scc1 {l3}
    s_cmp_eq_u32 s35, 2
    s_cbranch_scc1 {l2}
    """)
    g(f"""
    s_lshl_b32 s28, s4, 10
    s_lshl_b32 s29, s5, 5
    s_add_u32 s28, s28, s29
    s_sub_u32 s29, {448*8192}, s28
    """)
    srd_off(g, 16, 70, 71, 28, "s29")
    g(f"""
    v_lshrrev_b32 v{U0}, 1, v0
    v_lshlrev_b32 v{U0}, 13, v{U0}
    v_and_b32 v{U1}, 1, v0
    v_lshl_add_u32 v{U0}, v{U1}, 4, v{U0}
    """)
    for jj in range(14):
        g(f"s_mov_b32 s28, {jj*32*8192}")
        g(f"buffer_load_dwordx4 v[{XA+4*jj}:{XA+4*jj+3}], v{U0}, s[16:19], s28 offen nt")
    wo_down_loads()
    xs0(38)
    g(f"s_branch {lj}")
    g(f"{l1}:")
    g(f"""
    s_mul_i32 s28, s4, 448
    s_lshl_b32 s29, s5, 4
    s_add_u32 s28, s28, s29
    s_sub_u32 s29, {448*3584}, s28
    s_cmp_lt_u32 s5, 28
    s_cselect_b32 s28, s28, 0
    s_cselect_b32 s29, s29, 0
    """)
    srd_off(g, 16, 76, 77, 28, "s29")
    srd_off(g, 20, 78, 79, 28, "s29")
    g(f"""
    s_movk_i32 s28, 3584
    v_mul_lo_u32 v{U0}, v0, s28
    """)
    for m in range(2):
        for jj in range(7):
            r = XA + (m*7 + jj)*4
            g(f"s_mov_b32 s28, {jj*64*3584}")
            g(f"buffer_load_dwordx4 v[{r}:{r+3}], v{U0}, s[{16+4*m}:{19+4*m}], s28 offen nt")
    wo_down_loads()
    xs0(38)
    g(f"s_branch {lj}")
    g(f"{l2}:")
    wo_down_loads()
    xs0(24)
    g(f"s_branch {lj}")
    g(f"{l3}:")
    g(f"""
    s_load_dword s50, s[86:87], {WS_EPOCH}
    v_mov_b32 v{XA}, -1
    v_mov_b32 v{XA+1}, -1
    v_mov_b32 v{XA+2}, -1
    v_mov_b32 v{XA+3}, -1
    s_lshl_b32 s28, s4, 16
    s_lshl_b32 s29, s5, 11
    s_add_u32 s28, s28, s29
    """)
    for base in [WS_OB + l*8*65536 for l in range(2)] + [WS_YB + s*8*65536 for s in range(4)]:
        g(f"s_add_u32 s29, s28, {base}")
        g(f"buffer_store_dwordx4 v[{XA}:{XA+3}], v{vXSt}, s[8:11], s29 offen sc1")
        g(f"buffer_store_dwordx4 v[{XA}:{XA+3}], v{vXSt}, s[8:11], s29 offen offset:1024 sc1")
    xs0(12)
    g(f"""
    s_lshl_b32 s28, s4, 9
    s_lshl_b32 s29, s5, 4
    s_add_u32 s28, s28, s29
    s_mov_b64 exec, 1
    """)
    for l in range(2):
        g(f"s_add_u32 s29, s28, {WS_MLB + l*8*512}")
        g(f"buffer_store_dwordx4 v[{XA}:{XA+3}], v{vXSt}, s[8:11], s29 offen sc1")
    lz = g.label("noz")
    g(f"""
    s_cmp_ge_u32 s5, 14
    s_cbranch_scc1 {lz}
    s_mov_b64 exec, 0xff
    s_lshl_b32 s28, s4, 11
    s_lshl_b32 s29, s5, 7
    s_add_u32 s28, s28, s29
    """)
    for s in range(4):
        g(f"s_add_u32 s29, s28, {WS_ZB + s*8*2048}")
        g(f"buffer_store_dwordx4 v[{XA}:{XA+3}], v{vXSt}, s[8:11], s29 offen sc1")
    g(f"""
    {lz}:
    s_mov_b64 exec, -1
    """)
    wo_down_loads()
    g(f"""
    s_waitcnt lgkmcnt(0)
    s_mul_i32 s6, s50, 0x9E3779B1
    s_add_u32 s6, s6, 0x7F4A7C15
    v_mov_b32 v{U0}, {L_TL}
    v_mov_b32 v{U1}, s6
    ds_write_b32 v{U0}, v{U1}
    {lj}:
    s_waitcnt lgkmcnt(0)
    s_barrier
    v_mov_b32 v{U0}, {L_TL}
    ds_read_b32 v{U1}, v{U0}
    s_waitcnt lgkmcnt(0)
    v_readfirstlane_b32 s6, v{U1}
    """)
    g.stamp(1, W_VTS)
    l1 = g.label("p1"); l3 = g.label("p3"); lj = g.label("pj")
    g(f"""
    s_cmp_eq_u32 s35, 1
    s_cbranch_scc1 {l1}
    s_cmp_eq_u32 s35, 3
    s_cbranch_scc1 {l3}
    s_cmp_eq_u32 s35, 2
    s_cbranch_scc1 {lj}
    """)
    g("s_waitcnt vmcnt(24)")
    for jj in range(14):
        g(f"ds_write_b128 v{vXSt}, v[{XA+4*jj}:{XA+4*jj+3}] offset:{L_WQ + jj*1024}")
    g("s_waitcnt lgkmcnt(0)")
    load_WB(g, L_WQ, WBQ, CSQ)
    g.stamp(2, W_VTS)
    q_stage(g, 0, 0)
    g.stamp(3, W_VTS)
    g(f"s_branch {lj}")
    g(f"{l1}:")
    g(f"""
    s_waitcnt vmcnt(24)
    v_lshlrev_b32 v{U0}, 5, v0
    """)
    for m in range(2):
        for jj in range(7):
            r = XA + (m*7 + jj)*4
            g(f"ds_write_b128 v{U0}, v[{r}:{r+3}] offset:{L_GU + jj*2048 + m*16}")
    g(f"s_branch {lj}")
    g(f"{l3}:")
    HR = XA
    g(f"""
    s_waitcnt vmcnt(0)
    s_getreg_b32 s51, hwreg(HW_REG_XCC_ID)
    s_and_b32 s51, s51, 15
    s_or_b32 s51, s51, 0x100
    v_mov_b32 v{YP}, s51
    v_mov_b32 v{YP+1}, s6
    v_mov_b32 v{U0}, 0
    s_lshl_b32 s28, s2, 3
    s_add_u32 s28, s28, {WS_HB}
    s_mov_b64 exec, 1
    buffer_store_dwordx2 v[{YP}:{YP+1}], v{U0}, s[8:11], s28 offen sc1
    s_mov_b64 exec, -1
    s_movk_i32 s28, {WS_HB}
    """)
    def loads():
        g(f"buffer_load_dwordx4 v[{HR}:{HR+3}], v{vXSt}, s[8:11], s28 offen sc1")
        g(f"buffer_load_dwordx4 v[{HR+4}:{HR+7}], v{vXSt}, s[8:11], s28 offen offset:1024 sc1")
    def check():
        g(f"""
        v_xor_b32 v{U0}, s6, v{HR+1}
        v_xor_b32 v{U1}, s6, v{HR+3}
        v_xor_b32 v{U2}, s6, v{HR+5}
        v_xor_b32 v{U3}, s6, v{HR+7}
        v_or3_b32 v{U0}, v{U0}, v{U1}, v{U2}
        v_or_b32 v{U0}, v{U0}, v{U3}
        v_cmp_ne_u32 vcc, 0, v{U0}
        """)
    g.poll(loads, check)
    lne = g.label("noep")
    g(f"""
    v_lshlrev_b32 v{U0}, 1, v0
    v_and_b32 v{U0}, 7, v{U0}
    v_or_b32 v{U1}, 1, v{U0}
    v_cmp_eq_u32 s[52:53], s4, v{U0}
    v_cmp_eq_u32 s[54:55], s4, v{U1}
    v_cmp_ne_u32 s[56:57], s51, v{HR}
    v_cmp_ne_u32 s[58:59], s51, v{HR+4}
    v_cmp_ne_u32 s[60:61], s51, v{HR+2}
    v_cmp_ne_u32 s[62:63], s51, v{HR+6}
    s_or_b64 s[56:57], s[56:57], s[58:59]
    s_or_b64 s[60:61], s[60:61], s[62:63]
    s_and_b64 s[56:57], s[56:57], s[52:53]
    s_and_b64 s[60:61], s[60:61], s[54:55]
    s_or_b64 s[56:57], s[56:57], s[60:61]
    s_cmp_eq_u64 s[56:57], 0
    s_cselect_b32 s7, 1, 0
    v_mov_b32 v{U0}, {L_TL}
    v_mov_b32 v{U1}, s7
    ds_write_b32 v{U0}, v{U1} offset:4
    s_cmp_lg_u32 s2, 0
    s_cbranch_scc1 {lne}
    s_add_u32 s50, s50, 1
    v_mov_b32 v{U1}, s50
    v_mov_b32 v{U0}, 0
    s_mov_b64 exec, 1
    buffer_store_dword v{U1}, v{U0}, s[8:11], 0 offen sc1
    s_mov_b64 exec, -1
    {lne}:
    """)
    g.stamp(2, W_VTS)
    g(f"{lj}:")
    g("s_waitcnt vmcnt(0)")
    for r in range(16):
        g(f"v_lshlrev_b32 v{WO+2*r}, 16, v{WO+2*r+1}")
        g(f"v_and_b32 v{WO+2*r+1}, 0xffff0000, v{WO+2*r+1}")
    for f in range(8):
        g(f"v_lshlrev_b32 v{WD+2*f}, 16, v{WD+2*f+1}")
        g(f"v_and_b32 v{WD+2*f+1}, 0xffff0000, v{WD+2*f+1}")
    g("s_waitcnt lgkmcnt(0)")
    lend = g.label("wend")
    for layer in range(2):
        sb = 4 + layer*12
        g.stamp(sb, W_VTS)
        g("s_barrier")
        if layer == 0:
            g(f"""
            v_mov_b32 v{U0}, {L_TL}
            ds_read_b32 v{U1}, v{U0} offset:4
            s_waitcnt lgkmcnt(0)
            v_readfirstlane_b32 s7, v{U1}
            """)
        la = g.label("noa")
        g(f"""
        s_cmp_lg_u32 s35, 0
        s_cbranch_scc1 {la}
        """)
        hop_a(g, layer)
        g(f"{la}:")
        g.stamp(sb+1, W_VTS)
        g("s_barrier")
        g(f"v_mov_b32 v{U0}, {L_OS}")
        for k in range(4):
            g(f"ds_read_b128 v[{XA+4*k}:{XA+4*k+3}], v{U0} offset:{k*16}")
        for k in range(4):
            g(f"s_waitcnt lgkmcnt({3-k})")
            for r in range(4*k, 4*k+4):
                src = XA + (r & ~1)
                sel = "op_sel:[1,0,0] op_sel_hi:[1,1,1]" if r & 1 else "op_sel_hi:[0,1,1]"
                if r == 0:
                    g(f"v_pk_mul_f32 v[{YP}:{YP+1}], v[{src}:{src+1}], v[{WO}:{WO+1}] op_sel_hi:[0,1]")
                else:
                    g(f"v_pk_fma_f32 v[{YP}:{YP+1}], v[{src}:{src+1}], v[{WO+2*r}:{WO+2*r+1}], v[{YP}:{YP+1}] {sel}")
        pub_y(g, 2*layer)
        g.stamp(sb+2, W_VTS)
        if layer == 1:
            g(f"""
            s_cmp_ge_u32 s5, 28
            s_cbranch_scc1 {lend}
            """)
        reducer(g, 2*layer, 32)
        g.stamp(sb+3, W_VTS)
        if layer == 0:
            lg = g.label("nogu")
            g(f"""
            s_cmp_ge_u32 s5, 28
            s_cbranch_scc1 {lg}
            """)
            load_WB(g, L_GU, WBG, CSG)
            g(f"{lg}:")
        x_gather(g, 2*layer, 2*layer + 1)
        g("s_waitcnt lgkmcnt(0)")
        g.stamp(sb+4, W_VTS)
        g("s_barrier")
        lf = g.label("noffn")
        g(f"""
        s_cmp_ge_u32 s5, 28
        s_cbranch_scc1 {lf}
        """)
        gemv16(g, L_XS + (2*layer+1)*1024, WBG, CSG, U4)
        if g.mimic:
            g(f"""
            v_cvt_pk_bf16_f32 v{U3}, v{U4}, v{U4}
            v_lshlrev_b32 v{U4}, 16, v{U3}
            """)
        g(f"""
        v_mul_f32 v{U0}, s49, v{U4}
        v_exp_f32 v{U0}, v{U0}
        v_mov_b32_dpp v{U3}, v{U4} row_ror:8 row_mask:0xf bank_mask:0xf
        v_add_f32 v{U0}, 1.0, v{U0}
        v_rcp_f32 v{U0}, v{U0}
        s_nop 0
        v_mul_f32 v{U0}, v{U0}, v{U4}
        """)
        if g.mimic:
            g(f"""
            v_cvt_pk_bf16_f32 v{U1}, v{U0}, v{U0}
            v_lshlrev_b32 v{U0}, 16, v{U1}
            """)
        g(f"v_mul_f32 v{U0}, v{U0}, v{U3}")
        if g.mimic:
            g(f"""
            v_cvt_pk_bf16_f32 v{U1}, v{U0}, v{U0}
            v_lshlrev_b32 v{U0}, 16, v{U1}
            """)
        g(f"""
        v_mov_b32 v{YP}, 0
        v_mov_b32 v{YP+1}, 0
        s_nop 0
        """)
        for f in range(8):
            g(f"v_fmac_f32_dpp v{YP}, v{U0}, v{WD+2*f} row_newbcast:{f} row_mask:0xf bank_mask:0xf")
            g(f"v_fmac_f32_dpp v{YP+1}, v{U0}, v{WD+2*f+1} row_newbcast:{f} row_mask:0xf bank_mask:0xf")
        pub_y(g, 2*layer + 1)
        g(f"{lf}:")
        g.stamp(sb+5, W_VTS)
        reducer(g, 2*layer + 1, 28)
        g.stamp(sb+6, W_VTS)
        if layer == 0:
            x_gather(g, 1, 2)
            g("s_waitcnt lgkmcnt(0)")
            g.stamp(sb+7, W_VTS)
            g("s_barrier")
            lq = g.label("noq")
            g(f"""
            s_cmp_lg_u32 s35, 0
            s_cbranch_scc1 {lq}
            """)
            q_stage(g, 1, 2)
            g(f"{lq}:")
            g.stamp(sb+8, W_VTS)
        else:
            g(f"""
            s_cmp_lg_u32 s2, 0
            s_cbranch_scc1 {lend}
            """)
            x_gather(g, 3, None)
            srd(g, 12, 82, 83, 896)
            g(f"""
            s_mov_b64 exec, s[36:37]
            buffer_store_dword v{U4}, v{vXSW}, s[12:15], 0 offen
            s_mov_b64 exec, -1
            """)
            g.stamp(sb+7, W_VTS)
    g(f"{lend}:")
    dump_ts(g, W_VTS)
    g("s_endpgm")


HEADER = open("cdna_kernels/" + NAME + ".s.ref").read().split("; Override launch")[0]


def build(ts=False, mimic=True):
    g = Gen(ts, mimic)
    g.L.append(HEADER.rstrip("\n"))
    g.L.append(f"; @launch grid=(256,1,1) block=(512,1,1) lds={LDS_BYTES}")
    g.L.append('.amdgcn_target "amdgcn-amd-amdhsa--gfx950"')
    g.L.append(".text")
    g.L.append(f".globl {KNAME}")
    g.L.append(".p2align 8")
    g.L.append(f".type {KNAME},@function")
    g.L.append(f"{KNAME}:")
    g(f"""
    s_cmp_ge_u32 s2, 256
    s_cbranch_scc1 L_exit
    s_load_dwordx16 s[64:79], s[0:1], 0
    s_load_dwordx8 s[80:87], s[0:1], 64
    v_lshrrev_b32 v1, 6, v0
    v_and_b32 v0, 63, v0
    v_readfirstlane_b32 s3, v1
    v_and_b32 v1, 15, v0
    v_lshrrev_b32 v2, 4, v0
    s_and_b32 s4, s2, 7
    s_lshr_b32 s5, s2, 3
    s_mov_b32 s7, 0
    s_waitcnt lgkmcnt(0)
    """)
    srd(g, 8, 86, 87, WS_SIZE)
    g("""
    s_cmp_ge_u32 s3, 4
    s_cbranch_scc1 L_wwave
    """)
    a_wave(g)
    g("L_wwave:")
    w_wave(g)
    g("L_exit:")
    g("s_endpgm")
    g.L.append('.section .rodata,"a"')
    g.L.append(".p2align 6")
    g.L.append(f".amdhsa_kernel {KNAME}")
    for d in ["next_free_vgpr 256", "next_free_sgpr 102", "accum_offset 256", "group_segment_fixed_size 0",
              "kernarg_size 96", "user_sgpr_count 2", "user_sgpr_kernarg_segment_ptr 1",
              "system_sgpr_workgroup_id_x 1", "float_denorm_mode_32 3"]:
        g.L.append("  .amdhsa_" + d)
    g.L.append(".end_amdhsa_kernel")
    return "\n".join(g.L) + "\n"


if __name__ == "__main__":
    out = sys.argv[1] if len(sys.argv) > 1 else "cdna_kernels/" + NAME + ".s"
    ts = "--ts" in sys.argv
    mimic = "--nomimic" not in sys.argv
    open(out, "w").write(build(ts, mimic))
    print("wrote", out)
```

```python
import sys, math

NAME = "interleave_layers__sliding_block_cached__swiglu_ffn__decode"
KNAME = NAME + "_kernel"

WS_EPOCH = 0
WS_HB = 0x1000
WS_QB = 0x2000
WS_MLB = 0xA000
WS_ZB = 0x10000
WS_XB = 0x20000
WS_OB = 0x100000
WS_YB = 0x200000
WS_TS = 0x400000
WS_SIZE = 0x800000

L_XS = 0x0000
L_TL = 0x1000
L_OS = 0x1040
L_QS = 0x1400
L_OP = 0x2400
L_MLP = 0x4400
L_IMG = 0x4800
L_WO = 0xB800
LDS_BYTES = 0xB800 + 32*896

POLL_LIMIT = 20000
A_TS = list(range(52, 64, 2)) + list(range(88, 102, 2)) + list(range(64, 88, 2))
W_TS = list(range(88, 102, 2)) + list(range(64, 88, 2))
LOG2E = 1.4426950408889634


def f32hex(x):
    import struct
    return "0x%08x" % struct.unpack("<I", struct.pack("<f", x))[0]


class Gen:
    def __init__(self, ts=False, mimic=True, sleep=0, thr=(5, 2, 6)):
        self.sleep = sleep
        self.thr = thr
        self.L = []
        self.ts = ts
        self.mimic = mimic
        self.uid = 0
        self.nts = 0

    def __call__(self, s):
        for line in s.strip("\n").split("\n"):
            self.L.append("    " + line.strip() if line.strip() and not line.strip().endswith(":") else line.strip())

    def label(self, base):
        self.uid += 1
        return f"L_{base}_{self.uid}"

    def nop(self, n):
        while n > 0:
            k = min(n, 16)
            self(f"s_nop {k-1}")
            n -= k

    def stamp(self, idx, vts, lvl=2):
        if not self.ts or lvl > self.ts:
            return
        if idx not in self.tsmap:
            self.tsmap[idx] = self.tsfree.pop(0)
        r = self.tsmap[idx]
        self(f"s_memrealtime s[{r}:{r+1}]")

    def ts_begin(self, regs):
        self.tsmap = {}
        self.tsfree = list(regs)
        if self.ts:
            for r in regs:
                if r >= 88:
                    self(f"s_mov_b32 s{r}, 0")

    def ts_zero_late(self):
        if self.ts:
            for r in range(64, 88, 2):
                self(f"s_mov_b32 s{r}, 0")

    def pub(self, store_txt):
        a = self.label("slow"); b = self.label("pubd")
        self(f"""
        s_cmp_eq_u32 s7, 0
        s_cbranch_scc1 {a}
        {store_txt}
        s_branch {b}
        {a}:
        {store_txt} sc1
        {b}:
        """)

    def poll(self, loads, check):
        a = self.label("poll"); b = self.label("polld")
        self("s_mov_b32 s34, 0")
        self(f"{a}:")
        loads()
        self("s_waitcnt vmcnt(0)")
        check()
        self(f"""
        s_cmp_eq_u64 vcc, 0
        s_cbranch_scc1 {b}
        {("s_sleep %d" % self.sleep) if self.sleep else ""}
        s_add_u32 s34, s34, 1
        s_cmp_lt_u32 s34, {POLL_LIMIT}
        s_cbranch_scc1 {a}
        {b}:
        """)

    def sentinel_check(self, regs, tmp):
        regs = list(regs)
        first = True
        while len(regs) > 0:
            if first:
                if len(regs) >= 3:
                    self(f"v_max3_u32 v{tmp}, v{regs[0]}, v{regs[1]}, v{regs[2]}"); regs = regs[3:]
                elif len(regs) == 2:
                    self(f"v_max_u32 v{tmp}, v{regs[0]}, v{regs[1]}"); regs = []
                else:
                    self(f"v_mov_b32 v{tmp}, v{regs[0]}"); regs = []
                first = False
            elif len(regs) >= 2:
                self(f"v_max3_u32 v{tmp}, v{tmp}, v{regs[0]}, v{regs[1]}"); regs = regs[2:]
            else:
                self(f"v_max_u32 v{tmp}, v{tmp}, v{regs[0]}"); regs = []
        self(f"v_cmp_eq_u32 vcc, -1, v{tmp}")


def srd(g, d, lo, hi, nbytes):
    g(f"""
    s_mov_b32 s{d}, s{lo}
    s_mov_b32 s{d+1}, s{hi}
    s_mov_b32 s{d+2}, {nbytes}
    s_mov_b32 s{d+3}, 0x00020000
    """)


def srd_off(g, d, lo, hi, soff, nbytes):
    g(f"""
    s_add_u32 s{d}, s{lo}, s{soff}
    s_addc_u32 s{d+1}, s{hi}, 0
    s_mov_b32 s{d+2}, {nbytes}
    s_mov_b32 s{d+3}, 0x00020000
    """)


def mfma(d, a, b, c):
    cs = "0" if c is None else f"v[{c}:{c+3}]"
    return f"v_mfma_f32_16x16x32_bf16 v[{d}:{d+3}], v[{a}:{a+3}], v[{b}:{b+3}], {cs}"


def a_wave(g):
    KA = 16; VB = 80; VL = 144
    QBR = 144; QG = 176; S0 = 184; S1 = 188; P = 192; PM = (196, 200); D0 = 204; D1 = 208; DL = 212; ONES = 216
    T0, T1, T2, T3 = 220, 221, 222, 223
    M2 = 224; E = 226
    CO = 234
    CM = 242
    VTS = 255
    vK, vV, vQG, vQSW, vQSR, vOPW, vMLW, vOPR, vPUB, vMLR = 3, 4, 5, 6, 7, 8, 9, 10, 11, 12
    g("; ---------------- A wave ----------------")
    g.ts_begin(A_TS)
    g.stamp(0, VTS, 1)
    g(f"""
    s_lshl_b32 s28, s4, 25
    s_lshl_b32 s29, s5, 16
    s_add_u32 s28, s28, s29
    s_lshl_b32 s29, s3, 14
    s_add_u32 s28, s28, s29
    s_add_u32 s28, s28, {61440*512}
    """)
    srd_off(g, 12, 66, 67, 28, 16384)
    srd_off(g, 16, 68, 69, 28, 16384)
    g(f"""
    v_lshlrev_b32 v{vK}, 9, v1
    v_lshl_add_u32 v{vK}, v2, 4, v{vK}
    v_lshlrev_b32 v{vV}, 11, v2
    v_lshl_add_u32 v{vV}, v1, 4, v{vV}
    s_movk_i32 s30, 0x2000
    s_barrier
    """)
    cnt = 0
    TH = g.thr[0]
    for t in range(2):
        for j in range(8):
            r = KA + t*32 + j*4
            if TH and cnt >= 2*TH and cnt % 2 == 0: g(f"s_waitcnt vmcnt({2*TH-2})")
            g(f"buffer_load_dwordx4 v[{r}:{r+3}], v{vK}, s[12:15], {'s30' if t else '0'} offen offset:{j*64} nt")
            cnt += 1
    cnt = 0
    for t in range(2):
        for rr in range(4):
            for hf in range(2):
                r = VL + (t*8 + rr*2 + hf)*4
                if TH: g(f"s_waitcnt vmcnt({max(TH-1, 2*TH-2-cnt)})")
                g(f"buffer_load_dwordx4 v[{r}:{r+3}], v{vV}, s[16:19], {'s30' if t else '0'} offen offset:{rr*512+hf*256} nt")
                cnt += 1
    g(f"""
    v_lshlrev_b32 v{vQG}, 4, v0
    s_lshl_b32 s28, s3, 10
    s_add_u32 s28, s28, {L_QS}
    v_lshlrev_b32 v{vQSW}, 3, v0
    v_add_u32 v{vQSW}, s28, v{vQSW}
    v_lshrrev_b32 v{T0}, 3, v1
    v_lshlrev_b32 v{vQSR}, 9, v{T0}
    v_lshl_add_u32 v{vQSR}, v2, 4, v{vQSR}
    v_add_u32 v{vQSR}, s28, v{vQSR}
    s_lshl_b32 s28, s3, 11
    s_add_u32 s28, s28, {L_OP}
    v_lshlrev_b32 v{vOPW}, 5, v0
    v_add_u32 v{vOPW}, s28, v{vOPW}
    s_lshl_b32 s28, s3, 4
    s_add_u32 s28, s28, {L_MLP}
    v_lshrrev_b32 v{T1}, 5, v0
    v_lshlrev_b32 v{vMLW}, 3, v{T1}
    v_add_u32 v{vMLW}, s28, v{vMLW}
    s_lshl_b32 s28, s3, 9
    v_lshlrev_b32 v{vPUB}, 3, v0
    v_add_u32 v{vPUB}, s28, v{vPUB}
    v_add_u32 v{vOPR}, {L_OP}, v{vPUB}
    s_lshr_b32 s28, s3, 1
    s_lshl_b32 s28, s28, 3
    s_add_u32 s28, s28, {L_MLP}
    v_mov_b32 v{vMLR}, s28
    v_cmp_eq_u32 s[36:37], v{T0}, v{T1}
    v_mov_b32 v{ONES}, 0x3f803f80
    v_mov_b32 v{ONES+1}, 0x3f803f80
    v_mov_b32 v{ONES+2}, 0x3f803f80
    v_mov_b32 v{ONES+3}, 0x3f803f80
    s_mov_b32 s38, {f32hex(LOG2E/16.0)}
    s_mov_b32 s39, 0x05040100
    s_mov_b32 s44, 0x07060302
    s_mov_b32 s40, 0x01010101
    s_mov_b32 s41, 0x01010101
    """)
    g.stamp(1, VTS)
    g("""s_waitcnt lgkmcnt(0)
    s_mul_i32 s6, s50, 0x9E3779B1
    s_add_u32 s6, s6, 0x7F4A7C15""")
    g("s_waitcnt vmcnt(0)")
    g.stamp(2, VTS)
    for hf in range(2):
        for t in range(2):
            for q in range(2):
                x = VL + (t*8 + (2*q)*2 + hf)*4
                y = VL + (t*8 + (2*q+1)*2 + hf)*4
                for d in range(4):
                    p = 2*t + q
                    g(f"v_perm_b32 v{VB + (hf*8 + 2*d)*4 + p}, v{y+d}, v{x+d}, s39")
                    g(f"v_perm_b32 v{VB + (hf*8 + 2*d + 1)*4 + p}, v{y+d}, v{x+d}, s44")
    for layer in range(2):
        sb = 3 + layer*8
        g(f"""
        s_lshl_b32 s28, s4, 11
        s_add_u32 s28, s28, {WS_QB + layer*8*2048}
        """)
        def loads():
            g(f"buffer_load_dwordx4 v[{QG}:{QG+3}], v{vQG}, s[8:11], s28 offen sc1")
            g(f"buffer_load_dwordx4 v[{QG+4}:{QG+7}], v{vQG}, s[8:11], s28 offen offset:1024 sc1")
        def check():
            g(f"""
            v_xor_b32 v{T0}, s6, v{QG+1}
            v_xor_b32 v{T1}, s6, v{QG+3}
            v_xor_b32 v{T2}, s6, v{QG+5}
            v_xor_b32 v{T3}, s6, v{QG+7}
            v_or3_b32 v{T0}, v{T0}, v{T1}, v{T2}
            v_or_b32 v{T0}, v{T0}, v{T3}
            v_cmp_ne_u32 vcc, 0, v{T0}
            """)
        g.poll(loads, check)
        g.stamp(sb, VTS)
        if layer == 0:
            g("s_barrier")
        g(f"""
        ds_write2_b32 v{vQSW}, v{QG}, v{QG+2} offset0:0 offset1:1
        ds_write2_b32 v{vQSW}, v{QG+4}, v{QG+6} offset0:128 offset1:129
        s_waitcnt lgkmcnt(0)
        """)
        for j in range(8):
            g(f"ds_read_b128 v[{QBR+4*j}:{QBR+4*j+3}], v{vQSR} offset:{j*64}")
        for j in range(8):
            g(f"s_waitcnt lgkmcnt({7-j})")
            g(mfma(S0, KA + j*4, QBR + 4*j, None if j == 0 else S0))
            g(mfma(S1, KA + 32 + j*4, QBR + 4*j, None if j == 0 else S1))
        g.nop(8)
        g(f"""
        v_max3_f32 v{M2}, v{S0}, v{S0+1}, v{S0+2}
        v_max3_f32 v{M2}, v{M2}, v{S0+3}, v{S1}
        v_max3_f32 v{M2}, v{M2}, v{S1+1}, v{S1+2}
        v_max_f32 v{M2}, v{M2}, v{S1+3}
        v_mov_b32 v{T0}, v{M2}
        s_nop 1
        v_permlane16_swap_b32 v{M2}, v{T0}
        s_nop 1
        v_max_f32 v{M2}, v{M2}, v{T0}
        v_mov_b32 v{T0}, v{M2}
        s_nop 1
        v_permlane32_swap_b32 v{M2}, v{T0}
        s_nop 1
        v_max_f32 v{M2}, v{M2}, v{T0}
        v_mul_f32 v{M2}, s38, v{M2}
        """)
        for k in range(8):
            g(f"v_fma_f32 v{E+k}, v{S0+k}, s38, -v{M2}")
        for k in range(8):
            g(f"v_exp_f32 v{E+k}, v{E+k}")
        g(f"""
        v_mov_b32_dpp v{T0}, v{M2} row_ror:8 row_mask:0xf bank_mask:0xf
        v_cvt_pk_bf16_f32 v{P}, v{E}, v{E+1}
        v_cvt_pk_bf16_f32 v{P+1}, v{E+2}, v{E+3}
        v_cvt_pk_bf16_f32 v{P+2}, v{E+4}, v{E+5}
        v_cvt_pk_bf16_f32 v{P+3}, v{E+6}, v{E+7}
        v_cndmask_b32 v{M2}, v{T0}, v{M2}, s[36:37]
        s_mov_b64 s[42:43], s[40:41]
        """)
        def pm(v):
            b = PM[v & 1]
            for k in range(4):
                g(f"v_cndmask_b32 v{b+k}, 0, v{P+k}, s[42:43]")
            g("s_lshl_b64 s[42:43], s[42:43], 1")
        pm(0)
        g(mfma(DL, P, ONES, None))
        g("s_nop 0")
        for v in range(8):
            b = PM[v & 1]
            hf = v >> 2; tt = v & 3
            g(mfma(D0, b, VB + (hf*8 + tt)*4, None if v == 0 else D0))
            g(mfma(D1, b, VB + (hf*8 + tt + 4)*4, None if v == 0 else D1))
            if v < 7:
                pm(v + 1)
                g("s_nop 0")
        g(f"v_mov_b32 v{M2+1}, v{DL}")
        g.nop(8)
        g(f"""
        ds_write_b128 v{vOPW}, v[{D0}:{D0+3}]
        ds_write_b128 v{vOPW}, v[{D1}:{D1+3}] offset:16
        s_mov_b64 s[32:33], exec
        s_mov_b32 exec_lo, 1
        s_mov_b32 exec_hi, 1
        ds_write_b64 v{vMLW}, v[{M2}:{M2+1}]
        s_mov_b64 exec, s[32:33]
        s_waitcnt lgkmcnt(0)
        """)
        g.stamp(sb+1, VTS)
        g("s_barrier")
        for a in range(4):
            g(f"ds_read_b64 v[{CM+2*a}:{CM+2*a+1}], v{vMLR} offset:{a*16}")
        for a in range(4):
            g(f"ds_read_b64 v[{CO+2*a}:{CO+2*a+1}], v{vOPR} offset:{a*2048}")
        if layer == 0:
            g(f"""
            v_mov_b32 v{T0}, {L_TL}
            ds_read_b32 v{T1}, v{T0} offset:4
            """)
            g("s_waitcnt lgkmcnt(0)")
            g(f"v_readfirstlane_b32 s7, v{T1}")
        else:
            g("s_waitcnt lgkmcnt(4)")
        g(f"""
        v_max3_f32 v{M2}, v{CM}, v{CM+2}, v{CM+4}
        v_max_f32 v{M2}, v{M2}, v{CM+6}
        v_sub_f32 v{E}, v{CM}, v{M2}
        v_sub_f32 v{E+1}, v{CM+2}, v{M2}
        v_sub_f32 v{E+2}, v{CM+4}, v{M2}
        v_sub_f32 v{E+3}, v{CM+6}, v{M2}
        v_exp_f32 v{E}, v{E}
        v_exp_f32 v{E+1}, v{E+1}
        v_exp_f32 v{E+2}, v{E+2}
        v_exp_f32 v{E+3}, v{E+3}
        s_waitcnt lgkmcnt(0)
        v_mul_f32 v{T0}, v{E}, v{CO}
        v_mul_f32 v{T1}, v{E}, v{CO+1}
        v_mul_f32 v{M2+1}, v{E}, v{CM+1}
        """)
        for a in range(1, 4):
            g(f"""
            v_fmac_f32 v{T0}, v{E+a}, v{CO+2*a}
            v_fmac_f32 v{T1}, v{E+a}, v{CO+2*a+1}
            v_fmac_f32 v{M2+1}, v{E+a}, v{CM+2*a+1}
            """)
        g(f"""
        s_lshl_b32 s28, s4, 16
        s_lshl_b32 s29, s5, 11
        s_add_u32 s28, s28, s29
        s_add_u32 s28, s28, {WS_OB + layer*8*65536}
        """)
        g.pub(f"buffer_store_dwordx2 v[{T0}:{T1}], v{vPUB}, s[8:11], s28 offen")
        lab = g.label("noml")
        g(f"""
        s_bitcmp1_b32 s3, 0
        s_cbranch_scc1 {lab}
        s_lshl_b32 s28, s4, 9
        s_lshl_b32 s29, s5, 4
        s_add_u32 s28, s28, s29
        s_lshl_b32 s29, s3, 2
        s_add_u32 s28, s28, s29
        s_add_u32 s28, s28, {WS_MLB + layer*8*512}
        v_mov_b32 v{T2}, 0
        s_mov_b64 s[32:33], exec
        s_mov_b64 exec, 1
        """)
        g.pub(f"buffer_store_dwordx2 v[{M2}:{M2+1}], v{T2}, s[8:11], s28 offen")
        g(f"""
        s_mov_b64 exec, s[32:33]
        {lab}:
        """)
        g.stamp(sb+2, VTS)
        if layer == 0:
            g("s_barrier\ns_barrier")
    dump_ts(g, VTS)
    g("s_endpgm")


def dump_ts(g, vts):
    if not g.ts:
        return
    g(f"""
    s_mov_b64 exec, -1
    s_waitcnt lgkmcnt(0)
    v_mov_b32 v{vts}, 0
    """)
    for idx, r in g.tsmap.items():
        g(f"v_writelane_b32 v{vts}, s{r}, {idx}")
    g(f"""
    s_lshl_b32 s28, s2, 11
    s_lshl_b32 s29, s3, 8
    s_add_u32 s28, s28, s29
    s_add_u32 s28, s28, {WS_TS}
    v_lshlrev_b32 v1, 2, v0
    buffer_store_dword v{vts}, v1, s[8:11], s28 offen
    """)


WB = 16; WO = 72; WD = 72; XA = 176
ACC = 232; CS = 236; W_ONES = 240; XST = 244; SS1 = 248; SS2 = 249
U0, U1, U2, U3, U4 = 250, 251, 252, 253, 254
W_VTS = 255
vCOL, vXSW, vXA_, vXSt, vTR, vHA, vHM, vRB, vZW = 3, 4, 5, 6, 7, 8, 9, 12, 13
YP = 14
XR = 16
Y4 = 244


def gemv16(g, xs_off, WB, CS, out):
    g(f"""
    v_mov_b32 v{XST}, 0
    v_mov_b32 v{XST+1}, 0
    v_mov_b32 v{XST+2}, 0
    v_mov_b32 v{XST+3}, 0
    s_mov_b64 exec, s[36:37]
    ds_read_b128 v[{XST}:{XST+3}], v{vXSt} offset:{xs_off}
    s_mov_b64 exec, -1
    """)
    for j in range(14):
        g(f"ds_read_b128 v[{XA+4*j}:{XA+4*j+3}], v{vXA_} offset:{xs_off + j*64}")
    dpp = "row_mask:0xf bank_mask:0xf bound_ctrl:0"
    side = []
    side.append([f"v_dot2_f32_bf16 v{SS1}, v{XST}, v{W_ONES}, 0",
                 f"v_dot2_f32_bf16 v{SS2}, v{XST}, v{XST}, 0",
                 f"v_dot2_f32_bf16 v{SS1}, v{XST+1}, v{W_ONES}, v{SS1}"])
    side.append([f"v_dot2_f32_bf16 v{SS2}, v{XST+1}, v{XST+1}, v{SS2}",
                 f"v_dot2_f32_bf16 v{SS1}, v{XST+2}, v{W_ONES}, v{SS1}",
                 f"v_dot2_f32_bf16 v{SS2}, v{XST+2}, v{XST+2}, v{SS2}"])
    side.append([f"v_dot2_f32_bf16 v{SS1}, v{XST+3}, v{W_ONES}, v{SS1}",
                 f"v_dot2_f32_bf16 v{SS2}, v{XST+3}, v{XST+3}, v{SS2}",
                 "s_nop 2"])
    for sh in (1, 2, 4, 8):
        side.append([f"v_add_f32_dpp v{SS1}, v{SS1}, v{SS1} row_shr:{sh} {dpp}",
                     f"v_add_f32_dpp v{SS2}, v{SS2}, v{SS2} row_shr:{sh} {dpp}",
                     "s_nop 0"])
    side.append([f"v_add_f32_dpp v{SS1}, v{SS1}, v{SS1} row_bcast:15 row_mask:0xa bank_mask:0xf",
                 f"v_add_f32_dpp v{SS2}, v{SS2}, v{SS2} row_bcast:15 row_mask:0xa bank_mask:0xf",
                 "s_nop 0"])
    side.append([f"v_add_f32_dpp v{SS1}, v{SS1}, v{SS1} row_bcast:31 row_mask:0xc bank_mask:0xf",
                 f"v_add_f32_dpp v{SS2}, v{SS2}, v{SS2} row_bcast:31 row_mask:0xc bank_mask:0xf",
                 "s_nop 0"])
    side.append([f"v_readlane_b32 s46, v{SS1}, 63",
                 f"v_readlane_b32 s47, v{SS2}, 63",
                 f"v_mov_b32 v{U0}, s45",
                 "s_nop 0"])
    side.append([f"v_mul_f32 v{U1}, s46, v{U0}",
                 f"v_mul_f32 v{U2}, s47, v{U0}",
                 f"v_fma_f32 v{U2}, -v{U1}, v{U1}, v{U2}",
                 f"v_max_f32 v{U2}, 0, v{U2}"])
    if g.mimic:
        side.append([f"v_cvt_pk_bf16_f32 v{U3}, v{U1}, v{U2}",
                     f"v_lshlrev_b32 v{U1}, 16, v{U3}",
                     f"v_and_b32 v{U2}, 0xffff0000, v{U3}",
                     f"v_add_f32 v{U2}, s48, v{U2}"])
        side.append([f"v_cvt_pk_bf16_f32 v{U3}, v{U2}, v{U2}",
                     f"v_lshlrev_b32 v{U2}, 16, v{U3}",
                     f"v_sqrt_f32 v{U2}, v{U2}",
                     "s_nop 0"])
        side.append([f"v_cvt_pk_bf16_f32 v{U3}, v{U2}, v{U2}",
                     f"v_lshlrev_b32 v{U2}, 16, v{U3}",
                     f"v_rcp_f32 v{U2}, v{U2}"])
    else:
        side.append([f"v_add_f32 v{U2}, s48, v{U2}",
                     f"v_rsq_f32 v{U2}, v{U2}"])
    assert len(side) <= 14
    g("s_waitcnt lgkmcnt(14)")
    for j in range(14):
        g(f"s_waitcnt lgkmcnt({13-j})")
        g(mfma(ACC, XA + 4*j, WB + 4*j, None if j == 0 else ACC))
        if j < len(side):
            for s in side[j]:
                g(s)
    g.nop(8)
    g(f"""
    v_fma_f32 v{out}, -v{U1}, v{CS}, v{ACC}
    v_mul_f32 v{out}, v{out}, v{U2}
    """)


def load_WB(g):
    for j in range(14):
        g(f"ds_read_b64_tr_b16 v[{WB+4*j}:{WB+4*j+1}], v{vTR} offset:{j*1024}")
        g(f"ds_read_b64_tr_b16 v[{WB+4*j+2}:{WB+4*j+3}], v{vTR} offset:{j*1024 + 128}")
        if j % 4 == 3:
            g("s_waitcnt lgkmcnt(0)")
    g("s_waitcnt lgkmcnt(0)")
    for j in range(14):
        g(mfma(ACC, W_ONES, WB + 4*j, None if j == 0 else ACC))
    g.nop(8)
    g(f"v_mov_b32 v{CS}, v{ACC}")


def q_stage(g, layer, xs_idx):
    gemv16(g, L_XS + xs_idx*1024, WB, CS, U4)
    g(f"""
    s_nop 1
    v_mov_b32_dpp v{U3}, v{U4} quad_perm:[1,0,3,2] row_mask:0xf bank_mask:0xf
    v_mov_b32 v{YP+1}, s6
    v_cvt_pk_bf16_f32 v{YP}, v{U4}, v{U3}
    v_lshlrev_b32 v{U0}, 2, v0
    s_lshl_b32 s28, s4, 11
    s_lshl_b32 s29, s33, 6
    s_add_u32 s28, s28, s29
    s_add_u32 s28, s28, {WS_QB + layer*8*2048}
    s_mov_b64 exec, 0x5555
    """)
    st = f"buffer_store_dwordx2 v[{YP}:{YP+1}], v{U0}, s[8:11], s28 offen"
    if layer == 0:
        g(st + " sc1")
    else:
        g.pub(st)
    g("s_mov_b64 exec, -1")


def reducer(g, stage, nprod):
    lab = g.label("nored")
    g(f"""
    s_cmp_ge_u32 s5, 14
    s_cbranch_scc1 {lab}
    s_lshl_b32 s28, s4, 16
    s_lshl_b32 s29, s5, 7
    s_add_u32 s28, s28, s29
    s_add_u32 s28, s28, {WS_YB + stage*8*65536}
    s_add_u32 s29, s28, 16384
    s_add_u32 s30, s28, 32768
    s_add_u32 s31, s28, 49152
    """)
    R = XA
    if nprod == 28:
        for k in range(4):
            g(f"v_mov_b32 v{R+12+k}, 0")
    def loads():
        for u in range(2 if nprod == 16 else 3):
            g(f"buffer_load_dwordx4 v[{R+4*u}:{R+4*u+3}], v{vRB}, s[8:11], s{28+u} offen sc1")
        if nprod == 28:
            g("s_mov_b32 exec_lo, 0x00ff00ff\ns_mov_b32 exec_hi, 0x00ff00ff")
            g(f"buffer_load_dwordx4 v[{R+12}:{R+15}], v{vRB}, s[8:11], s31 offen sc1")
            g("s_mov_b64 exec, -1")
    def check():
        g.sentinel_check(range(R, R + (8 if nprod == 16 else 16)), U0)
    g.poll(loads, check)
    g.stamp(24 + stage, W_VTS, 3)
    for k in range(4):
        g(f"v_add_f32 v{R+k}, v{R+k}, v{R+4+k}")
        if nprod == 28:
            g(f"v_add_f32 v{R+8+k}, v{R+8+k}, v{R+12+k}")
    if nprod == 28:
        for k in range(4):
            g(f"v_add_f32 v{R+k}, v{R+k}, v{R+8+k}")
    g("s_nop 0")
    for sh in (2, 4, 8):
        for k in range(4):
            g(f"v_add_f32_dpp v{R+k}, v{R+k}, v{R+k} row_ror:{sh} row_mask:0xf bank_mask:0xf")
    g(f"""
    s_lshl_b32 s28, s4, 11
    s_lshl_b32 s29, s5, 7
    s_add_u32 s28, s28, s29
    s_add_u32 s28, s28, {WS_ZB + stage*8*2048}
    s_mov_b32 exec_lo, 0x00030003
    s_mov_b32 exec_hi, 0x00030003
    buffer_store_dwordx4 v[{R}:{R+3}], v{vZW}, s[8:11], s28 offen sc1
    s_mov_b64 exec, -1
    s_lshl_b32 s28, s5, 7
    s_add_u32 s28, s28, {WS_ZB + stage*8*2048}
    """)
    if stage == 3:
        g(f"""
        s_cmp_lg_u32 s4, 0
        s_cbranch_scc1 {lab}
        """)
    R2 = XA + 16
    def loads2():
        g(f"buffer_load_dwordx4 v[{R2}:{R2+3}], v{vRB}, s[8:11], s28 offen sc1")
    def check2():
        g.sentinel_check(range(R2, R2+4), U0)
    g.poll(loads2, check2)
    for sh in (2, 4, 8):
        for k in range(4):
            g(f"v_add_f32_dpp v{R2+k}, v{R2+k}, v{R2+k} row_ror:{sh} row_mask:0xf bank_mask:0xf")
    if g.mimic:
        g(f"""
        v_cvt_pk_bf16_f32 v{U0}, v{R2}, v{R2+1}
        v_cvt_pk_bf16_f32 v{U1}, v{R2+2}, v{R2+3}
        v_lshlrev_b32 v{R2}, 16, v{U0}
        v_and_b32 v{R2+1}, 0xffff0000, v{U0}
        v_lshlrev_b32 v{R2+2}, 16, v{U1}
        v_and_b32 v{R2+3}, 0xffff0000, v{U1}
        """)
    g(f"""
    v_pk_add_f32 v[{XR}:{XR+1}], v[{XR}:{XR+1}], v[{R2}:{R2+1}]
    v_pk_add_f32 v[{XR+2}:{XR+3}], v[{XR+2}:{XR+3}], v[{R2+2}:{R2+3}]
    v_cvt_pk_bf16_f32 v{YP}, v{XR}, v{XR+1}
    v_cvt_pk_bf16_f32 v{YP+1}, v{XR+2}, v{XR+3}
    v_lshrrev_b32 v{U0}, 1, v{vZW}
    s_mov_b32 exec_lo, 0x00030003
    s_mov_b32 exec_hi, 0x00030003
    """)
    if stage < 3:
        g(f"""
        s_lshl_b32 s28, s4, 10
        s_lshl_b32 s29, s5, 6
        s_add_u32 s28, s28, s29
        s_add_u32 s28, s28, {WS_XB + stage*8*1024}
        """)
        g.pub(f"buffer_store_dwordx2 v[{YP}:{YP+1}], v{U0}, s[8:11], s28 offen")
        g(f"""
        s_mov_b64 exec, -1
        v_lshlrev_b32 v{XR}, 16, v{YP}
        v_and_b32 v{XR+1}, 0xffff0000, v{YP}
        v_lshlrev_b32 v{XR+2}, 16, v{YP+1}
        v_and_b32 v{XR+3}, 0xffff0000, v{YP+1}
        """)
    else:
        g(f"""
        s_lshl_b32 s28, s5, 6
        buffer_store_dwordx2 v[{YP}:{YP+1}], v{U0}, s[20:23], s28 offen
        s_mov_b64 exec, -1
        s_cmp_lg_u32 s2, 0
        s_cbranch_scc1 {lab}
        s_add_u32 s50, s50, 1
        v_mov_b32 v{U1}, s50
        v_mov_b32 v{U0}, 0
        s_mov_b64 exec, 1
        buffer_store_dword v{U1}, v{U0}, s[8:11], 0 offen sc1
        s_mov_b64 exec, -1
        """)
    g(f"{lab}:")


def x_gather(g, stage, xs_idx):
    R = XA
    g(f"""
    s_lshl_b32 s28, s4, 10
    s_add_u32 s28, s28, {WS_XB + stage*8*1024}
    s_mov_b64 exec, s[36:37]
    """)
    def loads():
        g(f"buffer_load_dwordx4 v[{R}:{R+3}], v{vXSt}, s[8:11], s28 offen sc1")
    def check():
        g.sentinel_check(range(R, R+4), U0)
    g.poll(loads, check)
    g(f"""
    ds_write_b128 v{vXSt}, v[{R}:{R+3}] offset:{L_XS + xs_idx*1024}
    s_mov_b64 exec, -1
    s_waitcnt lgkmcnt(0)
    """)


def pub_y(g, stage):
    g(f"""
    s_lshl_b32 s28, s4, 16
    s_lshl_b32 s29, s5, 11
    s_add_u32 s28, s28, s29
    s_add_u32 s28, s28, {WS_YB + stage*8*65536}
    s_mov_b64 exec, s[36:37]
    """)
    g.pub(f"buffer_store_dwordx2 v[{YP}:{YP+1}], v{vCOL}, s[8:11], s28 offen")
    g("s_mov_b64 exec, -1")


def hop_a(g, layer):
    R = XA
    g(f"""
    s_lshl_b32 s28, s4, 16
    s_lshl_b32 s29, s33, 6
    s_add_u32 s28, s28, s29
    s_add_u32 s28, s28, {WS_OB + layer*8*65536}
    s_add_u32 s29, s28, 32768
    s_lshl_b32 s30, s4, 9
    s_lshr_b32 s31, s33, 4
    s_lshl_b32 s31, s31, 3
    s_add_u32 s30, s30, s31
    s_add_u32 s30, s30, {WS_MLB + layer*8*512}
    """)
    def loads():
        g(f"buffer_load_dwordx2 v[{R+8}:{R+9}], v{vHM}, s[8:11], s30 offen sc1")
        g(f"buffer_load_dwordx2 v[{R+10}:{R+11}], v{vHM}, s[8:11], s30 offen offset:256 sc1")
        g(f"buffer_load_dwordx4 v[{R}:{R+3}], v{vHA}, s[8:11], s28 offen sc1")
        g(f"buffer_load_dwordx4 v[{R+4}:{R+7}], v{vHA}, s[8:11], s29 offen sc1")
    def check():
        g.sentinel_check(range(R, R+12), U0)
    g.poll(loads, check)
    g(f"v_max_f32 v{U0}, v{R+8}, v{R+10}")
    for sh in (1, 2, 4, 8):
        g("s_nop 1")
        g(f"v_max_f32_dpp v{U0}, v{U0}, v{U0} row_ror:{sh} row_mask:0xf bank_mask:0xf")
    g(f"""
    v_sub_f32 v{U1}, v{R+8}, v{U0}
    v_sub_f32 v{U2}, v{R+10}, v{U0}
    v_exp_f32 v{U1}, v{U1}
    v_exp_f32 v{U2}, v{U2}
    s_nop 0
    v_mul_f32 v{U3}, v{U1}, v{R+9}
    v_mul_f32 v{R}, v{U1}, v{R}
    v_mul_f32 v{R+1}, v{U1}, v{R+1}
    v_mul_f32 v{R+2}, v{U1}, v{R+2}
    v_mul_f32 v{R+3}, v{U1}, v{R+3}
    v_fmac_f32 v{U3}, v{U2}, v{R+11}
    v_fmac_f32 v{R}, v{U2}, v{R+4}
    v_fmac_f32 v{R+1}, v{U2}, v{R+5}
    v_fmac_f32 v{R+2}, v{U2}, v{R+6}
    v_fmac_f32 v{R+3}, v{U2}, v{R+7}
    """)
    for sh in (1, 2, 4, 8):
        for r in (U3, R, R+1, R+2, R+3):
            g(f"v_add_f32_dpp v{r}, v{r}, v{r} row_ror:{sh} row_mask:0xf bank_mask:0xf")
    g(f"""
    v_rcp_f32 v{U3}, v{U3}
    s_lshl_b32 s28, s35, 6
    v_lshl_add_u32 v{U0}, v2, 4, s28
    v_mul_f32 v{R}, v{U3}, v{R}
    v_mul_f32 v{R+1}, v{U3}, v{R+1}
    v_mul_f32 v{R+2}, v{U3}, v{R+2}
    v_mul_f32 v{R+3}, v{U3}, v{R+3}
    """)
    if g.mimic:
        g(f"""
        v_cvt_pk_bf16_f32 v{U1}, v{R}, v{R+1}
        v_cvt_pk_bf16_f32 v{U2}, v{R+2}, v{R+3}
        v_lshlrev_b32 v{R}, 16, v{U1}
        v_and_b32 v{R+1}, 0xffff0000, v{U1}
        v_lshlrev_b32 v{R+2}, 16, v{U2}
        v_and_b32 v{R+3}, 0xffff0000, v{U2}
        """)
    g(f"""
    s_mov_b32 exec_lo, 0x00010001
    s_mov_b32 exec_hi, 0x00010001
    ds_write_b128 v{U0}, v[{R}:{R+3}] offset:{L_OS}
    s_mov_b64 exec, -1
    s_waitcnt lgkmcnt(0)
    """)


TCALC = """
s_waitcnt lgkmcnt(0)
s_mul_i32 s6, s50, 0x9E3779B1
s_add_u32 s6, s6, 0x7F4A7C15
"""


def addr_setup(g):
    g(f"""
    v_lshlrev_b32 v{vXA_}, 4, v2
    v_lshrrev_b32 v{U0}, 2, v1
    v_lshl_add_u32 v{U0}, v2, 3, v{U0}
    v_lshlrev_b32 v{vTR}, 5, v{U0}
    v_and_b32 v{U0}, 3, v1
    v_lshl_add_u32 v{vTR}, v{U0}, 3, v{vTR}
    s_mul_i32 s28, s32, 14336
    s_add_u32 s28, s28, {L_IMG}
    v_add_u32 v{vTR}, s28, v{vTR}
    v_lshlrev_b32 v{vHA}, 11, v1
    v_lshl_add_u32 v{vHA}, v2, 4, v{vHA}
    v_lshlrev_b32 v{vHM}, 4, v1
    v_and_b32 v{U0}, 1, v1
    v_lshl_add_u32 v{U0}, v2, 1, v{U0}
    v_lshlrev_b32 v{vZW}, 4, v{U0}
    v_lshrrev_b32 v{U1}, 1, v1
    v_lshl_add_u32 v{vRB}, v{U1}, 11, v{vZW}
    v_mov_b32 v{W_ONES}, 0x3f803f80
    v_mov_b32 v{W_ONES+1}, 0x3f803f80
    v_mov_b32 v{W_ONES+2}, 0x3f803f80
    v_mov_b32 v{W_ONES+3}, 0x3f803f80
    s_mov_b32 s45, {f32hex(1.0/448.0)}
    s_mov_b32 s48, {f32hex(1e-5)}
    s_mov_b32 s49, {f32hex(-LOG2E)}
    """)


def clears(g, role):
    g(f"""
    v_mov_b32 v{XA}, -1
    v_mov_b32 v{XA+1}, -1
    v_mov_b32 v{XA+2}, -1
    v_mov_b32 v{XA+3}, -1
    s_lshl_b32 s28, s4, 16
    s_lshl_b32 s29, s5, 11
    s_add_u32 s28, s28, s29
    """)
    def st2k(sreg):
        g(f"buffer_store_dwordx4 v[{XA}:{XA+3}], v{vXSt}, s[8:11], {sreg} offen sc1")
        g(f"buffer_store_dwordx4 v[{XA}:{XA+3}], v{vXSt}, s[8:11], {sreg} offen offset:1024 sc1")
    for l in range(2):
        g(f"s_add_u32 s29, s28, {WS_OB + l*8*65536}")
        st2k("s29")
    if role == "R":
        for st in (0, 2):
            g(f"s_add_u32 s29, s28, {WS_YB + st*8*65536}")
            st2k("s29")
    else:
        ly = g.label("noy")
        g(f"""
        s_cmp_ge_u32 s5, 30
        s_cbranch_scc1 {ly}
        s_sub_u32 s30, s5, 16
        s_lshl_b32 s30, s30, 12
        s_lshl_b32 s31, s4, 16
        s_add_u32 s30, s30, s31
        """)
        for st in (1, 3):
            for t in range(2):
                g(f"s_add_u32 s29, s30, {WS_YB + st*8*65536 + t*2048}")
                st2k("s29")
        g(f"{ly}:")
    g(f"""
    s_lshl_b32 s28, s4, 9
    s_lshl_b32 s29, s5, 4
    s_add_u32 s28, s28, s29
    s_mov_b64 exec, 1
    """)
    for l in range(2):
        g(f"s_add_u32 s29, s28, {WS_MLB + l*8*512}")
        g(f"buffer_store_dwordx4 v[{XA}:{XA+3}], v{vXSt}, s[8:11], s29 offen sc1")
    if role == "R":
        lz = g.label("noz")
        g(f"""
        s_cmp_ge_u32 s5, 14
        s_cbranch_scc1 {lz}
        s_mov_b64 exec, 0xff
        s_lshl_b32 s28, s4, 11
        s_lshl_b32 s29, s5, 7
        s_add_u32 s28, s28, s29
        """)
        for st in range(4):
            g(f"s_add_u32 s29, s28, {WS_ZB + st*8*2048}")
            g(f"buffer_store_dwordx4 v[{XA}:{XA+3}], v{vXSt}, s[8:11], s29 offen sc1")
        g(f"""
        s_mov_b64 exec, 0xf
        s_lshr_b32 s28, s28, 1
        """)
        for st in range(3):
            g(f"s_add_u32 s29, s28, {WS_XB + st*8*1024}")
            g(f"buffer_store_dwordx4 v[{XA}:{XA+3}], v{vXSt}, s[8:11], s29 offen sc1")
        g(f"{lz}:")
    g("s_mov_b64 exec, -1")


def hello_pub(g):
    g(TCALC)
    g(f"""
    s_getreg_b32 s51, hwreg(HW_REG_XCC_ID)
    s_and_b32 s51, s51, 15
    s_or_b32 s51, s51, 0x100
    v_mov_b32 v{YP}, s51
    v_mov_b32 v{YP+1}, s6
    v_mov_b32 v{U0}, 0
    s_lshl_b32 s28, s2, 3
    s_add_u32 s28, s28, {WS_HB}
    s_waitcnt vmcnt(0)
    s_mov_b64 exec, 1
    buffer_store_dwordx2 v[{YP}:{YP+1}], v{U0}, s[8:11], s28 offen sc1
    s_mov_b64 exec, -1
    """)


def hello_poll(g):
    HR = XA
    g(f"s_movk_i32 s28, {WS_HB}")
    def loads():
        g(f"buffer_load_dwordx4 v[{HR}:{HR+3}], v{vXSt}, s[8:11], s28 offen sc1")
        g(f"buffer_load_dwordx4 v[{HR+4}:{HR+7}], v{vXSt}, s[8:11], s28 offen offset:1024 sc1")
    def check():
        g(f"""
        v_xor_b32 v{U0}, s6, v{HR+1}
        v_xor_b32 v{U1}, s6, v{HR+3}
        v_xor_b32 v{U2}, s6, v{HR+5}
        v_xor_b32 v{U3}, s6, v{HR+7}
        v_or3_b32 v{U0}, v{U0}, v{U1}, v{U2}
        v_or_b32 v{U0}, v{U0}, v{U3}
        v_cmp_ne_u32 vcc, 0, v{U0}
        """)
    g.poll(loads, check)
    g(f"""
    v_lshlrev_b32 v{U0}, 1, v0
    v_and_b32 v{U0}, 7, v{U0}
    v_or_b32 v{U1}, 1, v{U0}
    v_cmp_eq_u32 s[52:53], s4, v{U0}
    v_cmp_eq_u32 s[54:55], s4, v{U1}
    v_cmp_ne_u32 s[56:57], s51, v{HR}
    v_cmp_ne_u32 s[58:59], s51, v{HR+4}
    v_cmp_ne_u32 s[60:61], s51, v{HR+2}
    v_cmp_ne_u32 s[62:63], s51, v{HR+6}
    s_or_b64 s[56:57], s[56:57], s[58:59]
    s_or_b64 s[60:61], s[60:61], s[62:63]
    s_and_b64 s[56:57], s[56:57], s[52:53]
    s_and_b64 s[60:61], s[60:61], s[54:55]
    s_or_b64 s[56:57], s[56:57], s[60:61]
    s_cmp_eq_u64 s[56:57], 0
    s_cselect_b32 s7, 1, 0
    v_mov_b32 v{U0}, {L_TL}
    v_mov_b32 v{U1}, s7
    ds_write_b32 v{U0}, v{U1} offset:4
    s_waitcnt lgkmcnt(0)
    """)


def read_fast(g):
    g(f"""
    v_mov_b32 v{U0}, {L_TL}
    ds_read_b32 v{U1}, v{U0} offset:4
    s_waitcnt lgkmcnt(0)
    v_readfirstlane_b32 s7, v{U1}
    """)


def only(g, w, fn):
    lab = g.label("only")
    g(f"""
    s_cmp_lg_u32 s35, {w}
    s_cbranch_scc1 {lab}
    """)
    fn()
    g(f"{lab}:")


def w_wave_R(g, lend):
    g("; ---------------- W wave, role R ----------------")
    l23 = g.label("r23"); l3 = g.label("r3"); lj = g.label("rj")
    g(f"""
    s_and_b32 s32, s35, 1
    s_lshl_b32 s33, s5, 1
    s_add_u32 s33, s33, s32
    s_cmp_ge_u32 s35, 1
    s_cbranch_scc1 {l23}
    """)

    LB = WB
    g(f"""
    s_mov_b64 exec, s[36:37]
    buffer_load_dwordx4 v[{XST}:{XST+3}], v{vXSt}, s[12:15], 0 offen
    s_mov_b64 exec, -1
    s_lshl_b32 s28, s4, 10
    s_lshl_b32 s29, s5, 6
    s_add_u32 s28, s28, s29
    s_sub_u32 s29, {448*8192}, s28
    """)
    srd_off(g, 16, 70, 71, 28, "s29")
    g(f"""
    v_lshrrev_b32 v{U2}, 2, v0
    v_lshlrev_b32 v{U0}, 13, v{U2}
    v_and_b32 v{U1}, 3, v0
    v_lshl_add_u32 v{U0}, v{U1}, 4, v{U0}
    """)
    for jj in range(28):
        r = (XA + 4*jj) if jj < 14 else (LB + 4*(jj-14))
        g(f"s_mov_b32 s28, {jj*16*8192}")
        g(f"buffer_load_dwordx4 v[{r}:{r+3}], v{U0}, s[16:19], s28 offen nt")
    g("s_barrier")
    g(f"""
    v_lshrrev_b32 v{U3}, 1, v{U1}
    v_and_b32 v{U1}, 1, v{U1}
    s_movk_i32 s28, 14336
    v_mul_lo_u32 v{U3}, v{U3}, s28
    v_lshl_add_u32 v{U3}, v{U2}, 5, v{U3}
    v_lshl_add_u32 v{U3}, v{U1}, 4, v{U3}
    v_add_u32 v{U4}, {L_IMG}, v{U3}
    s_mov_b32 s32, 1
    """)
    addr_setup(g)
    g(f"""
    s_waitcnt vmcnt(28)
    s_mov_b64 exec, s[36:37]
    ds_write_b128 v{vXSt}, v[{XST}:{XST+3}] offset:{L_XS}
    s_mov_b64 exec, -1
    """)
    for jj in range(28):
        r = (XA + 4*jj) if jj < 14 else (LB + 4*(jj-14))
        g(f"s_waitcnt vmcnt({27-jj})")
        g(f"ds_write_b128 v{U4}, v[{r}:{r+3}] offset:{jj*512}")
        if jj % 8 == 7: g("s_waitcnt lgkmcnt(0)")
    g(TCALC)
    load_WB(g)
    g("s_add_u32 s33, s33, 1")
    q_stage(g, 0, 0)
    g(f"""
    s_sub_u32 s33, s33, 1
    s_mov_b32 s32, 0
    v_subrev_u32 v{vTR}, 14336, v{vTR}
    """)
    load_WB(g)
    q_stage(g, 0, 0)
    g.stamp(3, W_VTS)
    g(f"s_branch {lj}")
    g(f"""
    {l23}:
    s_cmp_eq_u32 s35, 3
    s_cbranch_scc1 {l3}
    s_barrier
    """)
    addr_setup(g)
    g(f"""
    s_lshl_b32 s28, s5, 6
    v_lshrrev_b32 v{U0}, 1, v{vZW}
    buffer_load_dwordx2 v[{XR+2}:{XR+3}], v{U0}, s[12:15], s28 offen
    s_lshl_b32 s28, s4, 9
    s_lshl_b32 s29, s5, 5
    s_add_u32 s28, s28, s29
    s_sub_u32 s30, s35, 1
    s_lshl_b32 s29, s30, 4
    s_add_u32 s28, s28, s29
    s_mul_i32 s28, s28, 896
    """)
    srd_off(g, 24, 72, 73, 28, 16*896)
    g(f"""
    s_mul_i32 s28, s30, {16*896}
    s_add_u32 s28, s28, {L_WO}
    v_add_u32 v{U4}, s28, v{vXSt}
    s_mov_b64 exec, s[36:37]
    """)
    for r in range(16):
        g(f"s_movk_i32 s28, {r*896}")
        if g.thr[2]: g(f"s_waitcnt vmcnt({g.thr[2]-1})")
        g(f"buffer_load_dwordx4 v[{WO+4*r}:{WO+4*r+3}], v{vXSt}, s[24:27], s28 offen nt")
    for r in range(16):
        g(f"s_waitcnt vmcnt({15-r})")
        g(f"ds_write_b128 v{U4}, v[{WO+4*r}:{WO+4*r+3}] offset:{r*896}")
        if r % 8 == 7: g("s_waitcnt lgkmcnt(0)")
    g(f"""
    s_mov_b64 exec, -1
    v_lshlrev_b32 v{XR}, 16, v{XR+2}
    v_and_b32 v{XR+1}, 0xffff0000, v{XR+2}
    v_lshlrev_b32 v{XR+2}, 16, v{XR+3}
    v_and_b32 v{XR+3}, 0xffff0000, v{XR+3}
    s_branch {lj}
    {l3}:
    """)
    clears(g, "R")
    g("s_barrier")
    addr_setup(g)
    hello_pub(g)
    g(f"{lj}:")
    g("s_waitcnt lgkmcnt(0)")
    g.stamp(4, W_VTS)
    g("s_barrier")
    g.ts_zero_late()
    only(g, 3, lambda: hello_poll(g))
    g(f"v_add_u32 v{U4}, {L_WO}, v{vXSW}")
    for r in range(32):
        g(f"ds_read_b32 v{WO+2*r+1}, v{U4} offset:{r*896}")
        if r % 8 == 7: g("s_waitcnt lgkmcnt(0)")
    for r in range(32):
        g(f"v_lshlrev_b32 v{WO+2*r}, 16, v{WO+2*r+1}")
        g(f"v_and_b32 v{WO+2*r+1}, 0xffff0000, v{WO+2*r+1}")
    def w1wb():
        g(TCALC)
        load_WB(g)
    only(g, 1, w1wb)
    for layer in range(2):
        sb = 5 + layer*8
        g.stamp(sb, W_VTS)
        g("s_barrier")
        if layer == 0:
            read_fast(g)
        la = g.label("noa")
        g(f"""
        s_cmp_ge_u32 s35, 2
        s_cbranch_scc1 {la}
        """)
        hop_a(g, layer)
        g(f"{la}:")
        g.stamp(sb+1, W_VTS)
        g("s_barrier")
        g(f"v_mov_b32 v{U0}, {L_OS}")
        for k in range(8):
            g(f"ds_read_b128 v[{XA+4*k}:{XA+4*k+3}], v{U0} offset:{k*16}")
        for k in range(8):
            g(f"s_waitcnt lgkmcnt({7-k})")
            for r in range(4*k, 4*k+4):
                src = XA + (r & ~1)
                dst = YP if (r & 2) == 0 else U0 + 0
                dst = YP if (k & 1) == 0 else U2
                sel = "op_sel:[1,0,0] op_sel_hi:[1,1,1]" if r & 1 else "op_sel_hi:[0,1,1]"
                if r in (0, 4):
                    g(f"v_pk_mul_f32 v[{dst}:{dst+1}], v[{src}:{src+1}], v[{WO+2*r}:{WO+2*r+1}] op_sel_hi:[0,1]")
                else:
                    g(f"v_pk_fma_f32 v[{dst}:{dst+1}], v[{src}:{src+1}], v[{WO+2*r}:{WO+2*r+1}], v[{dst}:{dst+1}] {sel}")
        g(f"v_pk_add_f32 v[{YP}:{YP+1}], v[{YP}:{YP+1}], v[{U2}:{U2+1}]")
        pub_y(g, 2*layer)
        g.stamp(sb+2, W_VTS)
        def red():
            reducer(g, 2*layer, 16)
            g.stamp(sb+3, W_VTS)
            reducer(g, 2*layer + 1, 28)
            g.stamp(sb+4, W_VTS)
        only(g, 2, red)
        if layer == 0:
            only(g, 3, lambda: x_gather(g, 1, 2))
            g("s_barrier")
            lq = g.label("noq")
            g(f"""
            s_cmp_ge_u32 s35, 2
            s_cbranch_scc1 {lq}
            """)
            q_stage(g, 1, 2)
            g(f"{lq}:")
            g.stamp(sb+6, W_VTS)
    g(f"s_branch {lend}")


def w_wave_F(g, lend):
    g("; ---------------- W wave, role F ----------------")
    g(f"""
    s_and_b32 s32, s35, 1
    s_lshr_b32 s33, s35, 1
    """)
    only(g, 3, lambda: clears(g, "F"))
    g("s_barrier")
    addr_setup(g)
    only(g, 3, lambda: hello_pub(g))
    g(f"""
    s_sub_u32 s30, s5, 16
    s_mul_i32 s28, s4, 448
    s_lshl_b32 s29, s30, 5
    s_add_u32 s28, s28, s29
    s_sub_u32 s29, {448*3584}, s28
    s_cmp_lt_u32 s5, 30
    s_cselect_b32 s28, s28, 0
    s_cselect_b32 s29, s29, 0
    s_cmp_eq_u32 s32, 0
    s_cselect_b32 s16, s76, s78
    s_cselect_b32 s17, s77, s79
    s_add_u32 s16, s16, s28
    s_addc_u32 s17, s17, 0
    s_mov_b32 s18, s29
    s_mov_b32 s19, 0x00020000
    s_mul_i32 s28, s4, 224
    s_lshl_b32 s29, s30, 4
    s_add_u32 s28, s28, s29
    s_lshl_b32 s29, s32, 3
    s_add_u32 s28, s28, s29
    s_mul_i32 s28, s28, 896
    s_cmp_lt_u32 s5, 30
    s_cselect_b32 s28, s28, 0
    s_cselect_b32 s29, {8*896}, 0
    """)
    srd_off(g, 24, 80, 81, 28, "s29")
    g(f"""
    v_lshrrev_b32 v{U0}, 1, v0
    s_mul_i32 s28, s33, 224
    v_add_u32 v{U0}, s28, v{U0}
    s_movk_i32 s28, 3584
    v_mul_lo_u32 v{vHA}, v{U0}, s28
    v_and_b32 v{U1}, 1, v0
    v_lshl_add_u32 v{vHA}, v{U1}, 4, v{vHA}
    s_movk_i32 s28, 14336
    v_mul_lo_u32 v{vHM}, v{U1}, s28
    v_lshl_add_u32 v{vHM}, v{U0}, 5, v{vHM}
    s_lshl_b32 s28, s32, 4
    s_add_u32 s28, s28, {L_IMG}
    v_add_u32 v{vHM}, s28, v{vHM}
    s_mul_i32 s28, s33, 448
    v_lshlrev_b32 v{vXSW}, 3, v0
    v_add_u32 v{vXSW}, s28, v{vXSW}
    v_lshlrev_b32 v{vCOL}, 1, v{vXSW}
    s_waitcnt lgkmcnt(0)
    """)
    g.stamp(4, W_VTS)
    g("s_barrier")
    g.ts_zero_late()
    only(g, 3, lambda: hello_poll(g))
    for jj in range(7):
        g(f"s_mov_b32 s28, {jj*32*3584}")
        g(f"buffer_load_dwordx4 v[{XA+4*jj}:{XA+4*jj+3}], v{vHA}, s[16:19], s28 offen nt")
    g("s_mov_b64 exec, s[36:37]")
    for f in range(8):
        g(f"s_movk_i32 s28, {f*896}")
        g(f"buffer_load_dwordx2 v[{WD+4*f+2}:{WD+4*f+3}], v{vXSW}, s[24:27], s28 offen nt")
    g("s_mov_b64 exec, -1")
    for layer in range(2):
        sb = 5 + layer*8
        g.stamp(sb, W_VTS)
        g("s_barrier")
        if layer == 0:
            read_fast(g)
            for jj in range(7):
                g(f"s_waitcnt vmcnt({14-jj})")
                g(f"ds_write_b128 v{vHM}, v[{XA+4*jj}:{XA+4*jj+3}] offset:{jj*1024}")
            g("s_waitcnt vmcnt(0)")
            for f in range(8):
                r = WD + 4*f
                g(f"""
                v_lshlrev_b32 v{r}, 16, v{r+2}
                v_and_b32 v{r+1}, 0xffff0000, v{r+2}
                v_lshlrev_b32 v{r+2}, 16, v{r+3}
                v_and_b32 v{r+3}, 0xffff0000, v{r+3}
                """)
            g("s_waitcnt lgkmcnt(0)")
            g.stamp(sb+1, W_VTS)
            g("s_barrier")
            load_WB(g)
        else:
            g(f"""
            s_cmp_ge_u32 s5, 30
            s_cbranch_scc1 {lend}
            """)
        lx = g.label("nox")
        g(f"""
        s_cmp_ge_u32 s5, 30
        s_cbranch_scc1 {lx}
        """)
        only(g, 2, lambda: x_gather(g, 2*layer, 2*layer + 1))
        g(f"{lx}:")
        g.stamp(sb+2, W_VTS)
        g("s_barrier")
        lf = g.label("noffn")
        g(f"""
        s_cmp_ge_u32 s5, 30
        s_cbranch_scc1 {lf}
        """)
        gemv16(g, L_XS + (2*layer+1)*1024, WB, CS, U4)
        if g.mimic:
            g(f"""
            v_cvt_pk_bf16_f32 v{U3}, v{U4}, v{U4}
            v_lshlrev_b32 v{U4}, 16, v{U3}
            """)
        g(f"""
        v_mul_f32 v{U0}, s49, v{U4}
        v_exp_f32 v{U0}, v{U0}
        v_mov_b32_dpp v{U3}, v{U4} row_ror:8 row_mask:0xf bank_mask:0xf
        v_add_f32 v{U0}, 1.0, v{U0}
        v_rcp_f32 v{U0}, v{U0}
        s_nop 0
        v_mul_f32 v{U0}, v{U0}, v{U4}
        """)
        if g.mimic:
            g(f"""
            v_cvt_pk_bf16_f32 v{U1}, v{U0}, v{U0}
            v_lshlrev_b32 v{U0}, 16, v{U1}
            """)
        g(f"v_mul_f32 v{U0}, v{U0}, v{U3}")
        if g.mimic:
            g(f"""
            v_cvt_pk_bf16_f32 v{U1}, v{U0}, v{U0}
            v_lshlrev_b32 v{U0}, 16, v{U1}
            """)
        g(f"""
        v_mov_b32 v{Y4}, 0
        v_mov_b32 v{Y4+1}, 0
        v_mov_b32 v{Y4+2}, 0
        v_mov_b32 v{Y4+3}, 0
        """)
        for f in range(8):
            for c in range(4):
                g(f"v_fmac_f32_dpp v{Y4+c}, v{U0}, v{WD+4*f+c} row_newbcast:{f} row_mask:0xf bank_mask:0xf")
        g(f"""
        s_sub_u32 s28, s5, 16
        s_lshl_b32 s28, s28, 1
        s_add_u32 s28, s28, s32
        s_lshl_b32 s28, s28, 11
        s_lshl_b32 s29, s4, 16
        s_add_u32 s28, s28, s29
        s_add_u32 s28, s28, {WS_YB + (2*layer+1)*8*65536}
        s_mov_b64 exec, s[36:37]
        """)
        g.pub(f"buffer_store_dwordx4 v[{Y4}:{Y4+3}], v{vCOL}, s[8:11], s28 offen")
        g("s_mov_b64 exec, -1")
        g(f"{lf}:")
        g.stamp(sb+3, W_VTS)


def w_wave(g):
    g.ts_begin(W_TS)
    g.stamp(0, W_VTS, 1)
    g(f"""
    s_sub_u32 s35, s3, 4
    v_cmp_gt_u32 s[36:37], 56, v0
    s_mul_i32 s28, s35, 448
    v_lshlrev_b32 v{vCOL}, 3, v0
    v_add_u32 v{vCOL}, s28, v{vCOL}
    v_lshrrev_b32 v{vXSW}, 1, v{vCOL}
    v_lshlrev_b32 v{vXSt}, 4, v0
    """)
    srd(g, 12, 64, 65, 896)
    srd(g, 20, 82, 83, 896)
    lF = g.label("roleF"); lend = g.label("wend")
    g(f"""
    s_cmp_ge_u32 s5, 16
    s_cbranch_scc1 {lF}
    """)
    w_wave_R(g, lend)
    g(f"{lF}:")
    w_wave_F(g, lend)
    g(f"{lend}:")
    g.stamp(31, W_VTS, 1)
    dump_ts(g, W_VTS)
    g("s_endpgm")


HEADER = open("cdna_kernels/" + NAME + ".s.ref").read().split("; Override launch")[0]


def build(ts=False, mimic=True, sleep=0, thr=(5, 2, 6)):
    g = Gen(ts, mimic, sleep, thr)
    g.L.append(HEADER.rstrip("\n"))
    g.L.append(f"; @launch grid=(256,1,1) block=(512,1,1) lds={LDS_BYTES}")
    g.L.append('.amdgcn_target "amdgcn-amd-amdhsa--gfx950"')
    g.L.append(".text")
    g.L.append(f".globl {KNAME}")
    g.L.append(".p2align 8")
    g.L.append(f".type {KNAME},@function")
    g.L.append(f"{KNAME}:")
    g(f"""
    s_cmp_ge_u32 s2, 256
    s_cbranch_scc1 L_exit
    s_load_dwordx16 s[64:79], s[0:1], 0
    s_load_dwordx8 s[80:87], s[0:1], 64
    v_lshrrev_b32 v1, 6, v0
    v_and_b32 v0, 63, v0
    v_readfirstlane_b32 s3, v1
    v_and_b32 v1, 15, v0
    v_lshrrev_b32 v2, 4, v0
    s_and_b32 s4, s2, 7
    s_lshr_b32 s5, s2, 3
    s_mov_b32 s7, 0
    s_waitcnt lgkmcnt(0)
    """)
    srd(g, 8, 86, 87, WS_SIZE)
    g(f"""
    s_load_dword s50, s[86:87], {WS_EPOCH}
    s_cmp_ge_u32 s3, 4
    s_cbranch_scc1 L_wwave
    """)
    a_wave(g)
    g("L_wwave:")
    w_wave(g)
    g("L_exit:")
    g("s_endpgm")
    g.L.append('.section .rodata,"a"')
    g.L.append(".p2align 6")
    g.L.append(f".amdhsa_kernel {KNAME}")
    for d in ["next_free_vgpr 256", "next_free_sgpr 102", "accum_offset 256", "group_segment_fixed_size 0",
              "kernarg_size 96", "user_sgpr_count 2", "user_sgpr_kernarg_segment_ptr 1",
              "system_sgpr_workgroup_id_x 1", "float_denorm_mode_32 3"]:
        g.L.append("  .amdhsa_" + d)
    g.L.append(".end_amdhsa_kernel")
    return "\n".join(g.L) + "\n"


if __name__ == "__main__":
    out = sys.argv[1] if len(sys.argv) > 1 else "cdna_kernels/" + NAME + ".s"
    ts = 3 if "--ts3" in sys.argv else 2 if "--ts" in sys.argv else (1 if "--ts1" in sys.argv else 0)
    mimic = "--nomimic" not in sys.argv
    sleep = int(sys.argv[sys.argv.index("--sleep")+1]) if "--sleep" in sys.argv else 0
    thr = tuple(int(x) for x in sys.argv[sys.argv.index("--thr")+1].split(",")) if "--thr" in sys.argv else (5, 2, 6)
    open(out, "w").write(build(ts, mimic, sleep, thr))
    print("wrote", out)
```

```python
import sys, math

NAME = "interleave_layers__sliding_block_cached__swiglu_ffn__decode"
KNAME = NAME + "_kernel"

WS_EPOCH = 0
WS_HB = 0x1000
WS_QB = 0x2000
WS_MLB = 0xA000
WS_ZB = 0x40000
WS_XB = 0x20000
WS_OB = 0x100000
WS_YB = 0x200000
WS_TS = 0x400000
WS_SIZE = 0x800000

L_XS = 0x0000
L_TL = 0x1000
L_OS = 0x1040
L_QS = 0x1400
L_OP = 0x2400
L_MLP = 0x4400
L_IMG = 0x4800
L_WO = 0xB800
LDS_BYTES = 0xB800 + 32*896

POLL_LIMIT = 20000
A_TS = list(range(52, 64, 2)) + list(range(88, 102, 2)) + list(range(64, 88, 2))
W_TS = list(range(88, 102, 2)) + list(range(64, 88, 2))
LOG2E = 1.4426950408889634


def f32hex(x):
    import struct
    return "0x%08x" % struct.unpack("<I", struct.pack("<f", x))[0]


class Gen:
    def __init__(self, ts=False, mimic=True, sleep=0, thr=(3, 0, 6)):
        self.sleep = sleep
        self.thr = thr
        self.early = int(sys.argv[sys.argv.index('--early')+1]) if '--early' in sys.argv else 2
        self.L = []
        self.ts = ts
        self.mimic = mimic
        self.uid = 0
        self.nts = 0

    def __call__(self, s):
        for line in s.strip("\n").split("\n"):
            self.L.append("    " + line.strip() if line.strip() and not line.strip().endswith(":") else line.strip())

    def label(self, base):
        self.uid += 1
        return f"L_{base}_{self.uid}"

    def nop(self, n):
        while n > 0:
            k = min(n, 16)
            self(f"s_nop {k-1}")
            n -= k

    def stamp(self, idx, vts, lvl=2):
        if not self.ts or lvl > self.ts:
            return
        if idx not in self.tsmap:
            self.tsmap[idx] = self.tsfree.pop(0)
        r = self.tsmap[idx]
        self(f"s_memrealtime s[{r}:{r+1}]")

    def ts_begin(self, regs):
        self.tsmap = {}
        self.tsfree = list(regs)
        if self.ts:
            for r in regs:
                if r >= 88:
                    self(f"s_mov_b32 s{r}, 0")

    def ts_zero_late(self):
        if self.ts:
            for r in range(64, 88, 2):
                self(f"s_mov_b32 s{r}, 0")

    def pub(self, store_txt):
        a = self.label("slow"); b = self.label("pubd")
        self(f"""
        s_cmp_eq_u32 s7, 0
        s_cbranch_scc1 {a}
        {store_txt}
        s_branch {b}
        {a}:
        {store_txt} sc1
        {b}:
        """)

    def poll(self, loads, check):
        a = self.label("poll"); b = self.label("polld")
        self("s_mov_b32 s34, 0")
        self(f"{a}:")
        loads()
        self("s_waitcnt vmcnt(0)")
        check()
        self(f"""
        s_cmp_eq_u64 vcc, 0
        s_cbranch_scc1 {b}
        {("s_sleep %d" % self.sleep) if self.sleep else ""}
        s_add_u32 s34, s34, 1
        s_cmp_lt_u32 s34, {POLL_LIMIT}
        s_cbranch_scc1 {a}
        {b}:
        """)

    def sentinel_check(self, regs, tmp):
        regs = list(regs)
        first = True
        while len(regs) > 0:
            if first:
                if len(regs) >= 3:
                    self(f"v_max3_u32 v{tmp}, v{regs[0]}, v{regs[1]}, v{regs[2]}"); regs = regs[3:]
                elif len(regs) == 2:
                    self(f"v_max_u32 v{tmp}, v{regs[0]}, v{regs[1]}"); regs = []
                else:
                    self(f"v_mov_b32 v{tmp}, v{regs[0]}"); regs = []
                first = False
            elif len(regs) >= 2:
                self(f"v_max3_u32 v{tmp}, v{tmp}, v{regs[0]}, v{regs[1]}"); regs = regs[2:]
            else:
                self(f"v_max_u32 v{tmp}, v{tmp}, v{regs[0]}"); regs = []
        self(f"v_cmp_eq_u32 vcc, -1, v{tmp}")


def srd(g, d, lo, hi, nbytes):
    g(f"""
    s_mov_b32 s{d}, s{lo}
    s_mov_b32 s{d+1}, s{hi}
    s_mov_b32 s{d+2}, {nbytes}
    s_mov_b32 s{d+3}, 0x00020000
    """)


def srd_off(g, d, lo, hi, soff, nbytes):
    g(f"""
    s_add_u32 s{d}, s{lo}, s{soff}
    s_addc_u32 s{d+1}, s{hi}, 0
    s_mov_b32 s{d+2}, {nbytes}
    s_mov_b32 s{d+3}, 0x00020000
    """)


def mfma(d, a, b, c):
    cs = "0" if c is None else f"v[{c}:{c+3}]"
    return f"v_mfma_f32_16x16x32_bf16 v[{d}:{d+3}], v[{a}:{a+3}], v[{b}:{b+3}], {cs}"


def a_wave(g):
    KA = 16; VB = 80; VL = 144
    QBR = 144; QG = 176; S0 = 184; S1 = 188; P = 192; PM = (196, 200); D0 = 204; D1 = 208; DL = 212; ONES = 216
    T0, T1, T2, T3 = 220, 221, 222, 223
    M2 = 224; E = 226
    CO = 234
    CM = 242
    VTS = 255
    vK, vV, vQG, vQSW, vQSR, vOPW, vMLW, vOPR, vPUB, vMLR = 3, 4, 5, 6, 7, 8, 9, 10, 11, 12
    g("; ---------------- A wave ----------------")
    g.ts_begin(A_TS)
    g.stamp(0, VTS, 1)
    g(f"""
    s_lshl_b32 s28, s4, 25
    s_lshl_b32 s29, s5, 16
    s_add_u32 s28, s28, s29
    s_lshl_b32 s29, s3, 14
    s_add_u32 s28, s28, s29
    s_add_u32 s28, s28, {61440*512}
    """)
    srd_off(g, 12, 66, 67, 28, 16384)
    srd_off(g, 16, 68, 69, 28, 16384)
    g(f"""
    v_lshlrev_b32 v{vK}, 9, v1
    v_lshl_add_u32 v{vK}, v2, 4, v{vK}
    v_lshlrev_b32 v{vV}, 11, v2
    v_lshl_add_u32 v{vV}, v1, 4, v{vV}
    s_movk_i32 s30, 0x2000
    s_barrier
    """)
    cnt = 0
    TK = g.thr[0]; TV = g.thr[1]
    for t in range(2):
        for j in range(8):
            r = KA + t*32 + j*4
            if TK and cnt >= 2*TK and cnt % 2 == 0: g(f"s_waitcnt vmcnt({2*TK-2})")
            g(f"buffer_load_dwordx4 v[{r}:{r+3}], v{vK}, s[12:15], {'s30' if t else '0'} offen offset:{j*64} nt")
            cnt += 1
    cnt = 0
    for t in range(2):
        for rr in range(4):
            for hf in range(2):
                r = VL + (t*8 + rr*2 + hf)*4
                if TV: g(f"s_waitcnt vmcnt({max(TV-1, 2*TK-2-cnt)})")
                g(f"buffer_load_dwordx4 v[{r}:{r+3}], v{vV}, s[16:19], {'s30' if t else '0'} offen offset:{rr*512+hf*256} nt")
                cnt += 1
    g(f"""
    v_lshlrev_b32 v{vQG}, 4, v0
    s_lshl_b32 s28, s3, 10
    s_add_u32 s28, s28, {L_QS}
    v_lshlrev_b32 v{vQSW}, 3, v0
    v_add_u32 v{vQSW}, s28, v{vQSW}
    v_lshrrev_b32 v{T0}, 3, v1
    v_lshlrev_b32 v{vQSR}, 9, v{T0}
    v_lshl_add_u32 v{vQSR}, v2, 4, v{vQSR}
    v_add_u32 v{vQSR}, s28, v{vQSR}
    s_lshl_b32 s28, s3, 11
    s_add_u32 s28, s28, {L_OP}
    v_lshlrev_b32 v{vOPW}, 5, v0
    v_add_u32 v{vOPW}, s28, v{vOPW}
    s_lshl_b32 s28, s3, 4
    s_add_u32 s28, s28, {L_MLP}
    v_lshrrev_b32 v{T1}, 5, v0
    v_lshlrev_b32 v{vMLW}, 3, v{T1}
    v_add_u32 v{vMLW}, s28, v{vMLW}
    s_lshl_b32 s28, s3, 9
    v_lshlrev_b32 v{vPUB}, 3, v0
    v_add_u32 v{vPUB}, s28, v{vPUB}
    v_add_u32 v{vOPR}, {L_OP}, v{vPUB}
    s_lshr_b32 s28, s3, 1
    s_lshl_b32 s28, s28, 3
    s_add_u32 s28, s28, {L_MLP}
    v_mov_b32 v{vMLR}, s28
    v_cmp_eq_u32 s[36:37], v{T0}, v{T1}
    v_mov_b32 v{ONES}, 0x3f803f80
    v_mov_b32 v{ONES+1}, 0x3f803f80
    v_mov_b32 v{ONES+2}, 0x3f803f80
    v_mov_b32 v{ONES+3}, 0x3f803f80
    s_mov_b32 s38, {f32hex(LOG2E/16.0)}
    s_mov_b32 s39, 0x05040100
    s_mov_b32 s44, 0x07060302
    s_mov_b32 s40, 0x01010101
    s_mov_b32 s41, 0x01010101
    """)
    g.stamp(1, VTS)
    g("""s_waitcnt lgkmcnt(0)
    s_mul_i32 s6, s50, 0x9E3779B1
    s_add_u32 s6, s6, 0x7F4A7C15""")
    g("s_waitcnt vmcnt(0)")
    g.stamp(2, VTS)
    for hf in range(2):
        for t in range(2):
            for q in range(2):
                x = VL + (t*8 + (2*q)*2 + hf)*4
                y = VL + (t*8 + (2*q+1)*2 + hf)*4
                for d in range(4):
                    p = 2*t + q
                    g(f"v_perm_b32 v{VB + (hf*8 + 2*d)*4 + p}, v{y+d}, v{x+d}, s39")
                    g(f"v_perm_b32 v{VB + (hf*8 + 2*d + 1)*4 + p}, v{y+d}, v{x+d}, s44")
    for layer in range(2):
        sb = 3 + layer*8
        g(f"""
        s_lshl_b32 s28, s4, 11
        s_add_u32 s28, s28, {WS_QB + layer*8*2048}
        """)
        def loads():
            g(f"buffer_load_dwordx4 v[{QG}:{QG+3}], v{vQG}, s[8:11], s28 offen sc1")
            g(f"buffer_load_dwordx4 v[{QG+4}:{QG+7}], v{vQG}, s[8:11], s28 offen offset:1024 sc1")
        def check():
            g(f"""
            v_xor_b32 v{T0}, s6, v{QG+1}
            v_xor_b32 v{T1}, s6, v{QG+3}
            v_xor_b32 v{T2}, s6, v{QG+5}
            v_xor_b32 v{T3}, s6, v{QG+7}
            v_or3_b32 v{T0}, v{T0}, v{T1}, v{T2}
            v_or_b32 v{T0}, v{T0}, v{T3}
            v_cmp_ne_u32 vcc, 0, v{T0}
            """)
        g.poll(loads, check)
        g.stamp(sb, VTS)
        if layer == 0:
            g("s_barrier")
        g(f"""
        ds_write2_b32 v{vQSW}, v{QG}, v{QG+2} offset0:0 offset1:1
        ds_write2_b32 v{vQSW}, v{QG+4}, v{QG+6} offset0:128 offset1:129
        s_waitcnt lgkmcnt(0)
        """)
        for j in range(8):
            g(f"ds_read_b128 v[{QBR+4*j}:{QBR+4*j+3}], v{vQSR} offset:{j*64}")
        for j in range(8):
            g(f"s_waitcnt lgkmcnt({7-j})")
            g(mfma(S0, KA + j*4, QBR + 4*j, None if j == 0 else S0))
            g(mfma(S1, KA + 32 + j*4, QBR + 4*j, None if j == 0 else S1))
        g.nop(8)
        g(f"""
        v_max3_f32 v{M2}, v{S0}, v{S0+1}, v{S0+2}
        v_max3_f32 v{M2}, v{M2}, v{S0+3}, v{S1}
        v_max3_f32 v{M2}, v{M2}, v{S1+1}, v{S1+2}
        v_max_f32 v{M2}, v{M2}, v{S1+3}
        v_mov_b32 v{T0}, v{M2}
        s_nop 1
        v_permlane16_swap_b32 v{M2}, v{T0}
        s_nop 1
        v_max_f32 v{M2}, v{M2}, v{T0}
        v_mov_b32 v{T0}, v{M2}
        s_nop 1
        v_permlane32_swap_b32 v{M2}, v{T0}
        s_nop 1
        v_max_f32 v{M2}, v{M2}, v{T0}
        v_mul_f32 v{M2}, s38, v{M2}
        """)
        for k in range(8):
            g(f"v_fma_f32 v{E+k}, v{S0+k}, s38, -v{M2}")
        for k in range(8):
            g(f"v_exp_f32 v{E+k}, v{E+k}")
        g(f"""
        v_mov_b32_dpp v{T0}, v{M2} row_ror:8 row_mask:0xf bank_mask:0xf
        v_cvt_pk_bf16_f32 v{P}, v{E}, v{E+1}
        v_cvt_pk_bf16_f32 v{P+1}, v{E+2}, v{E+3}
        v_cvt_pk_bf16_f32 v{P+2}, v{E+4}, v{E+5}
        v_cvt_pk_bf16_f32 v{P+3}, v{E+6}, v{E+7}
        v_cndmask_b32 v{M2}, v{T0}, v{M2}, s[36:37]
        s_mov_b64 s[42:43], s[40:41]
        """)
        def pm(v):
            b = PM[v & 1]
            for k in range(4):
                g(f"v_cndmask_b32 v{b+k}, 0, v{P+k}, s[42:43]")
            g("s_lshl_b64 s[42:43], s[42:43], 1")
        pm(0)
        g(mfma(DL, P, ONES, None))
        g("s_nop 0")
        for v in range(8):
            b = PM[v & 1]
            hf = v >> 2; tt = v & 3
            g(mfma(D0, b, VB + (hf*8 + tt)*4, None if v == 0 else D0))
            g(mfma(D1, b, VB + (hf*8 + tt + 4)*4, None if v == 0 else D1))
            if v < 7:
                pm(v + 1)
                g("s_nop 0")
        g(f"v_mov_b32 v{M2+1}, v{DL}")
        g.nop(8)
        g(f"""
        ds_write_b128 v{vOPW}, v[{D0}:{D0+3}]
        ds_write_b128 v{vOPW}, v[{D1}:{D1+3}] offset:16
        s_mov_b64 s[32:33], exec
        s_mov_b32 exec_lo, 1
        s_mov_b32 exec_hi, 1
        ds_write_b64 v{vMLW}, v[{M2}:{M2+1}]
        s_mov_b64 exec, s[32:33]
        s_waitcnt lgkmcnt(0)
        """)
        g.stamp(sb+1, VTS)
        g("s_barrier")
        for a in range(4):
            g(f"ds_read_b64 v[{CM+2*a}:{CM+2*a+1}], v{vMLR} offset:{a*16}")
        for a in range(4):
            g(f"ds_read_b64 v[{CO+2*a}:{CO+2*a+1}], v{vOPR} offset:{a*2048}")
        if layer == 0:
            g(f"""
            v_mov_b32 v{T0}, {L_TL}
            ds_read_b32 v{T1}, v{T0} offset:4
            """)
            g("s_waitcnt lgkmcnt(0)")
            g(f"v_readfirstlane_b32 s7, v{T1}")
        else:
            g("s_waitcnt lgkmcnt(4)")
        g(f"""
        v_max3_f32 v{M2}, v{CM}, v{CM+2}, v{CM+4}
        v_max_f32 v{M2}, v{M2}, v{CM+6}
        v_sub_f32 v{E}, v{CM}, v{M2}
        v_sub_f32 v{E+1}, v{CM+2}, v{M2}
        v_sub_f32 v{E+2}, v{CM+4}, v{M2}
        v_sub_f32 v{E+3}, v{CM+6}, v{M2}
        v_exp_f32 v{E}, v{E}
        v_exp_f32 v{E+1}, v{E+1}
        v_exp_f32 v{E+2}, v{E+2}
        v_exp_f32 v{E+3}, v{E+3}
        s_waitcnt lgkmcnt(0)
        v_mul_f32 v{T0}, v{E}, v{CO}
        v_mul_f32 v{T1}, v{E}, v{CO+1}
        v_mul_f32 v{M2+1}, v{E}, v{CM+1}
        """)
        for a in range(1, 4):
            g(f"""
            v_fmac_f32 v{T0}, v{E+a}, v{CO+2*a}
            v_fmac_f32 v{T1}, v{E+a}, v{CO+2*a+1}
            v_fmac_f32 v{M2+1}, v{E+a}, v{CM+2*a+1}
            """)
        g(f"""
        s_lshl_b32 s28, s4, 16
        s_lshl_b32 s29, s5, 11
        s_add_u32 s28, s28, s29
        s_add_u32 s28, s28, {WS_OB + layer*8*65536}
        """)
        g.pub(f"buffer_store_dwordx2 v[{T0}:{T1}], v{vPUB}, s[8:11], s28 offen")
        lab = g.label("noml")
        g(f"""
        s_bitcmp1_b32 s3, 0
        s_cbranch_scc1 {lab}
        s_lshl_b32 s28, s4, 9
        s_lshl_b32 s29, s5, 4
        s_add_u32 s28, s28, s29
        s_lshl_b32 s29, s3, 2
        s_add_u32 s28, s28, s29
        s_add_u32 s28, s28, {WS_MLB + layer*8*512}
        v_mov_b32 v{T2}, 0
        s_mov_b64 s[32:33], exec
        s_mov_b64 exec, 1
        """)
        g.pub(f"buffer_store_dwordx2 v[{M2}:{M2+1}], v{T2}, s[8:11], s28 offen")
        g(f"""
        s_mov_b64 exec, s[32:33]
        {lab}:
        """)
        g.stamp(sb+2, VTS)
        if layer == 0:
            g("s_barrier\ns_barrier\ns_barrier\ns_barrier")
    dump_ts(g, VTS)
    g("s_endpgm")


def dump_ts(g, vts):
    if not g.ts:
        return
    g(f"""
    s_mov_b64 exec, -1
    s_waitcnt lgkmcnt(0)
    v_mov_b32 v{vts}, 0
    """)
    for idx, r in g.tsmap.items():
        g(f"v_writelane_b32 v{vts}, s{r}, {idx}")
    g(f"""
    s_lshl_b32 s28, s2, 11
    s_lshl_b32 s29, s3, 8
    s_add_u32 s28, s28, s29
    s_add_u32 s28, s28, {WS_TS}
    v_lshlrev_b32 v1, 2, v0
    buffer_store_dword v{vts}, v1, s[8:11], s28 offen
    """)


WB = 16; WO = 72; WQB = 72; WD = 128; XA = 176
ACC = 232; CS = 236; CSQ = 237; vTRQ = 238; W_ONES = 240; XST = 244; SS1 = 248; SS2 = 249
U0, U1, U2, U3, U4 = 250, 251, 252, 253, 254
W_VTS = 255
vCOL, vXSW, vXA_, vXSt, vTR, vHA, vHM, vRB, vZW = 3, 4, 5, 6, 7, 8, 9, 12, 13
YP = 14
vZD, vZR = 10, 11
XR = 16
Y4 = 244


def gemv16(g, xs_off, WB, CS, out):
    g(f"""
    v_mov_b32 v{XST}, 0
    v_mov_b32 v{XST+1}, 0
    v_mov_b32 v{XST+2}, 0
    v_mov_b32 v{XST+3}, 0
    s_mov_b64 exec, s[36:37]
    ds_read_b128 v[{XST}:{XST+3}], v{vXSt} offset:{xs_off}
    s_mov_b64 exec, -1
    """)
    for j in range(14):
        g(f"ds_read_b128 v[{XA+4*j}:{XA+4*j+3}], v{vXA_} offset:{xs_off + j*64}")
    dpp = "row_mask:0xf bank_mask:0xf bound_ctrl:0"
    side = []
    side.append([f"v_dot2_f32_bf16 v{SS1}, v{XST}, v{W_ONES}, 0",
                 f"v_dot2_f32_bf16 v{SS2}, v{XST}, v{XST}, 0",
                 f"v_dot2_f32_bf16 v{SS1}, v{XST+1}, v{W_ONES}, v{SS1}"])
    side.append([f"v_dot2_f32_bf16 v{SS2}, v{XST+1}, v{XST+1}, v{SS2}",
                 f"v_dot2_f32_bf16 v{SS1}, v{XST+2}, v{W_ONES}, v{SS1}",
                 f"v_dot2_f32_bf16 v{SS2}, v{XST+2}, v{XST+2}, v{SS2}"])
    side.append([f"v_dot2_f32_bf16 v{SS1}, v{XST+3}, v{W_ONES}, v{SS1}",
                 f"v_dot2_f32_bf16 v{SS2}, v{XST+3}, v{XST+3}, v{SS2}",
                 "s_nop 2"])
    for sh in (1, 2, 4, 8):
        side.append([f"v_add_f32_dpp v{SS1}, v{SS1}, v{SS1} row_shr:{sh} {dpp}",
                     f"v_add_f32_dpp v{SS2}, v{SS2}, v{SS2} row_shr:{sh} {dpp}",
                     "s_nop 0"])
    side.append([f"v_add_f32_dpp v{SS1}, v{SS1}, v{SS1} row_bcast:15 row_mask:0xa bank_mask:0xf",
                 f"v_add_f32_dpp v{SS2}, v{SS2}, v{SS2} row_bcast:15 row_mask:0xa bank_mask:0xf",
                 "s_nop 0"])
    side.append([f"v_add_f32_dpp v{SS1}, v{SS1}, v{SS1} row_bcast:31 row_mask:0xc bank_mask:0xf",
                 f"v_add_f32_dpp v{SS2}, v{SS2}, v{SS2} row_bcast:31 row_mask:0xc bank_mask:0xf",
                 "s_nop 0"])
    side.append([f"v_readlane_b32 s46, v{SS1}, 63",
                 f"v_readlane_b32 s47, v{SS2}, 63",
                 f"v_mov_b32 v{U0}, s45",
                 "s_nop 0"])
    side.append([f"v_mul_f32 v{U1}, s46, v{U0}",
                 f"v_mul_f32 v{U2}, s47, v{U0}",
                 f"v_fma_f32 v{U2}, -v{U1}, v{U1}, v{U2}",
                 f"v_max_f32 v{U2}, 0, v{U2}"])
    if g.mimic:
        side.append([f"v_cvt_pk_bf16_f32 v{U3}, v{U1}, v{U2}",
                     f"v_lshlrev_b32 v{U1}, 16, v{U3}",
                     f"v_and_b32 v{U2}, 0xffff0000, v{U3}",
                     f"v_add_f32 v{U2}, s48, v{U2}"])
        side.append([f"v_cvt_pk_bf16_f32 v{U3}, v{U2}, v{U2}",
                     f"v_lshlrev_b32 v{U2}, 16, v{U3}",
                     f"v_sqrt_f32 v{U2}, v{U2}",
                     "s_nop 0"])
        side.append([f"v_cvt_pk_bf16_f32 v{U3}, v{U2}, v{U2}",
                     f"v_lshlrev_b32 v{U2}, 16, v{U3}",
                     f"v_rcp_f32 v{U2}, v{U2}"])
    else:
        side.append([f"v_add_f32 v{U2}, s48, v{U2}",
                     f"v_rsq_f32 v{U2}, v{U2}"])
    assert len(side) <= 14
    g("s_waitcnt lgkmcnt(14)")
    for j in range(14):
        g(f"s_waitcnt lgkmcnt({13-j})")
        g(mfma(ACC, XA + 4*j, WB + 4*j, None if j == 0 else ACC))
        if j < len(side):
            for s in side[j]:
                g(s)
    g.nop(8)
    g(f"""
    v_fma_f32 v{out}, -v{U1}, v{CS}, v{ACC}
    v_mul_f32 v{out}, v{out}, v{U2}
    """)


def stats_serial(g):
    dpp = "row_mask:0xf bank_mask:0xf bound_ctrl:0"
    g(f"v_dot2_f32_bf16 v{SS1}, v{XST}, v{W_ONES}, 0")
    g(f"v_dot2_f32_bf16 v{SS2}, v{XST}, v{XST}, 0")
    for k in range(1, 4):
        g(f"v_dot2_f32_bf16 v{SS1}, v{XST+k}, v{W_ONES}, v{SS1}")
        g(f"v_dot2_f32_bf16 v{SS2}, v{XST+k}, v{XST+k}, v{SS2}")
    g("s_nop 3")
    for sh in (1, 2, 4, 8):
        g(f"v_add_f32_dpp v{SS1}, v{SS1}, v{SS1} row_shr:{sh} {dpp}")
        g(f"v_add_f32_dpp v{SS2}, v{SS2}, v{SS2} row_shr:{sh} {dpp}")
        g("s_nop 1")
    for bc, rm in ((15, "0xa"), (31, "0xc")):
        g(f"v_add_f32_dpp v{SS1}, v{SS1}, v{SS1} row_bcast:{bc} row_mask:{rm} bank_mask:0xf")
        g(f"v_add_f32_dpp v{SS2}, v{SS2}, v{SS2} row_bcast:{bc} row_mask:{rm} bank_mask:0xf")
        g("s_nop 1")
    g(f"""
    v_readlane_b32 s46, v{SS1}, 63
    v_readlane_b32 s47, v{SS2}, 63
    v_mov_b32 v{U0}, s45
    s_nop 1
    v_mul_f32 v{U1}, s46, v{U0}
    v_mul_f32 v{U2}, s47, v{U0}
    v_fma_f32 v{U2}, -v{U1}, v{U1}, v{U2}
    v_max_f32 v{U2}, 0, v{U2}
    """)
    if g.mimic:
        g(f"""
        v_cvt_pk_bf16_f32 v{U3}, v{U1}, v{U2}
        v_lshlrev_b32 v{U1}, 16, v{U3}
        v_and_b32 v{U2}, 0xffff0000, v{U3}
        v_add_f32 v{U2}, s48, v{U2}
        v_cvt_pk_bf16_f32 v{U3}, v{U2}, v{U2}
        v_lshlrev_b32 v{U2}, 16, v{U3}
        v_sqrt_f32 v{U2}, v{U2}
        s_nop 0
        v_cvt_pk_bf16_f32 v{U3}, v{U2}, v{U2}
        v_lshlrev_b32 v{U2}, 16, v{U3}
        v_rcp_f32 v{U2}, v{U2}
        s_nop 0
        """)
    else:
        g(f"""
        v_add_f32 v{U2}, s48, v{U2}
        v_rsq_f32 v{U2}, v{U2}
        s_nop 0
        """)


def gemv16_plain(g, xs_off, wb, out):
    for j in range(14):
        g(f"ds_read_b128 v[{XA+4*j}:{XA+4*j+3}], v{vXA_} offset:{xs_off + j*64}")
    for j in range(14):
        g(f"s_waitcnt lgkmcnt({13-j})")
        g(mfma(ACC, XA + 4*j, wb + 4*j, None if j == 0 else ACC))
    g.nop(8)
    g(f"v_mov_b32 v{out}, v{ACC}")


def tr_reads(g, wb, vtr):
    for j in range(14):
        g(f"ds_read_b64_tr_b16 v[{wb+4*j}:{wb+4*j+1}], v{vtr} offset:{j*1024}")
        g(f"ds_read_b64_tr_b16 v[{wb+4*j+2}:{wb+4*j+3}], v{vtr} offset:{j*1024 + 128}")
        if j % 4 == 3:
            g("s_waitcnt lgkmcnt(0)")
    g("s_waitcnt lgkmcnt(0)")


def colsum(g, wb, cs):
    for j in range(14):
        g(mfma(ACC, W_ONES, wb + 4*j, None if j == 0 else ACC))
    g.nop(8)
    g(f"v_mov_b32 v{cs}, v{ACC}")


def load_WB(g, wb=WB, cs=CS, vtr=vTR):
    for j in range(14):
        g(f"ds_read_b64_tr_b16 v[{wb+4*j}:{wb+4*j+1}], v{vtr} offset:{j*1024}")
        g(f"ds_read_b64_tr_b16 v[{wb+4*j+2}:{wb+4*j+3}], v{vtr} offset:{j*1024 + 128}")
        if j % 4 == 3:
            g("s_waitcnt lgkmcnt(0)")
    g("s_waitcnt lgkmcnt(0)")
    for j in range(14):
        g(mfma(ACC, W_ONES, wb + 4*j, None if j == 0 else ACC))
    g.nop(8)
    g(f"v_mov_b32 v{cs}, v{ACC}")


def q_stage(g, layer, xs_idx):
    if layer == 0:
        gemv16_plain(g, L_XS + xs_idx*1024, WQB, U4)
    else:
        gemv16(g, L_XS + xs_idx*1024, WQB, CSQ, U4)
    g(f"""
    s_nop 1
    v_mov_b32_dpp v{U3}, v{U4} quad_perm:[1,0,3,2] row_mask:0xf bank_mask:0xf
    v_mov_b32 v{YP+1}, s6
    v_cvt_pk_bf16_f32 v{YP}, v{U4}, v{U3}
    v_lshlrev_b32 v{U0}, 2, v0
    s_lshl_b32 s28, s4, 11
    s_lshl_b32 s29, s40, 6
    s_add_u32 s28, s28, s29
    s_add_u32 s28, s28, {WS_QB + layer*8*2048}
    s_mov_b64 exec, 0x5555
    """)
    st = f"buffer_store_dwordx2 v[{YP}:{YP+1}], v{U0}, s[8:11], s28 offen"
    if layer == 0:
        g(st + " sc1")
    else:
        g.pub(st)
    g("s_mov_b64 exec, -1")


def reducer(g, stage, nprod):
    lab = g.label("nored")
    g(f"""
    s_cmp_ge_u32 s5, 14
    s_cbranch_scc1 {lab}
    s_lshl_b32 s28, s4, 16
    s_lshl_b32 s29, s5, 7
    s_add_u32 s28, s28, s29
    s_add_u32 s28, s28, {WS_YB + stage*8*65536}
    s_add_u32 s29, s28, 16384
    s_add_u32 s30, s28, 32768
    s_add_u32 s31, s28, 49152
    """)
    R = XA
    if nprod == 28:
        for k in range(4):
            g(f"v_mov_b32 v{R+12+k}, 0")
    def loads():
        for u in range(2 if nprod == 16 else 3):
            g(f"buffer_load_dwordx4 v[{R+4*u}:{R+4*u+3}], v{vRB}, s[8:11], s{28+u} offen sc1")
        if nprod == 28:
            g("s_mov_b32 exec_lo, 0x00ff00ff\ns_mov_b32 exec_hi, 0x00ff00ff")
            g(f"buffer_load_dwordx4 v[{R+12}:{R+15}], v{vRB}, s[8:11], s31 offen sc1")
            g("s_mov_b64 exec, -1")
    def check():
        g.sentinel_check(range(R, R + (8 if nprod == 16 else 16)), U0)
    g.poll(loads, check)
    g.stamp(24 + stage, W_VTS, 3)
    for k in range(4):
        g(f"v_add_f32 v{R+k}, v{R+k}, v{R+4+k}")
        if nprod == 28:
            g(f"v_add_f32 v{R+8+k}, v{R+8+k}, v{R+12+k}")
    if nprod == 28:
        for k in range(4):
            g(f"v_add_f32 v{R+k}, v{R+k}, v{R+8+k}")
    g("s_nop 0")
    for sh in (2, 4, 8):
        for k in range(4):
            g(f"v_add_f32_dpp v{R+k}, v{R+k}, v{R+k} row_ror:{sh} row_mask:0xf bank_mask:0xf")
    g(f"""
    s_lshl_b32 s28, s4, 7
    s_lshl_b32 s29, s5, 10
    s_add_u32 s28, s28, s29
    s_add_u32 s28, s28, {WS_ZB + stage*8*16384}
    buffer_store_dwordx4 v[{R}:{R+3}], v{vZD}, s[8:11], s28 offen sc1
    s_lshl_b32 s28, s4, 14
    s_add_u32 s28, s28, s29
    s_add_u32 s28, s28, {WS_ZB + stage*8*16384}
    """)
    if stage == 3:
        g(f"""
        s_cmp_lg_u32 s4, 0
        s_cbranch_scc1 {lab}
        """)
    R2 = XA + 16
    def loads2():
        g(f"buffer_load_dwordx4 v[{R2}:{R2+3}], v{vZR}, s[8:11], s28 offen sc1")
    def check2():
        g.sentinel_check(range(R2, R2+4), U0)
    g.poll(loads2, check2)
    for sh in (2, 4, 8):
        for k in range(4):
            g(f"v_add_f32_dpp v{R2+k}, v{R2+k}, v{R2+k} row_ror:{sh} row_mask:0xf bank_mask:0xf")
    if g.mimic:
        g(f"""
        v_cvt_pk_bf16_f32 v{U0}, v{R2}, v{R2+1}
        v_cvt_pk_bf16_f32 v{U1}, v{R2+2}, v{R2+3}
        v_lshlrev_b32 v{R2}, 16, v{U0}
        v_and_b32 v{R2+1}, 0xffff0000, v{U0}
        v_lshlrev_b32 v{R2+2}, 16, v{U1}
        v_and_b32 v{R2+3}, 0xffff0000, v{U1}
        """)
    g(f"""
    v_pk_add_f32 v[{XR}:{XR+1}], v[{XR}:{XR+1}], v[{R2}:{R2+1}]
    v_pk_add_f32 v[{XR+2}:{XR+3}], v[{XR+2}:{XR+3}], v[{R2+2}:{R2+3}]
    v_cvt_pk_bf16_f32 v{YP}, v{XR}, v{XR+1}
    v_cvt_pk_bf16_f32 v{YP+1}, v{XR+2}, v{XR+3}
    v_lshrrev_b32 v{U0}, 1, v{vZW}
    s_mov_b32 exec_lo, 0x00030003
    s_mov_b32 exec_hi, 0x00030003
    """)
    if stage < 3:
        g(f"""
        s_lshl_b32 s28, s4, 10
        s_lshl_b32 s29, s5, 6
        s_add_u32 s28, s28, s29
        s_add_u32 s28, s28, {WS_XB + stage*8*1024}
        """)
        g.pub(f"buffer_store_dwordx2 v[{YP}:{YP+1}], v{U0}, s[8:11], s28 offen")
        g(f"""
        s_mov_b64 exec, -1
        v_lshlrev_b32 v{XR}, 16, v{YP}
        v_and_b32 v{XR+1}, 0xffff0000, v{YP}
        v_lshlrev_b32 v{XR+2}, 16, v{YP+1}
        v_and_b32 v{XR+3}, 0xffff0000, v{YP+1}
        """)
    else:
        g(f"""
        s_lshl_b32 s28, s5, 6
        buffer_store_dwordx2 v[{YP}:{YP+1}], v{U0}, s[20:23], s28 offen
        s_mov_b64 exec, -1
        s_cmp_lg_u32 s2, 0
        s_cbranch_scc1 {lab}
        s_add_u32 s50, s50, 1
        v_mov_b32 v{U1}, s50
        v_mov_b32 v{U0}, 0
        s_mov_b64 exec, 1
        buffer_store_dword v{U1}, v{U0}, s[8:11], 0 offen sc1
        s_mov_b64 exec, -1
        """)
    g(f"{lab}:")


def x_gather(g, stage, xs_idx):
    R = XA
    g(f"""
    s_lshl_b32 s28, s4, 10
    s_add_u32 s28, s28, {WS_XB + stage*8*1024}
    s_mov_b64 exec, s[36:37]
    """)
    def loads():
        g(f"buffer_load_dwordx4 v[{R}:{R+3}], v{vXSt}, s[8:11], s28 offen sc1")
    def check():
        g.sentinel_check(range(R, R+4), U0)
    g.poll(loads, check)
    g(f"""
    ds_write_b128 v{vXSt}, v[{R}:{R+3}] offset:{L_XS + xs_idx*1024}
    s_mov_b64 exec, -1
    s_waitcnt lgkmcnt(0)
    """)


def pub_y(g, stage):
    g(f"""
    s_lshl_b32 s28, s4, 16
    s_lshl_b32 s29, s5, 11
    s_add_u32 s28, s28, s29
    s_add_u32 s28, s28, {WS_YB + stage*8*65536}
    s_mov_b64 exec, s[36:37]
    """)
    g.pub(f"buffer_store_dwordx2 v[{YP}:{YP+1}], v{vCOL}, s[8:11], s28 offen")
    g("s_mov_b64 exec, -1")


def hop_a(g, layer):
    R = XA
    g(f"""
    s_lshl_b32 s28, s4, 16
    s_lshl_b32 s29, s33, 6
    s_add_u32 s28, s28, s29
    s_add_u32 s28, s28, {WS_OB + layer*8*65536}
    s_add_u32 s29, s28, 32768
    s_lshl_b32 s30, s4, 9
    s_lshr_b32 s31, s33, 4
    s_lshl_b32 s31, s31, 3
    s_add_u32 s30, s30, s31
    s_add_u32 s30, s30, {WS_MLB + layer*8*512}
    """)
    def loads():
        g(f"buffer_load_dwordx2 v[{R+8}:{R+9}], v{vHM}, s[8:11], s30 offen sc1")
        g(f"buffer_load_dwordx2 v[{R+10}:{R+11}], v{vHM}, s[8:11], s30 offen offset:256 sc1")
        g(f"buffer_load_dwordx4 v[{R}:{R+3}], v{vHA}, s[8:11], s28 offen sc1")
        g(f"buffer_load_dwordx4 v[{R+4}:{R+7}], v{vHA}, s[8:11], s29 offen sc1")
    def check():
        g.sentinel_check(range(R, R+12), U0)
    g.poll(loads, check)
    g(f"v_max_f32 v{U0}, v{R+8}, v{R+10}")
    for sh in (1, 2, 4, 8):
        g("s_nop 1")
        g(f"v_max_f32_dpp v{U0}, v{U0}, v{U0} row_ror:{sh} row_mask:0xf bank_mask:0xf")
    g(f"""
    v_sub_f32 v{U1}, v{R+8}, v{U0}
    v_sub_f32 v{U2}, v{R+10}, v{U0}
    v_exp_f32 v{U1}, v{U1}
    v_exp_f32 v{U2}, v{U2}
    s_nop 0
    v_mul_f32 v{U3}, v{U1}, v{R+9}
    v_mul_f32 v{R}, v{U1}, v{R}
    v_mul_f32 v{R+1}, v{U1}, v{R+1}
    v_mul_f32 v{R+2}, v{U1}, v{R+2}
    v_mul_f32 v{R+3}, v{U1}, v{R+3}
    v_fmac_f32 v{U3}, v{U2}, v{R+11}
    v_fmac_f32 v{R}, v{U2}, v{R+4}
    v_fmac_f32 v{R+1}, v{U2}, v{R+5}
    v_fmac_f32 v{R+2}, v{U2}, v{R+6}
    v_fmac_f32 v{R+3}, v{U2}, v{R+7}
    """)
    for sh in (1, 2, 4, 8):
        for r in (U3, R, R+1, R+2, R+3):
            g(f"v_add_f32_dpp v{r}, v{r}, v{r} row_ror:{sh} row_mask:0xf bank_mask:0xf")
    g(f"""
    v_rcp_f32 v{U3}, v{U3}
    s_lshl_b32 s28, s35, 6
    v_lshl_add_u32 v{U0}, v2, 4, s28
    v_mul_f32 v{R}, v{U3}, v{R}
    v_mul_f32 v{R+1}, v{U3}, v{R+1}
    v_mul_f32 v{R+2}, v{U3}, v{R+2}
    v_mul_f32 v{R+3}, v{U3}, v{R+3}
    """)
    if g.mimic:
        g(f"""
        v_cvt_pk_bf16_f32 v{U1}, v{R}, v{R+1}
        v_cvt_pk_bf16_f32 v{U2}, v{R+2}, v{R+3}
        v_lshlrev_b32 v{R}, 16, v{U1}
        v_and_b32 v{R+1}, 0xffff0000, v{U1}
        v_lshlrev_b32 v{R+2}, 16, v{U2}
        v_and_b32 v{R+3}, 0xffff0000, v{U2}
        """)
    g(f"""
    s_mov_b32 exec_lo, 0x00010001
    s_mov_b32 exec_hi, 0x00010001
    ds_write_b128 v{U0}, v[{R}:{R+3}] offset:{L_OS}
    s_mov_b64 exec, -1
    s_waitcnt lgkmcnt(0)
    """)


TCALC = """
s_waitcnt lgkmcnt(0)
s_mul_i32 s6, s50, 0x9E3779B1
s_add_u32 s6, s6, 0x7F4A7C15
"""


def addr_setup(g):
    g(f"""
    v_lshlrev_b32 v{vXA_}, 4, v2
    v_lshrrev_b32 v{U0}, 2, v1
    v_lshl_add_u32 v{U0}, v2, 3, v{U0}
    v_lshlrev_b32 v{vTR}, 5, v{U0}
    v_and_b32 v{U0}, 3, v1
    v_lshl_add_u32 v{vTR}, v{U0}, 3, v{vTR}
    s_mul_i32 s28, s32, 14336
    s_add_u32 s28, s28, {L_IMG}
    v_add_u32 v{vTR}, s28, v{vTR}
    v_lshlrev_b32 v{vHA}, 11, v1
    v_lshl_add_u32 v{vHA}, v2, 4, v{vHA}
    v_lshlrev_b32 v{vHM}, 4, v1
    v_and_b32 v{U0}, 1, v1
    v_lshl_add_u32 v{U0}, v2, 1, v{U0}
    v_lshlrev_b32 v{vZW}, 4, v{U0}
    v_lshrrev_b32 v{U1}, 1, v1
    v_lshl_add_u32 v{vRB}, v{U1}, 11, v{vZW}
    v_lshl_add_u32 v{vZD}, v{U1}, 14, v{vZW}
    v_lshl_add_u32 v{vZR}, v{U1}, 7, v{vZW}
    v_mov_b32 v{W_ONES}, 0x3f803f80
    v_mov_b32 v{W_ONES+1}, 0x3f803f80
    v_mov_b32 v{W_ONES+2}, 0x3f803f80
    v_mov_b32 v{W_ONES+3}, 0x3f803f80
    s_mov_b32 s45, {f32hex(1.0/448.0)}
    s_mov_b32 s48, {f32hex(1e-5)}
    s_mov_b32 s49, {f32hex(-LOG2E)}
    """)


def clears(g, role):
    g(f"""
    v_mov_b32 v{XA}, -1
    v_mov_b32 v{XA+1}, -1
    v_mov_b32 v{XA+2}, -1
    v_mov_b32 v{XA+3}, -1
    s_lshl_b32 s28, s4, 16
    s_lshl_b32 s29, s5, 11
    s_add_u32 s28, s28, s29
    """)
    def st2k(sreg):
        g(f"buffer_store_dwordx4 v[{XA}:{XA+3}], v{vXSt}, s[8:11], {sreg} offen sc1")
        g(f"buffer_store_dwordx4 v[{XA}:{XA+3}], v{vXSt}, s[8:11], {sreg} offen offset:1024 sc1")
    for l in range(2):
        g(f"s_add_u32 s29, s28, {WS_OB + l*8*65536}")
        st2k("s29")
    if role == "R":
        for st in (0, 2):
            g(f"s_add_u32 s29, s28, {WS_YB + st*8*65536}")
            st2k("s29")
    else:
        ly = g.label("noy")
        g(f"""
        s_cmp_ge_u32 s5, 30
        s_cbranch_scc1 {ly}
        s_sub_u32 s30, s5, 16
        s_lshl_b32 s30, s30, 12
        s_lshl_b32 s31, s4, 16
        s_add_u32 s30, s30, s31
        """)
        for st in (1, 3):
            for t in range(2):
                g(f"s_add_u32 s29, s30, {WS_YB + st*8*65536 + t*2048}")
                st2k("s29")
        g(f"{ly}:")
    g(f"""
    s_lshl_b32 s28, s4, 9
    s_lshl_b32 s29, s5, 4
    s_add_u32 s28, s28, s29
    s_mov_b64 exec, 1
    """)
    for l in range(2):
        g(f"s_add_u32 s29, s28, {WS_MLB + l*8*512}")
        g(f"buffer_store_dwordx4 v[{XA}:{XA+3}], v{vXSt}, s[8:11], s29 offen sc1")
    if role == "R":
        lz = g.label("noz")
        g(f"""
        s_cmp_ge_u32 s5, 14
        s_cbranch_scc1 {lz}
        s_mov_b64 exec, -1
        v_lshrrev_b32 v{U0}, 3, v0
        v_lshlrev_b32 v{U0}, 14, v{U0}
        v_and_b32 v{U1}, 7, v0
        v_lshl_add_u32 v{U0}, v{U1}, 4, v{U0}
        s_lshl_b32 s28, s4, 7
        s_lshl_b32 s29, s5, 10
        s_add_u32 s28, s28, s29
        """)
        for st in range(4):
            g(f"s_add_u32 s29, s28, {WS_ZB + st*8*16384}")
            g(f"buffer_store_dwordx4 v[{XA}:{XA+3}], v{U0}, s[8:11], s29 offen sc1")
        g(f"""
        s_mov_b64 exec, 0xf
        s_lshl_b32 s28, s4, 10
        s_lshl_b32 s29, s5, 6
        s_add_u32 s28, s28, s29
        """)
        for st in range(3):
            g(f"s_add_u32 s29, s28, {WS_XB + st*8*1024}")
            g(f"buffer_store_dwordx4 v[{XA}:{XA+3}], v{vXSt}, s[8:11], s29 offen sc1")
        g(f"{lz}:")
    g("s_mov_b64 exec, -1")


def hello_pub(g):
    g(TCALC)
    g(f"""
    s_getreg_b32 s51, hwreg(HW_REG_XCC_ID)
    s_and_b32 s51, s51, 15
    s_or_b32 s51, s51, 0x100
    v_mov_b32 v{YP}, s51
    v_mov_b32 v{YP+1}, s6
    v_mov_b32 v{U0}, 0
    s_lshl_b32 s28, s2, 3
    s_add_u32 s28, s28, {WS_HB}
    s_waitcnt vmcnt(0)
    s_mov_b64 exec, 1
    buffer_store_dwordx2 v[{YP}:{YP+1}], v{U0}, s[8:11], s28 offen sc1
    s_mov_b64 exec, -1
    """)


def hello_poll(g):
    HR = XA
    g(f"s_movk_i32 s28, {WS_HB}")
    def loads():
        g(f"buffer_load_dwordx4 v[{HR}:{HR+3}], v{vXSt}, s[8:11], s28 offen sc1")
        g(f"buffer_load_dwordx4 v[{HR+4}:{HR+7}], v{vXSt}, s[8:11], s28 offen offset:1024 sc1")
    def check():
        g(f"""
        v_xor_b32 v{U0}, s6, v{HR+1}
        v_xor_b32 v{U1}, s6, v{HR+3}
        v_xor_b32 v{U2}, s6, v{HR+5}
        v_xor_b32 v{U3}, s6, v{HR+7}
        v_or3_b32 v{U0}, v{U0}, v{U1}, v{U2}
        v_or_b32 v{U0}, v{U0}, v{U3}
        v_cmp_ne_u32 vcc, 0, v{U0}
        """)
    g.poll(loads, check)
    g(f"""
    v_lshlrev_b32 v{U0}, 1, v0
    v_and_b32 v{U0}, 7, v{U0}
    v_or_b32 v{U1}, 1, v{U0}
    v_cmp_eq_u32 s[52:53], s4, v{U0}
    v_cmp_eq_u32 s[54:55], s4, v{U1}
    v_cmp_ne_u32 s[56:57], s51, v{HR}
    v_cmp_ne_u32 s[58:59], s51, v{HR+4}
    v_cmp_ne_u32 s[60:61], s51, v{HR+2}
    v_cmp_ne_u32 s[62:63], s51, v{HR+6}
    s_or_b64 s[56:57], s[56:57], s[58:59]
    s_or_b64 s[60:61], s[60:61], s[62:63]
    s_and_b64 s[56:57], s[56:57], s[52:53]
    s_and_b64 s[60:61], s[60:61], s[54:55]
    s_or_b64 s[56:57], s[56:57], s[60:61]
    s_cmp_eq_u64 s[56:57], 0
    s_cselect_b32 s7, 1, 0
    v_mov_b32 v{U0}, {L_TL}
    v_mov_b32 v{U1}, s7
    ds_write_b32 v{U0}, v{U1} offset:4
    s_waitcnt lgkmcnt(0)
    """)


def read_fast(g):
    g(f"""
    v_mov_b32 v{U0}, {L_TL}
    ds_read_b32 v{U1}, v{U0} offset:4
    s_waitcnt lgkmcnt(0)
    v_readfirstlane_b32 s7, v{U1}
    """)


def only(g, w, fn):
    lab = g.label("only")
    g(f"""
    s_cmp_lg_u32 s35, {w}
    s_cbranch_scc1 {lab}
    """)
    fn()
    g(f"{lab}:")


def w_wave_R(g, lend):
    g("; ---------------- W wave, role R (wo, hop A, reducers) ----------------")
    l3 = g.label("r3"); lj = g.label("rj")
    g(f"""
    s_and_b32 s32, s35, 1
    s_lshl_b32 s33, s5, 1
    s_add_u32 s33, s33, s32
    s_cmp_eq_u32 s35, 3
    s_cbranch_scc1 {l3}
    s_barrier
    """)
    addr_setup(g)
    g(f"""
    s_lshl_b32 s28, s5, 6
    v_lshrrev_b32 v{U0}, 1, v{vZW}
    buffer_load_dwordx2 v[{XR+2}:{XR+3}], v{U0}, s[12:15], s28 offen
    """)
    lw2 = g.label("rw2")
    g(f"""
    s_cmp_eq_u32 s35, 2
    s_cbranch_scc1 {lw2}
    s_lshl_b32 s28, s4, 9
    s_lshl_b32 s29, s5, 5
    s_add_u32 s28, s28, s29
    s_lshl_b32 s29, s35, 4
    s_add_u32 s28, s28, s29
    s_mul_i32 s28, s28, 896
    """)
    srd_off(g, 24, 72, 73, 28, 16*896)
    g(f"""
    s_mul_i32 s28, s35, {16*896}
    s_add_u32 s28, s28, {L_WO}
    v_add_u32 v{U4}, s28, v{vXSt}
    s_mov_b64 exec, s[36:37]
    """)
    for r in range(16):
        g(f"s_movk_i32 s28, {r*896}")
        if g.thr[2]: g(f"s_waitcnt vmcnt({g.thr[2]-1})")
        g(f"buffer_load_dwordx4 v[{WO+4*r}:{WO+4*r+3}], v{vXSt}, s[24:27], s28 offen nt")
    for r in range(16):
        g(f"s_waitcnt vmcnt({15-r})")
        g(f"ds_write_b128 v{U4}, v[{WO+4*r}:{WO+4*r+3}] offset:{r*896}")
        if r % 8 == 7: g("s_waitcnt lgkmcnt(0)")
    g(f"""
    s_mov_b64 exec, -1
    {lw2}:
    s_waitcnt vmcnt(0)
    v_lshlrev_b32 v{XR}, 16, v{XR+2}
    v_and_b32 v{XR+1}, 0xffff0000, v{XR+2}
    v_lshlrev_b32 v{XR+2}, 16, v{XR+3}
    v_and_b32 v{XR+3}, 0xffff0000, v{XR+3}
    s_branch {lj}
    {l3}:
    """)
    clears(g, "R")
    g("s_barrier")
    addr_setup(g)
    hello_pub(g)
    g(f"{lj}:")
    g("s_waitcnt lgkmcnt(0)")
    g.stamp(4, W_VTS)
    g("s_barrier")
    g.ts_zero_late()
    only(g, 3, lambda: hello_poll(g))
    g(f"v_add_u32 v{U4}, {L_WO}, v{vXSW}")
    for r in range(32):
        g(f"ds_read_b32 v{WO+2*r+1}, v{U4} offset:{r*896}")
        if r % 8 == 7: g("s_waitcnt lgkmcnt(0)")
    for r in range(32):
        g(f"v_lshlrev_b32 v{WO+2*r}, 16, v{WO+2*r+1}")
        g(f"v_and_b32 v{WO+2*r+1}, 0xffff0000, v{WO+2*r+1}")
    for layer in range(2):
        sb = 5 + layer*8
        g.stamp(sb, W_VTS)
        g("s_barrier")
        if layer == 0:
            read_fast(g)
        la = g.label("noa")
        g(f"""
        s_cmp_ge_u32 s35, 2
        s_cbranch_scc1 {la}
        """)
        hop_a(g, layer)
        g(f"{la}:")
        g.stamp(sb+1, W_VTS)
        g("s_barrier")
        g(f"v_mov_b32 v{U0}, {L_OS}")
        for k in range(8):
            g(f"ds_read_b128 v[{XA+4*k}:{XA+4*k+3}], v{U0} offset:{k*16}")
        accs = [YP, U2, XA+32, XA+34]
        for k in range(8):
            g(f"s_waitcnt lgkmcnt({7-k})")
            for r in range(4*k, 4*k+4):
                src = XA + (r & ~1)
                dst = accs[r & 3]
                sel = "op_sel:[1,0,0] op_sel_hi:[1,1,1]" if r & 1 else "op_sel_hi:[0,1,1]"
                if r < 4:
                    sel2 = "op_sel:[1,0] op_sel_hi:[1,1]" if r & 1 else "op_sel_hi:[0,1]"
                    g(f"v_pk_mul_f32 v[{dst}:{dst+1}], v[{src}:{src+1}], v[{WO+2*r}:{WO+2*r+1}] {sel2}")
                else:
                    g(f"v_pk_fma_f32 v[{dst}:{dst+1}], v[{src}:{src+1}], v[{WO+2*r}:{WO+2*r+1}], v[{dst}:{dst+1}] {sel}")
        g(f"""
        v_pk_add_f32 v[{YP}:{YP+1}], v[{YP}:{YP+1}], v[{U2}:{U2+1}]
        v_pk_add_f32 v[{XA+32}:{XA+33}], v[{XA+32}:{XA+33}], v[{XA+34}:{XA+35}]
        v_pk_add_f32 v[{YP}:{YP+1}], v[{YP}:{YP+1}], v[{XA+32}:{XA+33}]
        """)
        pub_y(g, 2*layer)
        g.stamp(sb+2, W_VTS)
        if layer == 0:
            g("s_barrier\ns_barrier")
        def red():
            reducer(g, 2*layer, 16)
            g.stamp(sb+3, W_VTS)
            reducer(g, 2*layer + 1, 28)
            g.stamp(sb+4, W_VTS)
        only(g, 2, red)
        if layer == 0:
            g("s_barrier")
    g(f"s_branch {lend}")


def w_wave_F(g, lend):
    g("; ---------------- W wave, role F (wq/q, FFN) ----------------")
    g(f"""
    s_and_b32 s32, s35, 1
    s_lshr_b32 s33, s35, 1
    s_sub_u32 s30, s5, 16
    s_lshl_b32 s40, s30, 1
    s_add_u32 s40, s40, s32
    """)
    l23 = g.label("f23"); lj = g.label("fj")
    g(f"""
    s_cmp_ge_u32 s35, 2
    s_cbranch_scc1 {l23}
    """)
    g(f"""
    v_mov_b32 v{XST}, 0
    v_mov_b32 v{XST+1}, 0
    v_mov_b32 v{XST+2}, 0
    v_mov_b32 v{XST+3}, 0
    s_mov_b64 exec, s[36:37]
    buffer_load_dwordx4 v[{XST}:{XST+3}], v{vXSt}, s[12:15], 0 offen
    s_mov_b64 exec, -1
    s_lshl_b32 s28, s4, 10
    s_lshl_b32 s29, s30, 6
    s_add_u32 s28, s28, s29
    s_mul_i32 s29, s35, {224*8192}
    s_add_u32 s28, s28, s29
    s_sub_u32 s29, {448*8192}, s28
    """)
    srd_off(g, 16, 70, 71, 28, "s29")
    g(f"""
    v_lshrrev_b32 v{U2}, 2, v0
    v_lshlrev_b32 v{U0}, 13, v{U2}
    v_and_b32 v{U1}, 3, v0
    v_lshl_add_u32 v{U0}, v{U1}, 4, v{U0}
    """)
    for jj in range(14):
        g(f"s_mov_b32 s28, {jj*16*8192}")
        g(f"buffer_load_dwordx4 v[{XA+4*jj}:{XA+4*jj+3}], v{U0}, s[16:19], s28 offen nt")
    g("s_barrier")
    g(f"""
    v_lshrrev_b32 v{U3}, 1, v{U1}
    v_and_b32 v{U1}, 1, v{U1}
    s_movk_i32 s28, 14336
    v_mul_lo_u32 v{U3}, v{U3}, s28
    v_lshl_add_u32 v{U3}, v{U2}, 5, v{U3}
    v_lshl_add_u32 v{U3}, v{U1}, 4, v{U3}
    s_mul_i32 s28, s35, {224*32}
    s_add_u32 s28, s28, {L_WO}
    v_add_u32 v{U4}, s28, v{U3}
    """)
    addr_setup(g)
    g(f"""
    v_add_u32 v{vTRQ}, {L_WO - L_IMG}, v{vTR}
    s_waitcnt vmcnt(14)
    """)
    stats_serial(g)
    for k in range(4):
        g(f"""
        v_lshlrev_b32 v{SS1}, 16, v{XST+k}
        v_and_b32 v{SS2}, 0xffff0000, v{XST+k}
        v_sub_f32 v{SS1}, v{SS1}, v{U1}
        v_sub_f32 v{SS2}, v{SS2}, v{U1}
        """)
        if g.mimic:
            g(f"""
            v_cvt_pk_bf16_f32 v{U3}, v{SS1}, v{SS2}
            v_lshlrev_b32 v{SS1}, 16, v{U3}
            v_and_b32 v{SS2}, 0xffff0000, v{U3}
            """)
        g(f"""
        v_mul_f32 v{SS1}, v{SS1}, v{U2}
        v_mul_f32 v{SS2}, v{SS2}, v{U2}
        v_cvt_pk_bf16_f32 v{XST+k}, v{SS1}, v{SS2}
        """)
    g(f"""
    s_mov_b64 exec, s[36:37]
    ds_write_b128 v{vXSt}, v[{XST}:{XST+3}] offset:{L_XS}
    s_mov_b64 exec, -1
    """)
    for jj in range(14):
        g(f"s_waitcnt vmcnt({13-jj})")
        g(f"ds_write_b128 v{U4}, v[{XA+4*jj}:{XA+4*jj+3}] offset:{jj*512}")
        if jj % 8 == 7: g("s_waitcnt lgkmcnt(0)")
    g(TCALC)
    lsp = g.label("spin"); lsd = g.label("spind")
    g(f"""
    s_lshl_b32 s28, s35, 2
    s_add_u32 s28, s28, {L_TL + 8}
    v_mov_b32 v{U0}, s28
    v_mov_b32 v{U1}, s6
    ds_write_b32 v{U0}, v{U1}
    v_xor_b32 v{U0}, 4, v{U0}
    s_mov_b32 s34, 0
    {lsp}:
    ds_read_b32 v{U1}, v{U0}
    s_waitcnt lgkmcnt(0)
    v_readfirstlane_b32 s28, v{U1}
    s_cmp_eq_u32 s28, s6
    s_cbranch_scc1 {lsd}
    s_add_u32 s34, s34, 1
    s_cmp_lt_u32 s34, {POLL_LIMIT*8}
    s_cbranch_scc1 {lsp}
    {lsd}:
    """)
    tr_reads(g, WQB, vTRQ)
    q_stage(g, 0, 0)
    g.stamp(3, W_VTS)
    colsum(g, WQB, CSQ)

    g(f"s_branch {lj}")
    g(f"{l23}:")
    only(g, 3, lambda: clears(g, "F"))
    g("s_barrier")
    addr_setup(g)
    only(g, 3, lambda: hello_pub(g))
    g(f"{lj}:")
    g(f"""
    s_sub_u32 s30, s5, 16
    s_mul_i32 s28, s4, 448
    s_lshl_b32 s29, s30, 5
    s_add_u32 s28, s28, s29
    s_sub_u32 s29, {448*3584}, s28
    s_cmp_lt_u32 s5, 30
    s_cselect_b32 s28, s28, 0
    s_cselect_b32 s29, s29, 0
    s_cmp_eq_u32 s32, 0
    s_cselect_b32 s16, s76, s78
    s_cselect_b32 s17, s77, s79
    s_add_u32 s16, s16, s28
    s_addc_u32 s17, s17, 0
    s_mov_b32 s18, s29
    s_mov_b32 s19, 0x00020000
    s_mul_i32 s28, s4, 224
    s_lshl_b32 s29, s30, 4
    s_add_u32 s28, s28, s29
    s_lshl_b32 s29, s32, 3
    s_add_u32 s28, s28, s29
    s_mul_i32 s28, s28, 896
    s_cmp_lt_u32 s5, 30
    s_cselect_b32 s28, s28, 0
    s_cselect_b32 s29, {8*896}, 0
    """)
    srd_off(g, 24, 80, 81, 28, "s29")
    g(f"""
    v_lshrrev_b32 v{U0}, 1, v0
    s_mul_i32 s28, s33, 224
    v_add_u32 v{U0}, s28, v{U0}
    s_movk_i32 s28, 3584
    v_mul_lo_u32 v{vHA}, v{U0}, s28
    v_and_b32 v{U1}, 1, v0
    v_lshl_add_u32 v{vHA}, v{U1}, 4, v{vHA}
    s_movk_i32 s28, 14336
    v_mul_lo_u32 v{vHM}, v{U1}, s28
    v_lshl_add_u32 v{vHM}, v{U0}, 5, v{vHM}
    s_lshl_b32 s28, s32, 4
    s_add_u32 s28, s28, {L_IMG}
    v_add_u32 v{vHM}, s28, v{vHM}
    s_mul_i32 s28, s33, 448
    v_lshlrev_b32 v{vXSW}, 3, v0
    v_add_u32 v{vXSW}, s28, v{vXSW}
    v_lshlrev_b32 v{vCOL}, 1, v{vXSW}
    s_waitcnt lgkmcnt(0)
    """)
    g.stamp(4, W_VTS)
    g("s_barrier")
    g.ts_zero_late()
    only(g, 3, lambda: hello_poll(g))
    def ffn_loads(lo, hi, thr):
        for k in range(lo, hi):
            if thr: g(f"s_waitcnt vmcnt({thr-1})")
            if k < 7:
                g(f"s_mov_b32 s28, {k*32*3584}")
                g(f"buffer_load_dwordx4 v[{XA+4*k}:{XA+4*k+3}], v{vHA}, s[16:19], s28 offen nt")
            else:
                f = k - 7
                g("s_mov_b64 exec, s[36:37]")
                g(f"s_movk_i32 s28, {f*896}")
                g(f"buffer_load_dwordx2 v[{WD+4*f+2}:{WD+4*f+3}], v{vXSW}, s[24:27], s28 offen nt")
                g("s_mov_b64 exec, -1")
    ffn_loads(0, g.early, 0)
    for layer in range(2):
        sb = 5 + layer*8
        g.stamp(sb, W_VTS)
        g("s_barrier")
        if layer == 0:
            read_fast(g)
            g("s_barrier")
            ffn_loads(g.early, 15, 0)
            for jj in range(7):
                g(f"s_waitcnt vmcnt({14-jj})")
                g(f"ds_write_b128 v{vHM}, v[{XA+4*jj}:{XA+4*jj+3}] offset:{jj*1024}")
            g("s_waitcnt vmcnt(0)")
            for f in range(8):
                r = WD + 4*f
                g(f"""
                v_lshlrev_b32 v{r}, 16, v{r+2}
                v_and_b32 v{r+1}, 0xffff0000, v{r+2}
                v_lshlrev_b32 v{r+2}, 16, v{r+3}
                v_and_b32 v{r+3}, 0xffff0000, v{r+3}
                """)
            g("s_waitcnt lgkmcnt(0)")
            g.stamp(sb+1, W_VTS)
            g("s_barrier")
            load_WB(g)
        else:
            g(f"""
            s_cmp_ge_u32 s5, 30
            s_cbranch_scc1 {lend}
            """)
        lx = g.label("nox")
        g(f"""
        s_cmp_ge_u32 s5, 30
        s_cbranch_scc1 {lx}
        """)
        only(g, 2, lambda: x_gather(g, 2*layer, 2*layer + 1))
        g(f"{lx}:")
        g.stamp(sb+2, W_VTS)
        g("s_barrier")
        lf = g.label("noffn")
        g(f"""
        s_cmp_ge_u32 s5, 30
        s_cbranch_scc1 {lf}
        """)
        gemv16(g, L_XS + (2*layer+1)*1024, WB, CS, U4)
        if g.mimic:
            g(f"""
            v_cvt_pk_bf16_f32 v{U3}, v{U4}, v{U4}
            v_lshlrev_b32 v{U4}, 16, v{U3}
            """)
        g(f"""
        v_mul_f32 v{U0}, s49, v{U4}
        v_exp_f32 v{U0}, v{U0}
        v_mov_b32_dpp v{U3}, v{U4} row_ror:8 row_mask:0xf bank_mask:0xf
        v_add_f32 v{U0}, 1.0, v{U0}
        v_rcp_f32 v{U0}, v{U0}
        s_nop 0
        v_mul_f32 v{U0}, v{U0}, v{U4}
        """)
        if g.mimic:
            g(f"""
            v_cvt_pk_bf16_f32 v{U1}, v{U0}, v{U0}
            v_lshlrev_b32 v{U0}, 16, v{U1}
            """)
        g(f"v_mul_f32 v{U0}, v{U0}, v{U3}")
        if g.mimic:
            g(f"""
            v_cvt_pk_bf16_f32 v{U1}, v{U0}, v{U0}
            v_lshlrev_b32 v{U0}, 16, v{U1}
            """)
        g(f"""
        v_mov_b32 v{Y4}, 0
        v_mov_b32 v{Y4+1}, 0
        v_mov_b32 v{Y4+2}, 0
        v_mov_b32 v{Y4+3}, 0
        """)
        for f in range(8):
            for c in range(4):
                g(f"v_fmac_f32_dpp v{Y4+c}, v{U0}, v{WD+4*f+c} row_newbcast:{f} row_mask:0xf bank_mask:0xf")
        g(f"""
        s_lshl_b32 s28, s40, 11
        s_lshl_b32 s29, s4, 16
        s_add_u32 s28, s28, s29
        s_add_u32 s28, s28, {WS_YB + (2*layer+1)*8*65536}
        s_mov_b64 exec, s[36:37]
        """)
        g.pub(f"buffer_store_dwordx4 v[{Y4}:{Y4+3}], v{vCOL}, s[8:11], s28 offen")
        g("s_mov_b64 exec, -1")
        g(f"{lf}:")
        g.stamp(sb+3, W_VTS)
        if layer == 0:
            only(g, 2, lambda: x_gather(g, 1, 2))
            g.stamp(sb+4, W_VTS)
            g("s_barrier")
            lq = g.label("noq")
            g(f"""
            s_cmp_ge_u32 s35, 2
            s_cbranch_scc1 {lq}
            """)
            q_stage(g, 1, 2)
            g(f"{lq}:")
            g.stamp(sb+6, W_VTS)


def w_wave(g):
    g.ts_begin(W_TS)
    for idx in (0, 3, 4, 5):
        g.tsmap[idx] = g.tsfree.pop(0)
    g.stamp(0, W_VTS, 1)
    g(f"""
    s_sub_u32 s35, s3, 4
    v_cmp_gt_u32 s[36:37], 56, v0
    s_mul_i32 s28, s35, 448
    v_lshlrev_b32 v{vCOL}, 3, v0
    v_add_u32 v{vCOL}, s28, v{vCOL}
    v_lshrrev_b32 v{vXSW}, 1, v{vCOL}
    v_lshlrev_b32 v{vXSt}, 4, v0
    """)
    srd(g, 12, 64, 65, 896)
    srd(g, 20, 82, 83, 896)
    lF = g.label("roleF"); lend = g.label("wend")
    g(f"""
    s_cmp_ge_u32 s5, 16
    s_cbranch_scc1 {lF}
    """)
    w_wave_R(g, lend)
    g(f"{lF}:")
    w_wave_F(g, lend)
    g(f"{lend}:")
    g.stamp(31, W_VTS, 1)
    dump_ts(g, W_VTS)
    g("s_endpgm")


HEADER = open("cdna_kernels/" + NAME + ".s.ref").read().split("; Override launch")[0]


def build(ts=False, mimic=True, sleep=0, thr=(3, 0, 6)):
    g = Gen(ts, mimic, sleep, thr)
    g.L.append(HEADER.rstrip("\n"))
    g.L.append(f"; @launch grid=(256,1,1) block=(512,1,1) lds={LDS_BYTES}")
    g.L.append('.amdgcn_target "amdgcn-amd-amdhsa--gfx950"')
    g.L.append(".text")
    g.L.append(f".globl {KNAME}")
    g.L.append(".p2align 8")
    g.L.append(f".type {KNAME},@function")
    g.L.append(f"{KNAME}:")
    g(f"""
    s_cmp_ge_u32 s2, 256
    s_cbranch_scc1 L_exit
    s_load_dwordx16 s[64:79], s[0:1], 0
    s_load_dwordx8 s[80:87], s[0:1], 64
    v_lshrrev_b32 v1, 6, v0
    v_and_b32 v0, 63, v0
    v_readfirstlane_b32 s3, v1
    v_and_b32 v1, 15, v0
    v_lshrrev_b32 v2, 4, v0
    s_and_b32 s4, s2, 7
    s_lshr_b32 s5, s2, 3
    s_mov_b32 s7, 0
    s_waitcnt lgkmcnt(0)
    """)
    srd(g, 8, 86, 87, WS_SIZE)
    g(f"""
    s_load_dword s50, s[86:87], {WS_EPOCH}
    s_cmp_ge_u32 s3, 4
    s_cbranch_scc1 L_wwave
    """)
    a_wave(g)
    g("L_wwave:")
    w_wave(g)
    g("L_exit:")
    g("s_endpgm")
    g.L.append('.section .rodata,"a"')
    g.L.append(".p2align 6")
    g.L.append(f".amdhsa_kernel {KNAME}")
    for d in ["next_free_vgpr 256", "next_free_sgpr 102", "accum_offset 256", "group_segment_fixed_size 0",
              "kernarg_size 96", "user_sgpr_count 2", "user_sgpr_kernarg_segment_ptr 1",
              "system_sgpr_workgroup_id_x 1", "float_denorm_mode_32 3"]:
        g.L.append("  .amdhsa_" + d)
    g.L.append(".end_amdhsa_kernel")
    return "\n".join(g.L) + "\n"


if __name__ == "__main__":
    out = sys.argv[1] if len(sys.argv) > 1 else "cdna_kernels/" + NAME + ".s"
    ts = 3 if "--ts3" in sys.argv else 2 if "--ts" in sys.argv else (1 if "--ts1" in sys.argv else 0)
    mimic = "--nomimic" not in sys.argv
    sleep = int(sys.argv[sys.argv.index("--sleep")+1]) if "--sleep" in sys.argv else 0
    thr = tuple(int(x) for x in sys.argv[sys.argv.index("--thr")+1].split(",")) if "--thr" in sys.argv else (3, 0, 6)
    open(out, "w").write(build(ts, mimic, sleep, thr))
    print("wrote", out)
```

```python
import sys, math

NAME = "interleave_layers__sliding_block_cached__swiglu_ffn__decode"
KNAME = NAME + "_kernel"

WS_EPOCH = 0
WS_HB = 0x1000
WS_QB = 0x2000
WS_MLB = 0xA000
WS_ZB = 0x40000
WS_XB = 0x20000
WS_OB = 0x100000
WS_YB = 0x200000
WS_TS = 0x400000
WS_SIZE = 0x800000

L_XS = 0x0000
L_TL = 0x1000
L_OS = 0x1040
L_QS = 0x1400
L_OP = 0x2400
L_MLP = 0x4400
L_IMG = 0x4800
L_WO = 0xB800
LDS_BYTES = 0xB800 + 32*896

POLL_LIMIT = 20000
A_TS = list(range(52, 64, 2)) + list(range(88, 102, 2)) + list(range(64, 88, 2))
W_TS = list(range(88, 102, 2)) + list(range(64, 88, 2))
LOG2E = 1.4426950408889634


def f32hex(x):
    import struct
    return "0x%08x" % struct.unpack("<I", struct.pack("<f", x))[0]


class Gen:
    def __init__(self, ts=False, mimic=True, sleep=0, thr=(3, 0, 6)):
        self.sleep = sleep
        self.thr = thr
        self.early = int(sys.argv[sys.argv.index('--early')+1]) if '--early' in sys.argv else 2
        self.L = []
        self.ts = ts
        self.mimic = mimic
        self.uid = 0
        self.nts = 0

    def __call__(self, s):
        for line in s.strip("\n").split("\n"):
            self.L.append("    " + line.strip() if line.strip() and not line.strip().endswith(":") else line.strip())

    def label(self, base):
        self.uid += 1
        return f"L_{base}_{self.uid}"

    def nop(self, n):
        while n > 0:
            k = min(n, 16)
            self(f"s_nop {k-1}")
            n -= k

    def stamp(self, idx, vts, lvl=2):
        if not self.ts or lvl > self.ts:
            return
        if idx not in self.tsmap:
            self.tsmap[idx] = self.tsfree.pop(0)
        r = self.tsmap[idx]
        self(f"s_memrealtime s[{r}:{r+1}]")

    def ts_begin(self, regs):
        self.tsmap = {}
        self.tsfree = list(regs)
        if self.ts:
            for r in regs:
                if r >= 88:
                    self(f"s_mov_b32 s{r}, 0")

    def ts_zero_late(self):
        if self.ts:
            for r in range(64, 88, 2):
                self(f"s_mov_b32 s{r}, 0")

    def pub(self, store_txt):
        a = self.label("slow"); b = self.label("pubd")
        self(f"""
        s_cmp_eq_u32 s7, 0
        s_cbranch_scc1 {a}
        {store_txt}
        s_branch {b}
        {a}:
        {store_txt} sc1
        {b}:
        """)

    def poll(self, loads, check):
        a = self.label("poll"); b = self.label("polld")
        self("s_mov_b32 s34, 0")
        self(f"{a}:")
        loads()
        self("s_waitcnt vmcnt(0)")
        check()
        self(f"""
        s_cmp_eq_u64 vcc, 0
        s_cbranch_scc1 {b}
        {("s_sleep %d" % self.sleep) if self.sleep else ""}
        s_add_u32 s34, s34, 1
        s_cmp_lt_u32 s34, {POLL_LIMIT}
        s_cbranch_scc1 {a}
        {b}:
        """)

    def sentinel_check(self, regs, tmp):
        regs = list(regs)
        first = True
        while len(regs) > 0:
            if first:
                if len(regs) >= 3:
                    self(f"v_max3_u32 v{tmp}, v{regs[0]}, v{regs[1]}, v{regs[2]}"); regs = regs[3:]
                elif len(regs) == 2:
                    self(f"v_max_u32 v{tmp}, v{regs[0]}, v{regs[1]}"); regs = []
                else:
                    self(f"v_mov_b32 v{tmp}, v{regs[0]}"); regs = []
                first = False
            elif len(regs) >= 2:
                self(f"v_max3_u32 v{tmp}, v{tmp}, v{regs[0]}, v{regs[1]}"); regs = regs[2:]
            else:
                self(f"v_max_u32 v{tmp}, v{tmp}, v{regs[0]}"); regs = []
        self(f"v_cmp_eq_u32 vcc, -1, v{tmp}")


def srd(g, d, lo, hi, nbytes):
    g(f"""
    s_mov_b32 s{d}, s{lo}
    s_mov_b32 s{d+1}, s{hi}
    s_mov_b32 s{d+2}, {nbytes}
    s_mov_b32 s{d+3}, 0x00020000
    """)


def srd_off(g, d, lo, hi, soff, nbytes):
    g(f"""
    s_add_u32 s{d}, s{lo}, s{soff}
    s_addc_u32 s{d+1}, s{hi}, 0
    s_mov_b32 s{d+2}, {nbytes}
    s_mov_b32 s{d+3}, 0x00020000
    """)


def mfma(d, a, b, c):
    cs = "0" if c is None else f"v[{c}:{c+3}]"
    return f"v_mfma_f32_16x16x32_bf16 v[{d}:{d+3}], v[{a}:{a+3}], v[{b}:{b+3}], {cs}"


def a_wave(g):
    KA = 16; VB = 80; VL = 144
    QBR = 144; QG = 176; S0 = 184; S1 = 188; P = 192; PM = (196, 200); D0 = 204; D1 = 208; DL = 212; ONES = 216
    T0, T1, T2, T3 = 220, 221, 222, 223
    M2 = 224; E = 226
    CO = 234
    CM = 242
    VTS = 255
    vK, vV, vQG, vQSW, vQSR, vOPW, vMLW, vOPR, vPUB, vMLR = 3, 4, 5, 6, 7, 8, 9, 10, 11, 12
    g("; ---------------- A wave ----------------")
    g.ts_begin(A_TS)
    g.stamp(0, VTS, 1)
    g(f"""
    s_lshl_b32 s28, s4, 25
    s_lshl_b32 s29, s5, 16
    s_add_u32 s28, s28, s29
    s_lshl_b32 s29, s3, 14
    s_add_u32 s28, s28, s29
    s_add_u32 s28, s28, {61440*512}
    """)
    srd_off(g, 12, 66, 67, 28, 16384)
    srd_off(g, 16, 68, 69, 28, 16384)
    g(f"""
    v_lshlrev_b32 v{vK}, 9, v1
    v_lshl_add_u32 v{vK}, v2, 4, v{vK}
    v_lshlrev_b32 v{vV}, 11, v2
    v_lshl_add_u32 v{vV}, v1, 4, v{vV}
    s_movk_i32 s30, 0x2000
    s_barrier
    """)
    cnt = 0
    TK = g.thr[0]; TV = g.thr[1]
    for t in range(2):
        for j in range(8):
            r = KA + t*32 + j*4
            if TK and cnt >= 2*TK and cnt % 2 == 0: g(f"s_waitcnt vmcnt({2*TK-2})")
            g(f"buffer_load_dwordx4 v[{r}:{r+3}], v{vK}, s[12:15], {'s30' if t else '0'} offen offset:{j*64} nt")
            cnt += 1
    cnt = 0
    for t in range(2):
        for rr in range(4):
            for hf in range(2):
                r = VL + (t*8 + rr*2 + hf)*4
                if TV: g(f"s_waitcnt vmcnt({max(TV-1, 2*TK-2-cnt)})")
                g(f"buffer_load_dwordx4 v[{r}:{r+3}], v{vV}, s[16:19], {'s30' if t else '0'} offen offset:{rr*512+hf*256} nt")
                cnt += 1
    g(f"""
    v_lshlrev_b32 v{vQG}, 4, v0
    s_lshl_b32 s28, s3, 10
    s_add_u32 s28, s28, {L_QS}
    v_lshlrev_b32 v{vQSW}, 3, v0
    v_add_u32 v{vQSW}, s28, v{vQSW}
    v_lshrrev_b32 v{T0}, 3, v1
    v_lshlrev_b32 v{vQSR}, 9, v{T0}
    v_lshl_add_u32 v{vQSR}, v2, 4, v{vQSR}
    v_add_u32 v{vQSR}, s28, v{vQSR}
    s_lshl_b32 s28, s3, 11
    s_add_u32 s28, s28, {L_OP}
    v_lshlrev_b32 v{vOPW}, 5, v0
    v_add_u32 v{vOPW}, s28, v{vOPW}
    s_lshl_b32 s28, s3, 4
    s_add_u32 s28, s28, {L_MLP}
    v_lshrrev_b32 v{T1}, 5, v0
    v_lshlrev_b32 v{vMLW}, 3, v{T1}
    v_add_u32 v{vMLW}, s28, v{vMLW}
    s_lshl_b32 s28, s3, 9
    v_lshlrev_b32 v{vPUB}, 3, v0
    v_add_u32 v{vPUB}, s28, v{vPUB}
    v_add_u32 v{vOPR}, {L_OP}, v{vPUB}
    s_lshr_b32 s28, s3, 1
    s_lshl_b32 s28, s28, 3
    s_add_u32 s28, s28, {L_MLP}
    v_mov_b32 v{vMLR}, s28
    v_cmp_eq_u32 s[36:37], v{T0}, v{T1}
    v_mov_b32 v{ONES}, 0x3f803f80
    v_mov_b32 v{ONES+1}, 0x3f803f80
    v_mov_b32 v{ONES+2}, 0x3f803f80
    v_mov_b32 v{ONES+3}, 0x3f803f80
    s_mov_b32 s38, {f32hex(LOG2E/16.0)}
    s_mov_b32 s39, 0x05040100
    s_mov_b32 s44, 0x07060302
    s_mov_b32 s40, 0x01010101
    s_mov_b32 s41, 0x01010101
    """)
    g.stamp(1, VTS)
    g("""s_waitcnt lgkmcnt(0)
    s_mul_i32 s6, s50, 0x9E3779B1
    s_add_u32 s6, s6, 0x7F4A7C15""")
    g("s_waitcnt vmcnt(0)")
    g.stamp(2, VTS)
    for hf in range(2):
        for t in range(2):
            for q in range(2):
                x = VL + (t*8 + (2*q)*2 + hf)*4
                y = VL + (t*8 + (2*q+1)*2 + hf)*4
                for d in range(4):
                    p = 2*t + q
                    g(f"v_perm_b32 v{VB + (hf*8 + 2*d)*4 + p}, v{y+d}, v{x+d}, s39")
                    g(f"v_perm_b32 v{VB + (hf*8 + 2*d + 1)*4 + p}, v{y+d}, v{x+d}, s44")
    for layer in range(2):
        sb = 3 + layer*8
        g(f"""
        s_lshl_b32 s28, s4, 11
        s_add_u32 s28, s28, {WS_QB + layer*8*2048}
        """)
        def loads():
            g(f"buffer_load_dwordx4 v[{QG}:{QG+3}], v{vQG}, s[8:11], s28 offen sc1")
            g(f"buffer_load_dwordx4 v[{QG+4}:{QG+7}], v{vQG}, s[8:11], s28 offen offset:1024 sc1")
        def check():
            g(f"""
            v_xor_b32 v{T0}, s6, v{QG+1}
            v_xor_b32 v{T1}, s6, v{QG+3}
            v_xor_b32 v{T2}, s6, v{QG+5}
            v_xor_b32 v{T3}, s6, v{QG+7}
            v_or3_b32 v{T0}, v{T0}, v{T1}, v{T2}
            v_or_b32 v{T0}, v{T0}, v{T3}
            v_cmp_ne_u32 vcc, 0, v{T0}
            """)
        g.poll(loads, check)
        g.stamp(sb, VTS)
        if layer == 0:
            g("s_barrier")
        g(f"""
        ds_write2_b32 v{vQSW}, v{QG}, v{QG+2} offset0:0 offset1:1
        ds_write2_b32 v{vQSW}, v{QG+4}, v{QG+6} offset0:128 offset1:129
        s_waitcnt lgkmcnt(0)
        """)
        for j in range(8):
            g(f"ds_read_b128 v[{QBR+4*j}:{QBR+4*j+3}], v{vQSR} offset:{j*64}")
        for j in range(8):
            g(f"s_waitcnt lgkmcnt({7-j})")
            g(mfma(S0, KA + j*4, QBR + 4*j, None if j == 0 else S0))
            g(mfma(S1, KA + 32 + j*4, QBR + 4*j, None if j == 0 else S1))
        g.nop(8)
        g(f"""
        v_max3_f32 v{M2}, v{S0}, v{S0+1}, v{S0+2}
        v_max3_f32 v{M2}, v{M2}, v{S0+3}, v{S1}
        v_max3_f32 v{M2}, v{M2}, v{S1+1}, v{S1+2}
        v_max_f32 v{M2}, v{M2}, v{S1+3}
        v_mov_b32 v{T0}, v{M2}
        s_nop 1
        v_permlane16_swap_b32 v{M2}, v{T0}
        s_nop 1
        v_max_f32 v{M2}, v{M2}, v{T0}
        v_mov_b32 v{T0}, v{M2}
        s_nop 1
        v_permlane32_swap_b32 v{M2}, v{T0}
        s_nop 1
        v_max_f32 v{M2}, v{M2}, v{T0}
        v_mul_f32 v{M2}, s38, v{M2}
        """)
        for k in range(8):
            g(f"v_fma_f32 v{E+k}, v{S0+k}, s38, -v{M2}")
        for k in range(8):
            g(f"v_exp_f32 v{E+k}, v{E+k}")
        g(f"""
        v_mov_b32_dpp v{T0}, v{M2} row_ror:8 row_mask:0xf bank_mask:0xf
        v_cvt_pk_bf16_f32 v{P}, v{E}, v{E+1}
        v_cvt_pk_bf16_f32 v{P+1}, v{E+2}, v{E+3}
        v_cvt_pk_bf16_f32 v{P+2}, v{E+4}, v{E+5}
        v_cvt_pk_bf16_f32 v{P+3}, v{E+6}, v{E+7}
        v_cndmask_b32 v{M2}, v{T0}, v{M2}, s[36:37]
        s_mov_b64 s[42:43], s[40:41]
        """)
        def pm(v):
            b = PM[v & 1]
            for k in range(4):
                g(f"v_cndmask_b32 v{b+k}, 0, v{P+k}, s[42:43]")
            g("s_lshl_b64 s[42:43], s[42:43], 1")
        pm(0)
        g(mfma(DL, P, ONES, None))
        g("s_nop 0")
        for v in range(8):
            b = PM[v & 1]
            hf = v >> 2; tt = v & 3
            g(mfma(D0, b, VB + (hf*8 + tt)*4, None if v == 0 else D0))
            g(mfma(D1, b, VB + (hf*8 + tt + 4)*4, None if v == 0 else D1))
            if v < 7:
                pm(v + 1)
                g("s_nop 0")
        g(f"v_mov_b32 v{M2+1}, v{DL}")
        g.nop(8)
        g(f"""
        ds_write_b128 v{vOPW}, v[{D0}:{D0+3}]
        ds_write_b128 v{vOPW}, v[{D1}:{D1+3}] offset:16
        s_mov_b64 s[32:33], exec
        s_mov_b32 exec_lo, 1
        s_mov_b32 exec_hi, 1
        ds_write_b64 v{vMLW}, v[{M2}:{M2+1}]
        s_mov_b64 exec, s[32:33]
        s_waitcnt lgkmcnt(0)
        """)
        g.stamp(sb+1, VTS)
        g("s_barrier")
        for a in range(4):
            g(f"ds_read_b64 v[{CM+2*a}:{CM+2*a+1}], v{vMLR} offset:{a*16}")
        for a in range(4):
            g(f"ds_read_b64 v[{CO+2*a}:{CO+2*a+1}], v{vOPR} offset:{a*2048}")
        if layer == 0:
            g(f"""
            v_mov_b32 v{T0}, {L_TL}
            ds_read_b32 v{T1}, v{T0} offset:4
            """)
            g("s_waitcnt lgkmcnt(0)")
            g(f"v_readfirstlane_b32 s7, v{T1}")
        else:
            g("s_waitcnt lgkmcnt(4)")
        g(f"""
        v_max3_f32 v{M2}, v{CM}, v{CM+2}, v{CM+4}
        v_max_f32 v{M2}, v{M2}, v{CM+6}
        v_sub_f32 v{E}, v{CM}, v{M2}
        v_sub_f32 v{E+1}, v{CM+2}, v{M2}
        v_sub_f32 v{E+2}, v{CM+4}, v{M2}
        v_sub_f32 v{E+3}, v{CM+6}, v{M2}
        v_exp_f32 v{E}, v{E}
        v_exp_f32 v{E+1}, v{E+1}
        v_exp_f32 v{E+2}, v{E+2}
        v_exp_f32 v{E+3}, v{E+3}
        s_waitcnt lgkmcnt(0)
        v_mul_f32 v{T0}, v{E}, v{CO}
        v_mul_f32 v{T1}, v{E}, v{CO+1}
        v_mul_f32 v{M2+1}, v{E}, v{CM+1}
        """)
        for a in range(1, 4):
            g(f"""
            v_fmac_f32 v{T0}, v{E+a}, v{CO+2*a}
            v_fmac_f32 v{T1}, v{E+a}, v{CO+2*a+1}
            v_fmac_f32 v{M2+1}, v{E+a}, v{CM+2*a+1}
            """)
        g(f"""
        s_lshl_b32 s28, s4, 16
        s_lshl_b32 s29, s5, 11
        s_add_u32 s28, s28, s29
        s_add_u32 s28, s28, {WS_OB + layer*8*65536}
        """)
        g.pub(f"buffer_store_dwordx2 v[{T0}:{T1}], v{vPUB}, s[8:11], s28 offen")
        lab = g.label("noml")
        g(f"""
        s_bitcmp1_b32 s3, 0
        s_cbranch_scc1 {lab}
        s_lshl_b32 s28, s4, 9
        s_lshl_b32 s29, s5, 4
        s_add_u32 s28, s28, s29
        s_lshl_b32 s29, s3, 2
        s_add_u32 s28, s28, s29
        s_add_u32 s28, s28, {WS_MLB + layer*8*512}
        v_mov_b32 v{T2}, 0
        s_mov_b64 s[32:33], exec
        s_mov_b64 exec, 1
        """)
        g.pub(f"buffer_store_dwordx2 v[{M2}:{M2+1}], v{T2}, s[8:11], s28 offen")
        g(f"""
        s_mov_b64 exec, s[32:33]
        {lab}:
        """)
        g.stamp(sb+2, VTS)
        if layer == 0:
            g("s_barrier\ns_barrier\ns_barrier\ns_barrier")
    dump_ts(g, VTS)
    g("s_endpgm")


def dump_ts(g, vts):
    if not g.ts:
        return
    g(f"""
    s_mov_b64 exec, -1
    s_waitcnt lgkmcnt(0)
    v_mov_b32 v{vts}, 0
    """)
    for idx, r in g.tsmap.items():
        g(f"v_writelane_b32 v{vts}, s{r}, {idx}")
    g(f"""
    s_lshl_b32 s28, s2, 11
    s_lshl_b32 s29, s3, 8
    s_add_u32 s28, s28, s29
    s_add_u32 s28, s28, {WS_TS}
    v_lshlrev_b32 v1, 2, v0
    buffer_store_dword v{vts}, v1, s[8:11], s28 offen
    """)


WB = 16; WO = 72; WQB = 72; WD = 128; XA = 176
ACC = 232; CS = 236; CSQ = 237; vTRQ = 238; W_ONES = 240; XST = 244; SS1 = 248; SS2 = 249
U0, U1, U2, U3, U4 = 250, 251, 252, 253, 254
W_VTS = 255
vCOL, vXSW, vXA_, vXSt, vTR, vHA, vHM, vRB, vZW = 3, 4, 5, 6, 7, 8, 9, 12, 13
YP = 14
vZD, vZR = 10, 11
XR = 16
Y4 = 244


def gemv16(g, xs_off, WB, CS, out):
    g(f"""
    v_mov_b32 v{XST}, 0
    v_mov_b32 v{XST+1}, 0
    v_mov_b32 v{XST+2}, 0
    v_mov_b32 v{XST+3}, 0
    s_mov_b64 exec, s[36:37]
    ds_read_b128 v[{XST}:{XST+3}], v{vXSt} offset:{xs_off}
    s_mov_b64 exec, -1
    """)
    for j in range(14):
        g(f"ds_read_b128 v[{XA+4*j}:{XA+4*j+3}], v{vXA_} offset:{xs_off + j*64}")
    dpp = "row_mask:0xf bank_mask:0xf bound_ctrl:0"
    side = []
    side.append([f"v_dot2_f32_bf16 v{SS1}, v{XST}, v{W_ONES}, 0",
                 f"v_dot2_f32_bf16 v{SS2}, v{XST}, v{XST}, 0",
                 f"v_dot2_f32_bf16 v{SS1}, v{XST+1}, v{W_ONES}, v{SS1}"])
    side.append([f"v_dot2_f32_bf16 v{SS2}, v{XST+1}, v{XST+1}, v{SS2}",
                 f"v_dot2_f32_bf16 v{SS1}, v{XST+2}, v{W_ONES}, v{SS1}",
                 f"v_dot2_f32_bf16 v{SS2}, v{XST+2}, v{XST+2}, v{SS2}"])
    side.append([f"v_dot2_f32_bf16 v{SS1}, v{XST+3}, v{W_ONES}, v{SS1}",
                 f"v_dot2_f32_bf16 v{SS2}, v{XST+3}, v{XST+3}, v{SS2}",
                 "s_nop 2"])
    for sh in (1, 2, 4, 8):
        side.append([f"v_add_f32_dpp v{SS1}, v{SS1}, v{SS1} row_shr:{sh} {dpp}",
                     f"v_add_f32_dpp v{SS2}, v{SS2}, v{SS2} row_shr:{sh} {dpp}",
                     "s_nop 0"])
    side.append([f"v_add_f32_dpp v{SS1}, v{SS1}, v{SS1} row_bcast:15 row_mask:0xa bank_mask:0xf",
                 f"v_add_f32_dpp v{SS2}, v{SS2}, v{SS2} row_bcast:15 row_mask:0xa bank_mask:0xf",
                 "s_nop 0"])
    side.append([f"v_add_f32_dpp v{SS1}, v{SS1}, v{SS1} row_bcast:31 row_mask:0xc bank_mask:0xf",
                 f"v_add_f32_dpp v{SS2}, v{SS2}, v{SS2} row_bcast:31 row_mask:0xc bank_mask:0xf",
                 "s_nop 0"])
    side.append([f"v_readlane_b32 s46, v{SS1}, 63",
                 f"v_readlane_b32 s47, v{SS2}, 63",
                 f"v_mov_b32 v{U0}, s45",
                 "s_nop 0"])
    side.append([f"v_mul_f32 v{U1}, s46, v{U0}",
                 f"v_mul_f32 v{U2}, s47, v{U0}",
                 f"v_fma_f32 v{U2}, -v{U1}, v{U1}, v{U2}",
                 f"v_max_f32 v{U2}, 0, v{U2}"])
    if g.mimic:
        side.append([f"v_cvt_pk_bf16_f32 v{U3}, v{U1}, v{U2}",
                     f"v_lshlrev_b32 v{U1}, 16, v{U3}",
                     f"v_and_b32 v{U2}, 0xffff0000, v{U3}",
                     f"v_add_f32 v{U2}, s48, v{U2}"])
        side.append([f"v_cvt_pk_bf16_f32 v{U3}, v{U2}, v{U2}",
                     f"v_lshlrev_b32 v{U2}, 16, v{U3}",
                     f"v_sqrt_f32 v{U2}, v{U2}",
                     "s_nop 0"])
        side.append([f"v_cvt_pk_bf16_f32 v{U3}, v{U2}, v{U2}",
                     f"v_lshlrev_b32 v{U2}, 16, v{U3}",
                     f"v_rcp_f32 v{U2}, v{U2}"])
    else:
        side.append([f"v_add_f32 v{U2}, s48, v{U2}",
                     f"v_rsq_f32 v{U2}, v{U2}"])
    assert len(side) <= 14
    g("s_waitcnt lgkmcnt(14)")
    for j in range(14):
        g(f"s_waitcnt lgkmcnt({13-j})")
        g(mfma(ACC, XA + 4*j, WB + 4*j, None if j == 0 else ACC))
        if j < len(side):
            for s in side[j]:
                g(s)
    g.nop(8)
    g(f"""
    v_fma_f32 v{out}, -v{U1}, v{CS}, v{ACC}
    v_mul_f32 v{out}, v{out}, v{U2}
    """)


def stats_serial(g):
    dpp = "row_mask:0xf bank_mask:0xf bound_ctrl:0"
    g(f"v_dot2_f32_bf16 v{SS1}, v{XST}, v{W_ONES}, 0")
    g(f"v_dot2_f32_bf16 v{SS2}, v{XST}, v{XST}, 0")
    for k in range(1, 4):
        g(f"v_dot2_f32_bf16 v{SS1}, v{XST+k}, v{W_ONES}, v{SS1}")
        g(f"v_dot2_f32_bf16 v{SS2}, v{XST+k}, v{XST+k}, v{SS2}")
    g("s_nop 3")
    for sh in (1, 2, 4, 8):
        g(f"v_add_f32_dpp v{SS1}, v{SS1}, v{SS1} row_shr:{sh} {dpp}")
        g(f"v_add_f32_dpp v{SS2}, v{SS2}, v{SS2} row_shr:{sh} {dpp}")
        g("s_nop 1")
    for bc, rm in ((15, "0xa"), (31, "0xc")):
        g(f"v_add_f32_dpp v{SS1}, v{SS1}, v{SS1} row_bcast:{bc} row_mask:{rm} bank_mask:0xf")
        g(f"v_add_f32_dpp v{SS2}, v{SS2}, v{SS2} row_bcast:{bc} row_mask:{rm} bank_mask:0xf")
        g("s_nop 1")
    g(f"""
    v_readlane_b32 s46, v{SS1}, 63
    v_readlane_b32 s47, v{SS2}, 63
    v_mov_b32 v{U0}, s45
    s_nop 1
    v_mul_f32 v{U1}, s46, v{U0}
    v_mul_f32 v{U2}, s47, v{U0}
    v_fma_f32 v{U2}, -v{U1}, v{U1}, v{U2}
    v_max_f32 v{U2}, 0, v{U2}
    """)
    if g.mimic:
        g(f"""
        v_cvt_pk_bf16_f32 v{U3}, v{U1}, v{U2}
        v_lshlrev_b32 v{U1}, 16, v{U3}
        v_and_b32 v{U2}, 0xffff0000, v{U3}
        v_add_f32 v{U2}, s48, v{U2}
        v_cvt_pk_bf16_f32 v{U3}, v{U2}, v{U2}
        v_lshlrev_b32 v{U2}, 16, v{U3}
        v_sqrt_f32 v{U2}, v{U2}
        s_nop 0
        v_cvt_pk_bf16_f32 v{U3}, v{U2}, v{U2}
        v_lshlrev_b32 v{U2}, 16, v{U3}
        v_rcp_f32 v{U2}, v{U2}
        s_nop 0
        """)
    else:
        g(f"""
        v_add_f32 v{U2}, s48, v{U2}
        v_rsq_f32 v{U2}, v{U2}
        s_nop 0
        """)


def gemv16_plain(g, xs_off, wb, out):
    for j in range(14):
        g(f"ds_read_b128 v[{XA+4*j}:{XA+4*j+3}], v{vXA_} offset:{xs_off + j*64}")
    for j in range(14):
        g(f"s_waitcnt lgkmcnt({13-j})")
        g(mfma(ACC, XA + 4*j, wb + 4*j, None if j == 0 else ACC))
    g.nop(8)
    g(f"v_mov_b32 v{out}, v{ACC}")


def tr_reads(g, wb, vtr):
    for j in range(14):
        g(f"ds_read_b64_tr_b16 v[{wb+4*j}:{wb+4*j+1}], v{vtr} offset:{j*1024}")
        g(f"ds_read_b64_tr_b16 v[{wb+4*j+2}:{wb+4*j+3}], v{vtr} offset:{j*1024 + 128}")
        if j % 4 == 3:
            g("s_waitcnt lgkmcnt(0)")
    g("s_waitcnt lgkmcnt(0)")


def colsum(g, wb, cs):
    for j in range(14):
        g(mfma(ACC, W_ONES, wb + 4*j, None if j == 0 else ACC))
    g.nop(8)
    g(f"v_mov_b32 v{cs}, v{ACC}")


def load_WB(g, wb=WB, cs=CS, vtr=vTR):
    for j in range(14):
        g(f"ds_read_b64_tr_b16 v[{wb+4*j}:{wb+4*j+1}], v{vtr} offset:{j*1024}")
        g(f"ds_read_b64_tr_b16 v[{wb+4*j+2}:{wb+4*j+3}], v{vtr} offset:{j*1024 + 128}")
        if j % 4 == 3:
            g("s_waitcnt lgkmcnt(0)")
    g("s_waitcnt lgkmcnt(0)")
    for j in range(14):
        g(mfma(ACC, W_ONES, wb + 4*j, None if j == 0 else ACC))
    g.nop(8)
    g(f"v_mov_b32 v{cs}, v{ACC}")


def q_stage(g, layer, xs_idx):
    if layer == 0:
        gemv16_plain(g, L_XS + xs_idx*1024, WQB, U4)
    else:
        gemv16(g, L_XS + xs_idx*1024, WQB, CSQ, U4)
    g(f"""
    s_nop 1
    v_mov_b32_dpp v{U3}, v{U4} quad_perm:[1,0,3,2] row_mask:0xf bank_mask:0xf
    v_mov_b32 v{YP+1}, s6
    v_cvt_pk_bf16_f32 v{YP}, v{U4}, v{U3}
    v_lshlrev_b32 v{U0}, 2, v0
    s_lshl_b32 s28, s4, 11
    s_lshl_b32 s29, s40, 6
    s_add_u32 s28, s28, s29
    s_add_u32 s28, s28, {WS_QB + layer*8*2048}
    s_mov_b64 exec, 0x5555
    """)
    st = f"buffer_store_dwordx2 v[{YP}:{YP+1}], v{U0}, s[8:11], s28 offen"
    if layer == 0:
        g(st + " sc1")
    else:
        g.pub(st)
    g("s_mov_b64 exec, -1")


def reducer(g, stage, nprod):
    lab = g.label("nored")
    g(f"""
    s_cmp_ge_u32 s5, 14
    s_cbranch_scc1 {lab}
    s_lshl_b32 s28, s4, 16
    s_lshl_b32 s29, s5, 7
    s_add_u32 s28, s28, s29
    s_add_u32 s28, s28, {WS_YB + stage*8*65536}
    s_add_u32 s29, s28, 16384
    s_add_u32 s30, s28, 32768
    s_add_u32 s31, s28, 49152
    """)
    R = XA
    if nprod == 28:
        for k in range(4):
            g(f"v_mov_b32 v{R+12+k}, 0")
    def loads():
        for u in range(2 if nprod == 16 else 3):
            g(f"buffer_load_dwordx4 v[{R+4*u}:{R+4*u+3}], v{vRB}, s[8:11], s{28+u} offen sc1")
        if nprod == 28:
            g("s_mov_b32 exec_lo, 0x00ff00ff\ns_mov_b32 exec_hi, 0x00ff00ff")
            g(f"buffer_load_dwordx4 v[{R+12}:{R+15}], v{vRB}, s[8:11], s31 offen sc1")
            g("s_mov_b64 exec, -1")
    def check():
        g.sentinel_check(range(R, R + (8 if nprod == 16 else 16)), U0)
    g.poll(loads, check)
    g.stamp(24 + stage, W_VTS, 3)
    for k in range(4):
        g(f"v_add_f32 v{R+k}, v{R+k}, v{R+4+k}")
        if nprod == 28:
            g(f"v_add_f32 v{R+8+k}, v{R+8+k}, v{R+12+k}")
    if nprod == 28:
        for k in range(4):
            g(f"v_add_f32 v{R+k}, v{R+k}, v{R+8+k}")
    g("s_nop 0")
    for sh in (2, 4, 8):
        for k in range(4):
            g(f"v_add_f32_dpp v{R+k}, v{R+k}, v{R+k} row_ror:{sh} row_mask:0xf bank_mask:0xf")
    g(f"""
    s_lshl_b32 s28, s4, 7
    s_lshl_b32 s29, s5, 10
    s_add_u32 s28, s28, s29
    s_add_u32 s28, s28, {WS_ZB + stage*8*16384}
    buffer_store_dwordx4 v[{R}:{R+3}], v{vZD}, s[8:11], s28 offen sc1
    s_lshl_b32 s28, s4, 14
    s_add_u32 s28, s28, s29
    s_add_u32 s28, s28, {WS_ZB + stage*8*16384}
    """)
    if stage == 3:
        g(f"""
        s_cmp_lg_u32 s4, 0
        s_cbranch_scc1 {lab}
        """)
    R2 = XA + 16
    def loads2():
        g(f"buffer_load_dwordx4 v[{R2}:{R2+3}], v{vZR}, s[8:11], s28 offen sc1")
    def check2():
        g.sentinel_check(range(R2, R2+4), U0)
    g.poll(loads2, check2)
    for sh in (2, 4, 8):
        for k in range(4):
            g(f"v_add_f32_dpp v{R2+k}, v{R2+k}, v{R2+k} row_ror:{sh} row_mask:0xf bank_mask:0xf")
    if g.mimic:
        g(f"""
        v_cvt_pk_bf16_f32 v{U0}, v{R2}, v{R2+1}
        v_cvt_pk_bf16_f32 v{U1}, v{R2+2}, v{R2+3}
        v_lshlrev_b32 v{R2}, 16, v{U0}
        v_and_b32 v{R2+1}, 0xffff0000, v{U0}
        v_lshlrev_b32 v{R2+2}, 16, v{U1}
        v_and_b32 v{R2+3}, 0xffff0000, v{U1}
        """)
    g(f"""
    v_pk_add_f32 v[{XR}:{XR+1}], v[{XR}:{XR+1}], v[{R2}:{R2+1}]
    v_pk_add_f32 v[{XR+2}:{XR+3}], v[{XR+2}:{XR+3}], v[{R2+2}:{R2+3}]
    v_cvt_pk_bf16_f32 v{YP}, v{XR}, v{XR+1}
    v_cvt_pk_bf16_f32 v{YP+1}, v{XR+2}, v{XR+3}
    v_lshrrev_b32 v{U0}, 1, v{vZW}
    s_mov_b32 exec_lo, 0x00030003
    s_mov_b32 exec_hi, 0x00030003
    """)
    if stage < 3:
        g(f"""
        s_lshl_b32 s28, s4, 10
        s_lshl_b32 s29, s5, 6
        s_add_u32 s28, s28, s29
        s_add_u32 s28, s28, {WS_XB + stage*8*1024}
        """)
        g.pub(f"buffer_store_dwordx2 v[{YP}:{YP+1}], v{U0}, s[8:11], s28 offen")
        g(f"""
        s_mov_b64 exec, -1
        v_lshlrev_b32 v{XR}, 16, v{YP}
        v_and_b32 v{XR+1}, 0xffff0000, v{YP}
        v_lshlrev_b32 v{XR+2}, 16, v{YP+1}
        v_and_b32 v{XR+3}, 0xffff0000, v{YP+1}
        """)
    else:
        g(f"""
        s_lshl_b32 s28, s5, 6
        buffer_store_dwordx2 v[{YP}:{YP+1}], v{U0}, s[20:23], s28 offen
        s_mov_b64 exec, -1
        s_cmp_lg_u32 s2, 0
        s_cbranch_scc1 {lab}
        s_add_u32 s50, s50, 1
        v_mov_b32 v{U1}, s50
        v_mov_b32 v{U0}, 0
        s_mov_b64 exec, 1
        buffer_store_dword v{U1}, v{U0}, s[8:11], 0 offen sc1
        s_mov_b64 exec, -1
        """)
        if "--dbgtime" in sys.argv:
            g(f"""
            s_memrealtime s[92:93]
            s_waitcnt lgkmcnt(0)
            s_sub_u32 s92, s92, s90
            v_mov_b32 v{U1}, s92
            s_mov_b64 exec, 1
            buffer_store_dword v{U1}, v{U0}, s[96:99], 0 offen
            s_mov_b64 exec, -1
            """)
    g(f"{lab}:")


def x_gather(g, stage, xs_idx):
    R = XA
    g(f"""
    s_lshl_b32 s28, s4, 10
    s_add_u32 s28, s28, {WS_XB + stage*8*1024}
    s_mov_b64 exec, s[36:37]
    """)
    def loads():
        g(f"buffer_load_dwordx4 v[{R}:{R+3}], v{vXSt}, s[8:11], s28 offen sc1")
    def check():
        g.sentinel_check(range(R, R+4), U0)
    g.poll(loads, check)
    g(f"""
    ds_write_b128 v{vXSt}, v[{R}:{R+3}] offset:{L_XS + xs_idx*1024}
    s_mov_b64 exec, -1
    s_waitcnt lgkmcnt(0)
    """)


def pub_y(g, stage):
    g(f"""
    s_lshl_b32 s28, s4, 16
    s_lshl_b32 s29, s5, 11
    s_add_u32 s28, s28, s29
    s_add_u32 s28, s28, {WS_YB + stage*8*65536}
    s_mov_b64 exec, s[36:37]
    """)
    g.pub(f"buffer_store_dwordx2 v[{YP}:{YP+1}], v{vCOL}, s[8:11], s28 offen")
    g("s_mov_b64 exec, -1")


def hop_a(g, layer):
    R = XA
    g(f"""
    s_lshl_b32 s28, s4, 16
    s_lshl_b32 s29, s33, 6
    s_add_u32 s28, s28, s29
    s_add_u32 s28, s28, {WS_OB + layer*8*65536}
    s_add_u32 s29, s28, 32768
    s_lshl_b32 s30, s4, 9
    s_lshr_b32 s31, s33, 4
    s_lshl_b32 s31, s31, 3
    s_add_u32 s30, s30, s31
    s_add_u32 s30, s30, {WS_MLB + layer*8*512}
    """)
    def loads():
        g(f"buffer_load_dwordx2 v[{R+8}:{R+9}], v{vHM}, s[8:11], s30 offen sc1")
        g(f"buffer_load_dwordx2 v[{R+10}:{R+11}], v{vHM}, s[8:11], s30 offen offset:256 sc1")
        g(f"buffer_load_dwordx4 v[{R}:{R+3}], v{vHA}, s[8:11], s28 offen sc1")
        g(f"buffer_load_dwordx4 v[{R+4}:{R+7}], v{vHA}, s[8:11], s29 offen sc1")
    def check():
        g.sentinel_check(range(R, R+12), U0)
    g.poll(loads, check)
    g(f"v_max_f32 v{U0}, v{R+8}, v{R+10}")
    for sh in (1, 2, 4, 8):
        g("s_nop 1")
        g(f"v_max_f32_dpp v{U0}, v{U0}, v{U0} row_ror:{sh} row_mask:0xf bank_mask:0xf")
    g(f"""
    v_sub_f32 v{U1}, v{R+8}, v{U0}
    v_sub_f32 v{U2}, v{R+10}, v{U0}
    v_exp_f32 v{U1}, v{U1}
    v_exp_f32 v{U2}, v{U2}
    s_nop 0
    v_mul_f32 v{U3}, v{U1}, v{R+9}
    v_mul_f32 v{R}, v{U1}, v{R}
    v_mul_f32 v{R+1}, v{U1}, v{R+1}
    v_mul_f32 v{R+2}, v{U1}, v{R+2}
    v_mul_f32 v{R+3}, v{U1}, v{R+3}
    v_fmac_f32 v{U3}, v{U2}, v{R+11}
    v_fmac_f32 v{R}, v{U2}, v{R+4}
    v_fmac_f32 v{R+1}, v{U2}, v{R+5}
    v_fmac_f32 v{R+2}, v{U2}, v{R+6}
    v_fmac_f32 v{R+3}, v{U2}, v{R+7}
    """)
    for sh in (1, 2, 4, 8):
        for r in (U3, R, R+1, R+2, R+3):
            g(f"v_add_f32_dpp v{r}, v{r}, v{r} row_ror:{sh} row_mask:0xf bank_mask:0xf")
    g(f"""
    v_rcp_f32 v{U3}, v{U3}
    s_lshl_b32 s28, s35, 6
    v_lshl_add_u32 v{U0}, v2, 4, s28
    v_mul_f32 v{R}, v{U3}, v{R}
    v_mul_f32 v{R+1}, v{U3}, v{R+1}
    v_mul_f32 v{R+2}, v{U3}, v{R+2}
    v_mul_f32 v{R+3}, v{U3}, v{R+3}
    """)
    if g.mimic:
        g(f"""
        v_cvt_pk_bf16_f32 v{U1}, v{R}, v{R+1}
        v_cvt_pk_bf16_f32 v{U2}, v{R+2}, v{R+3}
        v_lshlrev_b32 v{R}, 16, v{U1}
        v_and_b32 v{R+1}, 0xffff0000, v{U1}
        v_lshlrev_b32 v{R+2}, 16, v{U2}
        v_and_b32 v{R+3}, 0xffff0000, v{U2}
        """)
    g(f"""
    s_mov_b32 exec_lo, 0x00010001
    s_mov_b32 exec_hi, 0x00010001
    ds_write_b128 v{U0}, v[{R}:{R+3}] offset:{L_OS}
    s_mov_b64 exec, -1
    s_waitcnt lgkmcnt(0)
    """)


TCALC = """
s_waitcnt lgkmcnt(0)
s_mul_i32 s6, s50, 0x9E3779B1
s_add_u32 s6, s6, 0x7F4A7C15
"""


def addr_setup(g):
    g(f"""
    v_lshlrev_b32 v{vXA_}, 4, v2
    v_lshrrev_b32 v{U0}, 2, v1
    v_lshl_add_u32 v{U0}, v2, 3, v{U0}
    v_lshlrev_b32 v{vTR}, 5, v{U0}
    v_and_b32 v{U0}, 3, v1
    v_lshl_add_u32 v{vTR}, v{U0}, 3, v{vTR}
    s_mul_i32 s28, s32, 14336
    s_add_u32 s28, s28, {L_IMG}
    v_add_u32 v{vTR}, s28, v{vTR}
    v_lshlrev_b32 v{vHA}, 11, v1
    v_lshl_add_u32 v{vHA}, v2, 4, v{vHA}
    v_lshlrev_b32 v{vHM}, 4, v1
    v_and_b32 v{U0}, 1, v1
    v_lshl_add_u32 v{U0}, v2, 1, v{U0}
    v_lshlrev_b32 v{vZW}, 4, v{U0}
    v_lshrrev_b32 v{U1}, 1, v1
    v_lshl_add_u32 v{vRB}, v{U1}, 11, v{vZW}
    v_lshl_add_u32 v{vZD}, v{U1}, 14, v{vZW}
    v_lshl_add_u32 v{vZR}, v{U1}, 7, v{vZW}
    v_mov_b32 v{W_ONES}, 0x3f803f80
    v_mov_b32 v{W_ONES+1}, 0x3f803f80
    v_mov_b32 v{W_ONES+2}, 0x3f803f80
    v_mov_b32 v{W_ONES+3}, 0x3f803f80
    s_mov_b32 s45, {f32hex(1.0/448.0)}
    s_mov_b32 s48, {f32hex(1e-5)}
    s_mov_b32 s49, {f32hex(-LOG2E)}
    """)


def clears(g, role):
    g(f"""
    v_mov_b32 v{XA}, -1
    v_mov_b32 v{XA+1}, -1
    v_mov_b32 v{XA+2}, -1
    v_mov_b32 v{XA+3}, -1
    s_lshl_b32 s28, s4, 16
    s_lshl_b32 s29, s5, 11
    s_add_u32 s28, s28, s29
    """)
    def st2k(sreg):
        g(f"buffer_store_dwordx4 v[{XA}:{XA+3}], v{vXSt}, s[8:11], {sreg} offen sc1")
        g(f"buffer_store_dwordx4 v[{XA}:{XA+3}], v{vXSt}, s[8:11], {sreg} offen offset:1024 sc1")
    for l in range(2):
        g(f"s_add_u32 s29, s28, {WS_OB + l*8*65536}")
        st2k("s29")
    if role == "R":
        for st in (0, 2):
            g(f"s_add_u32 s29, s28, {WS_YB + st*8*65536}")
            st2k("s29")
    else:
        ly = g.label("noy")
        g(f"""
        s_cmp_ge_u32 s5, 30
        s_cbranch_scc1 {ly}
        s_sub_u32 s30, s5, 16
        s_lshl_b32 s30, s30, 12
        s_lshl_b32 s31, s4, 16
        s_add_u32 s30, s30, s31
        """)
        for st in (1, 3):
            for t in range(2):
                g(f"s_add_u32 s29, s30, {WS_YB + st*8*65536 + t*2048}")
                st2k("s29")
        g(f"{ly}:")
    g(f"""
    s_lshl_b32 s28, s4, 9
    s_lshl_b32 s29, s5, 4
    s_add_u32 s28, s28, s29
    s_mov_b64 exec, 1
    """)
    for l in range(2):
        g(f"s_add_u32 s29, s28, {WS_MLB + l*8*512}")
        g(f"buffer_store_dwordx4 v[{XA}:{XA+3}], v{vXSt}, s[8:11], s29 offen sc1")
    if role == "R":
        lz = g.label("noz")
        g(f"""
        s_cmp_ge_u32 s5, 14
        s_cbranch_scc1 {lz}
        s_mov_b64 exec, -1
        v_lshrrev_b32 v{U0}, 3, v0
        v_lshlrev_b32 v{U0}, 14, v{U0}
        v_and_b32 v{U1}, 7, v0
        v_lshl_add_u32 v{U0}, v{U1}, 4, v{U0}
        s_lshl_b32 s28, s4, 7
        s_lshl_b32 s29, s5, 10
        s_add_u32 s28, s28, s29
        """)
        for st in range(4):
            g(f"s_add_u32 s29, s28, {WS_ZB + st*8*16384}")
            g(f"buffer_store_dwordx4 v[{XA}:{XA+3}], v{U0}, s[8:11], s29 offen sc1")
        g(f"""
        s_mov_b64 exec, 0xf
        s_lshl_b32 s28, s4, 10
        s_lshl_b32 s29, s5, 6
        s_add_u32 s28, s28, s29
        """)
        for st in range(3):
            g(f"s_add_u32 s29, s28, {WS_XB + st*8*1024}")
            g(f"buffer_store_dwordx4 v[{XA}:{XA+3}], v{vXSt}, s[8:11], s29 offen sc1")
        g(f"{lz}:")
    g("s_mov_b64 exec, -1")


def hello_pub(g):
    g(TCALC)
    g(f"""
    s_getreg_b32 s51, hwreg(HW_REG_XCC_ID)
    s_and_b32 s51, s51, 15
    s_or_b32 s51, s51, 0x100
    v_mov_b32 v{YP}, s51
    v_mov_b32 v{YP+1}, s6
    v_mov_b32 v{U0}, 0
    s_lshl_b32 s28, s2, 3
    s_add_u32 s28, s28, {WS_HB}
    s_waitcnt vmcnt(0)
    s_mov_b64 exec, 1
    buffer_store_dwordx2 v[{YP}:{YP+1}], v{U0}, s[8:11], s28 offen sc1
    s_mov_b64 exec, -1
    """)


def hello_poll(g):
    HR = XA
    g(f"s_movk_i32 s28, {WS_HB}")
    def loads():
        g(f"buffer_load_dwordx4 v[{HR}:{HR+3}], v{vXSt}, s[8:11], s28 offen sc1")
        g(f"buffer_load_dwordx4 v[{HR+4}:{HR+7}], v{vXSt}, s[8:11], s28 offen offset:1024 sc1")
    def check():
        g(f"""
        v_xor_b32 v{U0}, s6, v{HR+1}
        v_xor_b32 v{U1}, s6, v{HR+3}
        v_xor_b32 v{U2}, s6, v{HR+5}
        v_xor_b32 v{U3}, s6, v{HR+7}
        v_or3_b32 v{U0}, v{U0}, v{U1}, v{U2}
        v_or_b32 v{U0}, v{U0}, v{U3}
        v_cmp_ne_u32 vcc, 0, v{U0}
        """)
    g.poll(loads, check)
    g(f"""
    v_lshlrev_b32 v{U0}, 1, v0
    v_and_b32 v{U0}, 7, v{U0}
    v_or_b32 v{U1}, 1, v{U0}
    v_cmp_eq_u32 s[52:53], s4, v{U0}
    v_cmp_eq_u32 s[54:55], s4, v{U1}
    v_cmp_ne_u32 s[56:57], s51, v{HR}
    v_cmp_ne_u32 s[58:59], s51, v{HR+4}
    v_cmp_ne_u32 s[60:61], s51, v{HR+2}
    v_cmp_ne_u32 s[62:63], s51, v{HR+6}
    s_or_b64 s[56:57], s[56:57], s[58:59]
    s_or_b64 s[60:61], s[60:61], s[62:63]
    s_and_b64 s[56:57], s[56:57], s[52:53]
    s_and_b64 s[60:61], s[60:61], s[54:55]
    s_or_b64 s[56:57], s[56:57], s[60:61]
    s_cmp_eq_u64 s[56:57], 0
    s_cselect_b32 s7, 1, 0
    v_mov_b32 v{U0}, {L_TL}
    v_mov_b32 v{U1}, s7
    ds_write_b32 v{U0}, v{U1} offset:4
    s_waitcnt lgkmcnt(0)
    """)


def read_fast(g):
    g(f"""
    v_mov_b32 v{U0}, {L_TL}
    ds_read_b32 v{U1}, v{U0} offset:4
    s_waitcnt lgkmcnt(0)
    v_readfirstlane_b32 s7, v{U1}
    """)


def only(g, w, fn):
    lab = g.label("only")
    g(f"""
    s_cmp_lg_u32 s35, {w}
    s_cbranch_scc1 {lab}
    """)
    fn()
    g(f"{lab}:")


def w_wave_R(g, lend):
    g("; ---------------- W wave, role R (wo, hop A, reducers) ----------------")
    l3 = g.label("r3"); lj = g.label("rj")
    g(f"""
    s_and_b32 s32, s35, 1
    s_lshl_b32 s33, s5, 1
    s_add_u32 s33, s33, s32
    s_cmp_eq_u32 s35, 3
    s_cbranch_scc1 {l3}
    s_barrier
    """)
    addr_setup(g)
    g(f"""
    s_lshl_b32 s28, s5, 6
    v_lshrrev_b32 v{U0}, 1, v{vZW}
    buffer_load_dwordx2 v[{XR+2}:{XR+3}], v{U0}, s[12:15], s28 offen
    """)
    lw2 = g.label("rw2")
    g(f"""
    s_cmp_eq_u32 s35, 2
    s_cbranch_scc1 {lw2}
    s_lshl_b32 s28, s4, 9
    s_lshl_b32 s29, s5, 5
    s_add_u32 s28, s28, s29
    s_lshl_b32 s29, s35, 4
    s_add_u32 s28, s28, s29
    s_mul_i32 s28, s28, 896
    """)
    srd_off(g, 24, 72, 73, 28, 16*896)
    g(f"""
    s_mul_i32 s28, s35, {16*896}
    s_add_u32 s28, s28, {L_WO}
    v_add_u32 v{U4}, s28, v{vXSt}
    s_mov_b64 exec, s[36:37]
    """)
    for r in range(16):
        g(f"s_movk_i32 s28, {r*896}")
        if g.thr[2]: g(f"s_waitcnt vmcnt({g.thr[2]-1})")
        g(f"buffer_load_dwordx4 v[{WO+4*r}:{WO+4*r+3}], v{vXSt}, s[24:27], s28 offen nt")
    for r in range(16):
        g(f"s_waitcnt vmcnt({15-r})")
        g(f"ds_write_b128 v{U4}, v[{WO+4*r}:{WO+4*r+3}] offset:{r*896}")
        if r % 8 == 7: g("s_waitcnt lgkmcnt(0)")
    g(f"""
    s_mov_b64 exec, -1
    {lw2}:
    s_waitcnt vmcnt(0)
    v_lshlrev_b32 v{XR}, 16, v{XR+2}
    v_and_b32 v{XR+1}, 0xffff0000, v{XR+2}
    v_lshlrev_b32 v{XR+2}, 16, v{XR+3}
    v_and_b32 v{XR+3}, 0xffff0000, v{XR+3}
    s_branch {lj}
    {l3}:
    """)
    clears(g, "R")
    g("s_barrier")
    addr_setup(g)
    hello_pub(g)
    g(f"{lj}:")
    g("s_waitcnt lgkmcnt(0)")
    g.stamp(4, W_VTS)
    g("s_barrier")
    g.ts_zero_late()
    only(g, 3, lambda: hello_poll(g))
    g(f"v_add_u32 v{U4}, {L_WO}, v{vXSW}")
    for r in range(32):
        g(f"ds_read_b32 v{WO+2*r+1}, v{U4} offset:{r*896}")
        if r % 8 == 7: g("s_waitcnt lgkmcnt(0)")
    for r in range(32):
        g(f"v_lshlrev_b32 v{WO+2*r}, 16, v{WO+2*r+1}")
        g(f"v_and_b32 v{WO+2*r+1}, 0xffff0000, v{WO+2*r+1}")
    for layer in range(2):
        sb = 5 + layer*8
        g.stamp(sb, W_VTS)
        g("s_barrier")
        if layer == 0:
            read_fast(g)
        la = g.label("noa")
        g(f"""
        s_cmp_ge_u32 s35, 2
        s_cbranch_scc1 {la}
        """)
        hop_a(g, layer)
        g(f"{la}:")
        g.stamp(sb+1, W_VTS)
        g("s_barrier")
        g(f"v_mov_b32 v{U0}, {L_OS}")
        for k in range(8):
            g(f"ds_read_b128 v[{XA+4*k}:{XA+4*k+3}], v{U0} offset:{k*16}")
        accs = [YP, U2, XA+32, XA+34]
        for k in range(8):
            g(f"s_waitcnt lgkmcnt({7-k})")
            for r in range(4*k, 4*k+4):
                src = XA + (r & ~1)
                dst = accs[r & 3]
                sel = "op_sel:[1,0,0] op_sel_hi:[1,1,1]" if r & 1 else "op_sel_hi:[0,1,1]"
                if r < 4:
                    sel2 = "op_sel:[1,0] op_sel_hi:[1,1]" if r & 1 else "op_sel_hi:[0,1]"
                    g(f"v_pk_mul_f32 v[{dst}:{dst+1}], v[{src}:{src+1}], v[{WO+2*r}:{WO+2*r+1}] {sel2}")
                else:
                    g(f"v_pk_fma_f32 v[{dst}:{dst+1}], v[{src}:{src+1}], v[{WO+2*r}:{WO+2*r+1}], v[{dst}:{dst+1}] {sel}")
        g(f"""
        v_pk_add_f32 v[{YP}:{YP+1}], v[{YP}:{YP+1}], v[{U2}:{U2+1}]
        v_pk_add_f32 v[{XA+32}:{XA+33}], v[{XA+32}:{XA+33}], v[{XA+34}:{XA+35}]
        v_pk_add_f32 v[{YP}:{YP+1}], v[{YP}:{YP+1}], v[{XA+32}:{XA+33}]
        """)
        pub_y(g, 2*layer)
        g.stamp(sb+2, W_VTS)
        if layer == 0:
            g("s_barrier\ns_barrier")
        def red():
            reducer(g, 2*layer, 16)
            g.stamp(sb+3, W_VTS)
            reducer(g, 2*layer + 1, 28)
            g.stamp(sb+4, W_VTS)
        only(g, 2, red)
        if layer == 0:
            g("s_barrier")
    g(f"s_branch {lend}")


def w_wave_F(g, lend):
    g("; ---------------- W wave, role F (wq/q, FFN) ----------------")
    g(f"""
    s_and_b32 s32, s35, 1
    s_lshr_b32 s33, s35, 1
    s_sub_u32 s30, s5, 16
    s_lshl_b32 s40, s30, 1
    s_add_u32 s40, s40, s32
    """)
    l23 = g.label("f23"); lj = g.label("fj")
    g(f"""
    s_cmp_ge_u32 s35, 2
    s_cbranch_scc1 {l23}
    """)
    g(f"""
    v_mov_b32 v{XST}, 0
    v_mov_b32 v{XST+1}, 0
    v_mov_b32 v{XST+2}, 0
    v_mov_b32 v{XST+3}, 0
    s_mov_b64 exec, s[36:37]
    buffer_load_dwordx4 v[{XST}:{XST+3}], v{vXSt}, s[12:15], 0 offen
    s_mov_b64 exec, -1
    s_lshl_b32 s28, s4, 10
    s_lshl_b32 s29, s30, 6
    s_add_u32 s28, s28, s29
    s_mul_i32 s29, s35, {224*8192}
    s_add_u32 s28, s28, s29
    s_sub_u32 s29, {448*8192}, s28
    """)
    srd_off(g, 16, 70, 71, 28, "s29")
    g(f"""
    v_lshrrev_b32 v{U2}, 2, v0
    v_lshlrev_b32 v{U0}, 13, v{U2}
    v_and_b32 v{U1}, 3, v0
    v_lshl_add_u32 v{U0}, v{U1}, 4, v{U0}
    """)
    for jj in range(14):
        g(f"s_mov_b32 s28, {jj*16*8192}")
        g(f"buffer_load_dwordx4 v[{XA+4*jj}:{XA+4*jj+3}], v{U0}, s[16:19], s28 offen nt")
    g("s_barrier")
    g(f"""
    v_lshrrev_b32 v{U3}, 1, v{U1}
    v_and_b32 v{U1}, 1, v{U1}
    s_movk_i32 s28, 14336
    v_mul_lo_u32 v{U3}, v{U3}, s28
    v_lshl_add_u32 v{U3}, v{U2}, 5, v{U3}
    v_lshl_add_u32 v{U3}, v{U1}, 4, v{U3}
    s_mul_i32 s28, s35, {224*32}
    s_add_u32 s28, s28, {L_WO}
    v_add_u32 v{U4}, s28, v{U3}
    """)
    addr_setup(g)
    g(f"""
    v_add_u32 v{vTRQ}, {L_WO - L_IMG}, v{vTR}
    s_waitcnt vmcnt(14)
    """)
    stats_serial(g)
    for k in range(4):
        g(f"""
        v_lshlrev_b32 v{SS1}, 16, v{XST+k}
        v_and_b32 v{SS2}, 0xffff0000, v{XST+k}
        v_sub_f32 v{SS1}, v{SS1}, v{U1}
        v_sub_f32 v{SS2}, v{SS2}, v{U1}
        """)
        if g.mimic:
            g(f"""
            v_cvt_pk_bf16_f32 v{U3}, v{SS1}, v{SS2}
            v_lshlrev_b32 v{SS1}, 16, v{U3}
            v_and_b32 v{SS2}, 0xffff0000, v{U3}
            """)
        g(f"""
        v_mul_f32 v{SS1}, v{SS1}, v{U2}
        v_mul_f32 v{SS2}, v{SS2}, v{U2}
        v_cvt_pk_bf16_f32 v{XST+k}, v{SS1}, v{SS2}
        """)
    g(f"""
    s_mov_b64 exec, s[36:37]
    ds_write_b128 v{vXSt}, v[{XST}:{XST+3}] offset:{L_XS}
    s_mov_b64 exec, -1
    """)
    for jj in range(14):
        g(f"s_waitcnt vmcnt({13-jj})")
        g(f"ds_write_b128 v{U4}, v[{XA+4*jj}:{XA+4*jj+3}] offset:{jj*512}")
        if jj % 8 == 7: g("s_waitcnt lgkmcnt(0)")
    g(TCALC)
    lsp = g.label("spin"); lsd = g.label("spind")
    g(f"""
    s_lshl_b32 s28, s35, 2
    s_add_u32 s28, s28, {L_TL + 8}
    v_mov_b32 v{U0}, s28
    v_mov_b32 v{U1}, s6
    ds_write_b32 v{U0}, v{U1}
    v_xor_b32 v{U0}, 4, v{U0}
    s_mov_b32 s34, 0
    {lsp}:
    ds_read_b32 v{U1}, v{U0}
    s_waitcnt lgkmcnt(0)
    v_readfirstlane_b32 s28, v{U1}
    s_cmp_eq_u32 s28, s6
    s_cbranch_scc1 {lsd}
    s_add_u32 s34, s34, 1
    s_cmp_lt_u32 s34, {POLL_LIMIT*8}
    s_cbranch_scc1 {lsp}
    {lsd}:
    """)
    tr_reads(g, WQB, vTRQ)
    q_stage(g, 0, 0)
    g.stamp(3, W_VTS)
    colsum(g, WQB, CSQ)

    g(f"s_branch {lj}")
    g(f"{l23}:")
    only(g, 3, lambda: clears(g, "F"))
    g("s_barrier")
    addr_setup(g)
    only(g, 3, lambda: hello_pub(g))
    g(f"{lj}:")
    g(f"""
    s_sub_u32 s30, s5, 16
    s_mul_i32 s28, s4, 448
    s_lshl_b32 s29, s30, 5
    s_add_u32 s28, s28, s29
    s_sub_u32 s29, {448*3584}, s28
    s_cmp_lt_u32 s5, 30
    s_cselect_b32 s28, s28, 0
    s_cselect_b32 s29, s29, 0
    s_cmp_eq_u32 s32, 0
    s_cselect_b32 s16, s76, s78
    s_cselect_b32 s17, s77, s79
    s_add_u32 s16, s16, s28
    s_addc_u32 s17, s17, 0
    s_mov_b32 s18, s29
    s_mov_b32 s19, 0x00020000
    s_mul_i32 s28, s4, 224
    s_lshl_b32 s29, s30, 4
    s_add_u32 s28, s28, s29
    s_lshl_b32 s29, s32, 3
    s_add_u32 s28, s28, s29
    s_mul_i32 s28, s28, 896
    s_cmp_lt_u32 s5, 30
    s_cselect_b32 s28, s28, 0
    s_cselect_b32 s29, {8*896}, 0
    """)
    srd_off(g, 24, 80, 81, 28, "s29")
    g(f"""
    v_lshrrev_b32 v{U0}, 1, v0
    s_mul_i32 s28, s33, 224
    v_add_u32 v{U0}, s28, v{U0}
    s_movk_i32 s28, 3584
    v_mul_lo_u32 v{vHA}, v{U0}, s28
    v_and_b32 v{U1}, 1, v0
    v_lshl_add_u32 v{vHA}, v{U1}, 4, v{vHA}
    s_movk_i32 s28, 14336
    v_mul_lo_u32 v{vHM}, v{U1}, s28
    v_lshl_add_u32 v{vHM}, v{U0}, 5, v{vHM}
    s_lshl_b32 s28, s32, 4
    s_add_u32 s28, s28, {L_IMG}
    v_add_u32 v{vHM}, s28, v{vHM}
    s_mul_i32 s28, s33, 448
    v_lshlrev_b32 v{vXSW}, 3, v0
    v_add_u32 v{vXSW}, s28, v{vXSW}
    v_lshlrev_b32 v{vCOL}, 1, v{vXSW}
    s_waitcnt lgkmcnt(0)
    """)
    g.stamp(4, W_VTS)
    g("s_barrier")
    g.ts_zero_late()
    only(g, 3, lambda: hello_poll(g))
    def ffn_loads(lo, hi, thr):
        for k in range(lo, hi):
            if thr: g(f"s_waitcnt vmcnt({thr-1})")
            if k < 7:
                g(f"s_mov_b32 s28, {k*32*3584}")
                g(f"buffer_load_dwordx4 v[{XA+4*k}:{XA+4*k+3}], v{vHA}, s[16:19], s28 offen nt")
            else:
                f = k - 7
                g("s_mov_b64 exec, s[36:37]")
                g(f"s_movk_i32 s28, {f*896}")
                g(f"buffer_load_dwordx2 v[{WD+4*f+2}:{WD+4*f+3}], v{vXSW}, s[24:27], s28 offen nt")
                g("s_mov_b64 exec, -1")
    ffn_loads(0, g.early, 0)
    for layer in range(2):
        sb = 5 + layer*8
        g.stamp(sb, W_VTS)
        g("s_barrier")
        if layer == 0:
            read_fast(g)
            g("s_barrier")
            ffn_loads(g.early, 15, 0)
            for jj in range(7):
                g(f"s_waitcnt vmcnt({14-jj})")
                g(f"ds_write_b128 v{vHM}, v[{XA+4*jj}:{XA+4*jj+3}] offset:{jj*1024}")
            g("s_waitcnt vmcnt(0)")
            for f in range(8):
                r = WD + 4*f
                g(f"""
                v_lshlrev_b32 v{r}, 16, v{r+2}
                v_and_b32 v{r+1}, 0xffff0000, v{r+2}
                v_lshlrev_b32 v{r+2}, 16, v{r+3}
                v_and_b32 v{r+3}, 0xffff0000, v{r+3}
                """)
            g("s_waitcnt lgkmcnt(0)")
            g.stamp(sb+1, W_VTS)
            g("s_barrier")
            load_WB(g)
        else:
            g(f"""
            s_cmp_ge_u32 s5, 30
            s_cbranch_scc1 {lend}
            """)
        lx = g.label("nox")
        g(f"""
        s_cmp_ge_u32 s5, 30
        s_cbranch_scc1 {lx}
        """)
        only(g, 2, lambda: x_gather(g, 2*layer, 2*layer + 1))
        g(f"{lx}:")
        g.stamp(sb+2, W_VTS)
        g("s_barrier")
        lf = g.label("noffn")
        g(f"""
        s_cmp_ge_u32 s5, 30
        s_cbranch_scc1 {lf}
        """)
        gemv16(g, L_XS + (2*layer+1)*1024, WB, CS, U4)
        if g.mimic:
            g(f"""
            v_cvt_pk_bf16_f32 v{U3}, v{U4}, v{U4}
            v_lshlrev_b32 v{U4}, 16, v{U3}
            """)
        g(f"""
        v_mul_f32 v{U0}, s49, v{U4}
        v_exp_f32 v{U0}, v{U0}
        v_mov_b32_dpp v{U3}, v{U4} row_ror:8 row_mask:0xf bank_mask:0xf
        v_add_f32 v{U0}, 1.0, v{U0}
        v_rcp_f32 v{U0}, v{U0}
        s_nop 0
        v_mul_f32 v{U0}, v{U0}, v{U4}
        """)
        if g.mimic:
            g(f"""
            v_cvt_pk_bf16_f32 v{U1}, v{U0}, v{U0}
            v_lshlrev_b32 v{U0}, 16, v{U1}
            """)
        g(f"v_mul_f32 v{U0}, v{U0}, v{U3}")
        if g.mimic:
            g(f"""
            v_cvt_pk_bf16_f32 v{U1}, v{U0}, v{U0}
            v_lshlrev_b32 v{U0}, 16, v{U1}
            """)
        g(f"""
        v_mov_b32 v{Y4}, 0
        v_mov_b32 v{Y4+1}, 0
        v_mov_b32 v{Y4+2}, 0
        v_mov_b32 v{Y4+3}, 0
        """)
        for f in range(8):
            for c in range(4):
                g(f"v_fmac_f32_dpp v{Y4+c}, v{U0}, v{WD+4*f+c} row_newbcast:{f} row_mask:0xf bank_mask:0xf")
        g(f"""
        s_lshl_b32 s28, s40, 11
        s_lshl_b32 s29, s4, 16
        s_add_u32 s28, s28, s29
        s_add_u32 s28, s28, {WS_YB + (2*layer+1)*8*65536}
        s_mov_b64 exec, s[36:37]
        """)
        g.pub(f"buffer_store_dwordx4 v[{Y4}:{Y4+3}], v{vCOL}, s[8:11], s28 offen")
        g("s_mov_b64 exec, -1")
        g(f"{lf}:")
        g.stamp(sb+3, W_VTS)
        if layer == 0:
            only(g, 2, lambda: x_gather(g, 1, 2))
            g.stamp(sb+4, W_VTS)
            g("s_barrier")
            lq = g.label("noq")
            g(f"""
            s_cmp_ge_u32 s35, 2
            s_cbranch_scc1 {lq}
            """)
            q_stage(g, 1, 2)
            g(f"{lq}:")
            g.stamp(sb+6, W_VTS)


def w_wave(g):
    g.ts_begin(W_TS)
    for idx in (0, 3, 4, 5):
        g.tsmap[idx] = g.tsfree.pop(0)
    g.stamp(0, W_VTS, 1)
    g(f"""
    s_sub_u32 s35, s3, 4
    v_cmp_gt_u32 s[36:37], 56, v0
    s_mul_i32 s28, s35, 448
    v_lshlrev_b32 v{vCOL}, 3, v0
    v_add_u32 v{vCOL}, s28, v{vCOL}
    v_lshrrev_b32 v{vXSW}, 1, v{vCOL}
    v_lshlrev_b32 v{vXSt}, 4, v0
    """)
    srd(g, 12, 64, 65, 896)
    srd(g, 20, 82, 83, 896)
    if "--dbgtime" in sys.argv:
        g("s_memrealtime s[90:91]")
        srd(g, 96, 84, 85, 256)
    lF = g.label("roleF"); lend = g.label("wend")
    g(f"""
    s_cmp_ge_u32 s5, 16
    s_cbranch_scc1 {lF}
    """)
    w_wave_R(g, lend)
    g(f"{lF}:")
    w_wave_F(g, lend)
    g(f"{lend}:")
    g.stamp(31, W_VTS, 1)
    dump_ts(g, W_VTS)
    g("s_endpgm")


HEADER = open("cdna_kernels/" + NAME + ".s.ref").read().split("; Override launch")[0]


def build(ts=False, mimic=True, sleep=0, thr=(3, 0, 6)):
    g = Gen(ts, mimic, sleep, thr)
    g.L.append(HEADER.rstrip("\n"))
    g.L.append(f"; @launch grid=(256,1,1) block=(512,1,1) lds={LDS_BYTES}")
    g.L.append('.amdgcn_target "amdgcn-amd-amdhsa--gfx950"')
    g.L.append(".text")
    g.L.append(f".globl {KNAME}")
    g.L.append(".p2align 8")
    g.L.append(f".type {KNAME},@function")
    g.L.append(f"{KNAME}:")
    g(f"""
    s_cmp_ge_u32 s2, 256
    s_cbranch_scc1 L_exit
    s_load_dwordx16 s[64:79], s[0:1], 0
    s_load_dwordx8 s[80:87], s[0:1], 64
    v_lshrrev_b32 v1, 6, v0
    v_and_b32 v0, 63, v0
    v_readfirstlane_b32 s3, v1
    v_and_b32 v1, 15, v0
    v_lshrrev_b32 v2, 4, v0
    s_and_b32 s4, s2, 7
    s_lshr_b32 s5, s2, 3
    s_mov_b32 s7, 0
    s_waitcnt lgkmcnt(0)
    """)
    srd(g, 8, 86, 87, WS_SIZE)
    g(f"""
    s_load_dword s50, s[86:87], {WS_EPOCH}
    s_cmp_ge_u32 s3, 4
    s_cbranch_scc1 L_wwave
    """)
    a_wave(g)
    g("L_wwave:")
    w_wave(g)
    g("L_exit:")
    g("s_endpgm")
    g.L.append('.section .rodata,"a"')
    g.L.append(".p2align 6")
    g.L.append(f".amdhsa_kernel {KNAME}")
    for d in ["next_free_vgpr 256", "next_free_sgpr 102", "accum_offset 256", "group_segment_fixed_size 0",
              "kernarg_size 96", "user_sgpr_count 2", "user_sgpr_kernarg_segment_ptr 1",
              "system_sgpr_workgroup_id_x 1", "float_denorm_mode_32 3"]:
        g.L.append("  .amdhsa_" + d)
    g.L.append(".end_amdhsa_kernel")
    return "\n".join(g.L) + "\n"


if __name__ == "__main__":
    out = sys.argv[1] if len(sys.argv) > 1 else "cdna_kernels/" + NAME + ".s"
    ts = 3 if "--ts3" in sys.argv else 2 if "--ts" in sys.argv else (1 if "--ts1" in sys.argv else 0)
    mimic = "--nomimic" not in sys.argv
    sleep = int(sys.argv[sys.argv.index("--sleep")+1]) if "--sleep" in sys.argv else 0
    thr = tuple(int(x) for x in sys.argv[sys.argv.index("--thr")+1].split(",")) if "--thr" in sys.argv else (3, 0, 6)
    open(out, "w").write(build(ts, mimic, sleep, thr))
    print("wrote", out)
```

```python
import sys, math

NAME = "interleave_layers__sliding_block_cached__swiglu_ffn__decode"
KNAME = NAME + "_kernel"

WS_EPOCH = 0
WS_HB = 0x1000
WS_QB = 0x2000
WS_MLB = 0xA000
WS_ZB = 0x40000
WS_XB = 0x20000
WS_OB = 0x100000
WS_YB = 0x200000
WS_TS = 0x400000
WS_SIZE = 0x800000

L_XS = 0x0000
L_TL = 0x1000
L_OS = 0x1040
L_QS = 0x1400
L_OP = 0x2400
L_MLP = 0x4400
L_IMG = 0x4800
L_WO = 0xB800
LDS_BYTES = 0xB800 + 32*896

POLL_LIMIT = 20000
A_TS = list(range(52, 64, 2)) + list(range(88, 102, 2)) + list(range(64, 88, 2))
W_TS = list(range(88, 102, 2)) + list(range(64, 88, 2))
LOG2E = 1.4426950408889634


def f32hex(x):
    import struct
    return "0x%08x" % struct.unpack("<I", struct.pack("<f", x))[0]


class Gen:
    def __init__(self, ts=False, mimic=True, sleep=0, thr=(3, 0, 6)):
        self.sleep = sleep
        self.thr = thr
        self.npipe = int(sys.argv[sys.argv.index('--npipe')+1]) if '--npipe' in sys.argv else 1
        self.ppgap = int(sys.argv[sys.argv.index('--ppgap')+1]) if '--ppgap' in sys.argv else 3
        self.early = int(sys.argv[sys.argv.index('--early')+1]) if '--early' in sys.argv else 2
        self.L = []
        self.ts = ts
        self.mimic = mimic
        self.uid = 0
        self.nts = 0

    def __call__(self, s):
        for line in s.strip("\n").split("\n"):
            self.L.append("    " + line.strip() if line.strip() and not line.strip().endswith(":") else line.strip())

    def label(self, base):
        self.uid += 1
        return f"L_{base}_{self.uid}"

    def nop(self, n):
        while n > 0:
            k = min(n, 16)
            self(f"s_nop {k-1}")
            n -= k

    def stamp(self, idx, vts, lvl=2):
        if not self.ts or lvl > self.ts:
            return
        if idx not in self.tsmap:
            self.tsmap[idx] = self.tsfree.pop(0)
        r = self.tsmap[idx]
        self(f"s_memrealtime s[{r}:{r+1}]")

    def ts_begin(self, regs):
        self.tsmap = {}
        self.tsfree = list(regs)
        if self.ts:
            for r in regs:
                if r >= 88:
                    self(f"s_mov_b32 s{r}, 0")

    def ts_zero_late(self):
        if self.ts:
            for r in range(64, 88, 2):
                self(f"s_mov_b32 s{r}, 0")

    def pub(self, store_txt):
        a = self.label("slow"); b = self.label("pubd")
        self(f"""
        s_cmp_eq_u32 s7, 0
        s_cbranch_scc1 {a}
        {store_txt}
        s_branch {b}
        {a}:
        {store_txt} sc1
        {b}:
        """)

    def poll(self, loads, check):
        a = self.label("poll"); b = self.label("polld")
        self("s_mov_b32 s34, 0")
        self(f"{a}:")
        loads()
        self("s_waitcnt vmcnt(0)")
        check()
        self(f"""
        s_cmp_eq_u64 vcc, 0
        s_cbranch_scc1 {b}
        {("s_sleep %d" % self.sleep) if self.sleep else ""}
        s_add_u32 s34, s34, 1
        s_cmp_lt_u32 s34, {POLL_LIMIT}
        s_cbranch_scc1 {a}
        {b}:
        """)

    def poll_pipe(self, load, nregs, sets, out, tmp):
        n = len(sets)
        top = self.label("pp"); done = self.label("ppd")
        hits = [self.label("pph") for _ in sets]
        self("s_mov_b32 s34, 0")
        for b in sets:
            load(b)
            if self.ppgap: self(f"s_sleep {self.ppgap}")
        self(f"{top}:")
        for k, b in enumerate(sets):
            self(f"s_waitcnt vmcnt({n-1})")
            self.sentinel_check(range(b, b+nregs), tmp)
            self(f"""
            s_cmp_eq_u64 vcc, 0
            s_cbranch_scc1 {hits[k]}
            """)
            load(b)
        self(f"""
        s_add_u32 s34, s34, 1
        s_cmp_lt_u32 s34, {POLL_LIMIT}
        s_cbranch_scc1 {top}
        s_waitcnt vmcnt(0)
        """)
        for k, b in enumerate(sets):
            self(f"{hits[k]}:")
            for r in range(nregs):
                self(f"v_mov_b32 v{out+r}, v{b+r}")
            if k < n-1:
                self(f"s_branch {done}")
        self(f"{done}:")

    def sentinel_check(self, regs, tmp):
        regs = list(regs)
        first = True
        while len(regs) > 0:
            if first:
                if len(regs) >= 3:
                    self(f"v_max3_u32 v{tmp}, v{regs[0]}, v{regs[1]}, v{regs[2]}"); regs = regs[3:]
                elif len(regs) == 2:
                    self(f"v_max_u32 v{tmp}, v{regs[0]}, v{regs[1]}"); regs = []
                else:
                    self(f"v_mov_b32 v{tmp}, v{regs[0]}"); regs = []
                first = False
            elif len(regs) >= 2:
                self(f"v_max3_u32 v{tmp}, v{tmp}, v{regs[0]}, v{regs[1]}"); regs = regs[2:]
            else:
                self(f"v_max_u32 v{tmp}, v{tmp}, v{regs[0]}"); regs = []
        self(f"v_cmp_eq_u32 vcc, -1, v{tmp}")


def srd(g, d, lo, hi, nbytes):
    g(f"""
    s_mov_b32 s{d}, s{lo}
    s_mov_b32 s{d+1}, s{hi}
    s_mov_b32 s{d+2}, {nbytes}
    s_mov_b32 s{d+3}, 0x00020000
    """)


def srd_off(g, d, lo, hi, soff, nbytes):
    g(f"""
    s_add_u32 s{d}, s{lo}, s{soff}
    s_addc_u32 s{d+1}, s{hi}, 0
    s_mov_b32 s{d+2}, {nbytes}
    s_mov_b32 s{d+3}, 0x00020000
    """)


def mfma(d, a, b, c):
    cs = "0" if c is None else f"v[{c}:{c+3}]"
    return f"v_mfma_f32_16x16x32_bf16 v[{d}:{d+3}], v[{a}:{a+3}], v[{b}:{b+3}], {cs}"


def a_wave(g):
    KA = 16; VB = 80; VL = 144
    QBR = 144; QG = 176; S0 = 184; S1 = 188; P = 192; PM = (196, 200); D0 = 204; D1 = 208; DL = 212; ONES = 216
    T0, T1, T2, T3 = 220, 221, 222, 223
    M2 = 224; E = 226
    CO = 234
    CM = 242
    VTS = 255
    vK, vV, vQG, vQSW, vQSR, vOPW, vMLW, vOPR, vPUB, vMLR = 3, 4, 5, 6, 7, 8, 9, 10, 11, 12
    g("; ---------------- A wave ----------------")
    g.ts_begin(A_TS)
    g.stamp(0, VTS, 1)
    g(f"""
    s_lshl_b32 s28, s4, 25
    s_lshl_b32 s29, s5, 16
    s_add_u32 s28, s28, s29
    s_lshl_b32 s29, s3, 14
    s_add_u32 s28, s28, s29
    s_add_u32 s28, s28, {61440*512}
    """)
    srd_off(g, 12, 66, 67, 28, 16384)
    srd_off(g, 16, 68, 69, 28, 16384)
    g(f"""
    v_lshlrev_b32 v{vK}, 9, v1
    v_lshl_add_u32 v{vK}, v2, 4, v{vK}
    v_lshlrev_b32 v{vV}, 11, v2
    v_lshl_add_u32 v{vV}, v1, 4, v{vV}
    s_movk_i32 s30, 0x2000
    s_barrier
    """)
    cnt = 0
    TK = g.thr[0]; TV = g.thr[1]
    for t in range(2):
        for j in range(8):
            r = KA + t*32 + j*4
            if TK and cnt >= 2*TK and cnt % 2 == 0: g(f"s_waitcnt vmcnt({2*TK-2})")
            g(f"buffer_load_dwordx4 v[{r}:{r+3}], v{vK}, s[12:15], {'s30' if t else '0'} offen offset:{j*64} nt")
            cnt += 1
    cnt = 0
    for t in range(2):
        for rr in range(4):
            for hf in range(2):
                r = VL + (t*8 + rr*2 + hf)*4
                if TV: g(f"s_waitcnt vmcnt({max(TV-1, 2*TK-2-cnt)})")
                g(f"buffer_load_dwordx4 v[{r}:{r+3}], v{vV}, s[16:19], {'s30' if t else '0'} offen offset:{rr*512+hf*256} nt")
                cnt += 1
    g(f"""
    v_lshlrev_b32 v{vQG}, 4, v0
    s_lshl_b32 s28, s3, 10
    s_add_u32 s28, s28, {L_QS}
    v_lshlrev_b32 v{vQSW}, 3, v0
    v_add_u32 v{vQSW}, s28, v{vQSW}
    v_lshrrev_b32 v{T0}, 3, v1
    v_lshlrev_b32 v{vQSR}, 9, v{T0}
    v_lshl_add_u32 v{vQSR}, v2, 4, v{vQSR}
    v_add_u32 v{vQSR}, s28, v{vQSR}
    s_lshl_b32 s28, s3, 11
    s_add_u32 s28, s28, {L_OP}
    v_lshlrev_b32 v{vOPW}, 5, v0
    v_add_u32 v{vOPW}, s28, v{vOPW}
    s_lshl_b32 s28, s3, 4
    s_add_u32 s28, s28, {L_MLP}
    v_lshrrev_b32 v{T1}, 5, v0
    v_lshlrev_b32 v{vMLW}, 3, v{T1}
    v_add_u32 v{vMLW}, s28, v{vMLW}
    s_lshl_b32 s28, s3, 9
    v_lshlrev_b32 v{vPUB}, 3, v0
    v_add_u32 v{vPUB}, s28, v{vPUB}
    v_add_u32 v{vOPR}, {L_OP}, v{vPUB}
    s_lshr_b32 s28, s3, 1
    s_lshl_b32 s28, s28, 3
    s_add_u32 s28, s28, {L_MLP}
    v_mov_b32 v{vMLR}, s28
    v_cmp_eq_u32 s[36:37], v{T0}, v{T1}
    v_mov_b32 v{ONES}, 0x3f803f80
    v_mov_b32 v{ONES+1}, 0x3f803f80
    v_mov_b32 v{ONES+2}, 0x3f803f80
    v_mov_b32 v{ONES+3}, 0x3f803f80
    s_mov_b32 s38, {f32hex(LOG2E/16.0)}
    s_mov_b32 s39, 0x05040100
    s_mov_b32 s44, 0x07060302
    s_mov_b32 s40, 0x01010101
    s_mov_b32 s41, 0x01010101
    """)
    g.stamp(1, VTS)
    g("""s_waitcnt lgkmcnt(0)
    s_mul_i32 s6, s50, 0x9E3779B1
    s_add_u32 s6, s6, 0x7F4A7C15""")
    g("s_waitcnt vmcnt(0)")
    g.stamp(2, VTS)
    for hf in range(2):
        for t in range(2):
            for q in range(2):
                x = VL + (t*8 + (2*q)*2 + hf)*4
                y = VL + (t*8 + (2*q+1)*2 + hf)*4
                for d in range(4):
                    p = 2*t + q
                    g(f"v_perm_b32 v{VB + (hf*8 + 2*d)*4 + p}, v{y+d}, v{x+d}, s39")
                    g(f"v_perm_b32 v{VB + (hf*8 + 2*d + 1)*4 + p}, v{y+d}, v{x+d}, s44")
    for layer in range(2):
        sb = 3 + layer*8
        g(f"""
        s_lshl_b32 s28, s4, 11
        s_add_u32 s28, s28, {WS_QB + layer*8*2048}
        """)
        def loads():
            g(f"buffer_load_dwordx4 v[{QG}:{QG+3}], v{vQG}, s[8:11], s28 offen sc1")
            g(f"buffer_load_dwordx4 v[{QG+4}:{QG+7}], v{vQG}, s[8:11], s28 offen offset:1024 sc1")
        def check():
            g(f"""
            v_xor_b32 v{T0}, s6, v{QG+1}
            v_xor_b32 v{T1}, s6, v{QG+3}
            v_xor_b32 v{T2}, s6, v{QG+5}
            v_xor_b32 v{T3}, s6, v{QG+7}
            v_or3_b32 v{T0}, v{T0}, v{T1}, v{T2}
            v_or_b32 v{T0}, v{T0}, v{T3}
            v_cmp_ne_u32 vcc, 0, v{T0}
            """)
        g.poll(loads, check)
        g.stamp(sb, VTS)
        if layer == 0:
            g("s_barrier")
        g(f"""
        ds_write2_b32 v{vQSW}, v{QG}, v{QG+2} offset0:0 offset1:1
        ds_write2_b32 v{vQSW}, v{QG+4}, v{QG+6} offset0:128 offset1:129
        s_waitcnt lgkmcnt(0)
        """)
        for j in range(8):
            g(f"ds_read_b128 v[{QBR+4*j}:{QBR+4*j+3}], v{vQSR} offset:{j*64}")
        for j in range(8):
            g(f"s_waitcnt lgkmcnt({7-j})")
            g(mfma(S0, KA + j*4, QBR + 4*j, None if j == 0 else S0))
            g(mfma(S1, KA + 32 + j*4, QBR + 4*j, None if j == 0 else S1))
        g.nop(8)
        g(f"""
        v_max3_f32 v{M2}, v{S0}, v{S0+1}, v{S0+2}
        v_max3_f32 v{M2}, v{M2}, v{S0+3}, v{S1}
        v_max3_f32 v{M2}, v{M2}, v{S1+1}, v{S1+2}
        v_max_f32 v{M2}, v{M2}, v{S1+3}
        v_mov_b32 v{T0}, v{M2}
        s_nop 1
        v_permlane16_swap_b32 v{M2}, v{T0}
        s_nop 1
        v_max_f32 v{M2}, v{M2}, v{T0}
        v_mov_b32 v{T0}, v{M2}
        s_nop 1
        v_permlane32_swap_b32 v{M2}, v{T0}
        s_nop 1
        v_max_f32 v{M2}, v{M2}, v{T0}
        v_mul_f32 v{M2}, s38, v{M2}
        """)
        for k in range(8):
            g(f"v_fma_f32 v{E+k}, v{S0+k}, s38, -v{M2}")
        for k in range(8):
            g(f"v_exp_f32 v{E+k}, v{E+k}")
        g(f"""
        v_mov_b32_dpp v{T0}, v{M2} row_ror:8 row_mask:0xf bank_mask:0xf
        v_cvt_pk_bf16_f32 v{P}, v{E}, v{E+1}
        v_cvt_pk_bf16_f32 v{P+1}, v{E+2}, v{E+3}
        v_cvt_pk_bf16_f32 v{P+2}, v{E+4}, v{E+5}
        v_cvt_pk_bf16_f32 v{P+3}, v{E+6}, v{E+7}
        v_cndmask_b32 v{M2}, v{T0}, v{M2}, s[36:37]
        s_mov_b64 s[42:43], s[40:41]
        """)
        def pm(v):
            b = PM[v & 1]
            for k in range(4):
                g(f"v_cndmask_b32 v{b+k}, 0, v{P+k}, s[42:43]")
            g("s_lshl_b64 s[42:43], s[42:43], 1")
        pm(0)
        g(mfma(DL, P, ONES, None))
        g("s_nop 0")
        for v in range(8):
            b = PM[v & 1]
            hf = v >> 2; tt = v & 3
            g(mfma(D0, b, VB + (hf*8 + tt)*4, None if v == 0 else D0))
            g(mfma(D1, b, VB + (hf*8 + tt + 4)*4, None if v == 0 else D1))
            if v < 7:
                pm(v + 1)
                g("s_nop 0")
        g(f"v_mov_b32 v{M2+1}, v{DL}")
        g.nop(8)
        g(f"""
        ds_write_b128 v{vOPW}, v[{D0}:{D0+3}]
        ds_write_b128 v{vOPW}, v[{D1}:{D1+3}] offset:16
        s_mov_b64 s[32:33], exec
        s_mov_b32 exec_lo, 1
        s_mov_b32 exec_hi, 1
        ds_write_b64 v{vMLW}, v[{M2}:{M2+1}]
        s_mov_b64 exec, s[32:33]
        s_waitcnt lgkmcnt(0)
        """)
        g.stamp(sb+1, VTS)
        g("s_barrier")
        for a in range(4):
            g(f"ds_read_b64 v[{CM+2*a}:{CM+2*a+1}], v{vMLR} offset:{a*16}")
        for a in range(4):
            g(f"ds_read_b64 v[{CO+2*a}:{CO+2*a+1}], v{vOPR} offset:{a*2048}")
        if layer == 0:
            g(f"""
            v_mov_b32 v{T0}, {L_TL}
            ds_read_b32 v{T1}, v{T0} offset:4
            """)
            g("s_waitcnt lgkmcnt(0)")
            g(f"v_readfirstlane_b32 s7, v{T1}")
        else:
            g("s_waitcnt lgkmcnt(4)")
        g(f"""
        v_max3_f32 v{M2}, v{CM}, v{CM+2}, v{CM+4}
        v_max_f32 v{M2}, v{M2}, v{CM+6}
        v_sub_f32 v{E}, v{CM}, v{M2}
        v_sub_f32 v{E+1}, v{CM+2}, v{M2}
        v_sub_f32 v{E+2}, v{CM+4}, v{M2}
        v_sub_f32 v{E+3}, v{CM+6}, v{M2}
        v_exp_f32 v{E}, v{E}
        v_exp_f32 v{E+1}, v{E+1}
        v_exp_f32 v{E+2}, v{E+2}
        v_exp_f32 v{E+3}, v{E+3}
        s_waitcnt lgkmcnt(0)
        v_mul_f32 v{T0}, v{E}, v{CO}
        v_mul_f32 v{T1}, v{E}, v{CO+1}
        v_mul_f32 v{M2+1}, v{E}, v{CM+1}
        """)
        for a in range(1, 4):
            g(f"""
            v_fmac_f32 v{T0}, v{E+a}, v{CO+2*a}
            v_fmac_f32 v{T1}, v{E+a}, v{CO+2*a+1}
            v_fmac_f32 v{M2+1}, v{E+a}, v{CM+2*a+1}
            """)
        g(f"""
        s_lshl_b32 s28, s4, 16
        s_lshl_b32 s29, s5, 11
        s_add_u32 s28, s28, s29
        s_add_u32 s28, s28, {WS_OB + layer*8*65536}
        """)
        g.pub(f"buffer_store_dwordx2 v[{T0}:{T1}], v{vPUB}, s[8:11], s28 offen")
        lab = g.label("noml")
        g(f"""
        s_bitcmp1_b32 s3, 0
        s_cbranch_scc1 {lab}
        s_lshl_b32 s28, s4, 9
        s_lshl_b32 s29, s5, 4
        s_add_u32 s28, s28, s29
        s_lshl_b32 s29, s3, 2
        s_add_u32 s28, s28, s29
        s_add_u32 s28, s28, {WS_MLB + layer*8*512}
        v_mov_b32 v{T2}, 0
        s_mov_b64 s[32:33], exec
        s_mov_b64 exec, 1
        """)
        g.pub(f"buffer_store_dwordx2 v[{M2}:{M2+1}], v{T2}, s[8:11], s28 offen")
        g(f"""
        s_mov_b64 exec, s[32:33]
        {lab}:
        """)
        g.stamp(sb+2, VTS)
        if layer == 0:
            g("s_barrier\ns_barrier\ns_barrier\ns_barrier")
    dump_ts(g, VTS)
    g("s_endpgm")


def dump_ts(g, vts):
    if not g.ts:
        return
    g(f"""
    s_mov_b64 exec, -1
    s_waitcnt lgkmcnt(0)
    v_mov_b32 v{vts}, 0
    """)
    for idx, r in g.tsmap.items():
        g(f"v_writelane_b32 v{vts}, s{r}, {idx}")
    g(f"""
    s_lshl_b32 s28, s2, 11
    s_lshl_b32 s29, s3, 8
    s_add_u32 s28, s28, s29
    s_add_u32 s28, s28, {WS_TS}
    v_lshlrev_b32 v1, 2, v0
    buffer_store_dword v{vts}, v1, s[8:11], s28 offen
    """)


WB = 16; WO = 72; WQB = 72; WD = 128; XA = 176
ACC = 232; CS = 236; CSQ = 237; vTRQ = 238; W_ONES = 240; XST = 244; SS1 = 248; SS2 = 249
U0, U1, U2, U3, U4 = 250, 251, 252, 253, 254
W_VTS = 255
vCOL, vXSW, vXA_, vXSt, vTR, vHA, vHM, vRB, vZW = 3, 4, 5, 6, 7, 8, 9, 12, 13
YP = 14
vZD, vZR = 10, 11
XR = 16
Y4 = 244


def gemv16(g, xs_off, WB, CS, out):
    g(f"""
    v_mov_b32 v{XST}, 0
    v_mov_b32 v{XST+1}, 0
    v_mov_b32 v{XST+2}, 0
    v_mov_b32 v{XST+3}, 0
    s_mov_b64 exec, s[36:37]
    ds_read_b128 v[{XST}:{XST+3}], v{vXSt} offset:{xs_off}
    s_mov_b64 exec, -1
    """)
    for j in range(14):
        g(f"ds_read_b128 v[{XA+4*j}:{XA+4*j+3}], v{vXA_} offset:{xs_off + j*64}")
    dpp = "row_mask:0xf bank_mask:0xf bound_ctrl:0"
    side = []
    side.append([f"v_dot2_f32_bf16 v{SS1}, v{XST}, v{W_ONES}, 0",
                 f"v_dot2_f32_bf16 v{SS2}, v{XST}, v{XST}, 0",
                 f"v_dot2_f32_bf16 v{SS1}, v{XST+1}, v{W_ONES}, v{SS1}"])
    side.append([f"v_dot2_f32_bf16 v{SS2}, v{XST+1}, v{XST+1}, v{SS2}",
                 f"v_dot2_f32_bf16 v{SS1}, v{XST+2}, v{W_ONES}, v{SS1}",
                 f"v_dot2_f32_bf16 v{SS2}, v{XST+2}, v{XST+2}, v{SS2}"])
    side.append([f"v_dot2_f32_bf16 v{SS1}, v{XST+3}, v{W_ONES}, v{SS1}",
                 f"v_dot2_f32_bf16 v{SS2}, v{XST+3}, v{XST+3}, v{SS2}",
                 "s_nop 2"])
    for sh in (1, 2, 4, 8):
        side.append([f"v_add_f32_dpp v{SS1}, v{SS1}, v{SS1} row_shr:{sh} {dpp}",
                     f"v_add_f32_dpp v{SS2}, v{SS2}, v{SS2} row_shr:{sh} {dpp}",
                     "s_nop 0"])
    side.append([f"v_add_f32_dpp v{SS1}, v{SS1}, v{SS1} row_bcast:15 row_mask:0xa bank_mask:0xf",
                 f"v_add_f32_dpp v{SS2}, v{SS2}, v{SS2} row_bcast:15 row_mask:0xa bank_mask:0xf",
                 "s_nop 0"])
    side.append([f"v_add_f32_dpp v{SS1}, v{SS1}, v{SS1} row_bcast:31 row_mask:0xc bank_mask:0xf",
                 f"v_add_f32_dpp v{SS2}, v{SS2}, v{SS2} row_bcast:31 row_mask:0xc bank_mask:0xf",
                 "s_nop 0"])
    side.append([f"v_readlane_b32 s46, v{SS1}, 63",
                 f"v_readlane_b32 s47, v{SS2}, 63",
                 f"v_mov_b32 v{U0}, s45",
                 "s_nop 0"])
    side.append([f"v_mul_f32 v{U1}, s46, v{U0}",
                 f"v_mul_f32 v{U2}, s47, v{U0}",
                 f"v_fma_f32 v{U2}, -v{U1}, v{U1}, v{U2}",
                 f"v_max_f32 v{U2}, 0, v{U2}"])
    if g.mimic:
        side.append([f"v_cvt_pk_bf16_f32 v{U3}, v{U1}, v{U2}",
                     f"v_lshlrev_b32 v{U1}, 16, v{U3}",
                     f"v_and_b32 v{U2}, 0xffff0000, v{U3}",
                     f"v_add_f32 v{U2}, s48, v{U2}"])
        side.append([f"v_cvt_pk_bf16_f32 v{U3}, v{U2}, v{U2}",
                     f"v_lshlrev_b32 v{U2}, 16, v{U3}",
                     f"v_sqrt_f32 v{U2}, v{U2}",
                     "s_nop 0"])
        side.append([f"v_cvt_pk_bf16_f32 v{U3}, v{U2}, v{U2}",
                     f"v_lshlrev_b32 v{U2}, 16, v{U3}",
                     f"v_rcp_f32 v{U2}, v{U2}"])
    else:
        side.append([f"v_add_f32 v{U2}, s48, v{U2}",
                     f"v_rsq_f32 v{U2}, v{U2}"])
    assert len(side) <= 14
    g("s_waitcnt lgkmcnt(14)")
    for j in range(14):
        g(f"s_waitcnt lgkmcnt({13-j})")
        g(mfma(ACC, XA + 4*j, WB + 4*j, None if j == 0 else ACC))
        if j < len(side):
            for s in side[j]:
                g(s)
    g.nop(8)
    g(f"""
    v_fma_f32 v{out}, -v{U1}, v{CS}, v{ACC}
    v_mul_f32 v{out}, v{out}, v{U2}
    """)


def stats_serial(g):
    dpp = "row_mask:0xf bank_mask:0xf bound_ctrl:0"
    g(f"v_dot2_f32_bf16 v{SS1}, v{XST}, v{W_ONES}, 0")
    g(f"v_dot2_f32_bf16 v{SS2}, v{XST}, v{XST}, 0")
    for k in range(1, 4):
        g(f"v_dot2_f32_bf16 v{SS1}, v{XST+k}, v{W_ONES}, v{SS1}")
        g(f"v_dot2_f32_bf16 v{SS2}, v{XST+k}, v{XST+k}, v{SS2}")
    g("s_nop 3")
    for sh in (1, 2, 4, 8):
        g(f"v_add_f32_dpp v{SS1}, v{SS1}, v{SS1} row_shr:{sh} {dpp}")
        g(f"v_add_f32_dpp v{SS2}, v{SS2}, v{SS2} row_shr:{sh} {dpp}")
        g("s_nop 1")
    for bc, rm in ((15, "0xa"), (31, "0xc")):
        g(f"v_add_f32_dpp v{SS1}, v{SS1}, v{SS1} row_bcast:{bc} row_mask:{rm} bank_mask:0xf")
        g(f"v_add_f32_dpp v{SS2}, v{SS2}, v{SS2} row_bcast:{bc} row_mask:{rm} bank_mask:0xf")
        g("s_nop 1")
    g(f"""
    v_readlane_b32 s46, v{SS1}, 63
    v_readlane_b32 s47, v{SS2}, 63
    v_mov_b32 v{U0}, s45
    s_nop 1
    v_mul_f32 v{U1}, s46, v{U0}
    v_mul_f32 v{U2}, s47, v{U0}
    v_fma_f32 v{U2}, -v{U1}, v{U1}, v{U2}
    v_max_f32 v{U2}, 0, v{U2}
    """)
    if g.mimic:
        g(f"""
        v_cvt_pk_bf16_f32 v{U3}, v{U1}, v{U2}
        v_lshlrev_b32 v{U1}, 16, v{U3}
        v_and_b32 v{U2}, 0xffff0000, v{U3}
        v_add_f32 v{U2}, s48, v{U2}
        v_cvt_pk_bf16_f32 v{U3}, v{U2}, v{U2}
        v_lshlrev_b32 v{U2}, 16, v{U3}
        v_sqrt_f32 v{U2}, v{U2}
        s_nop 0
        v_cvt_pk_bf16_f32 v{U3}, v{U2}, v{U2}
        v_lshlrev_b32 v{U2}, 16, v{U3}
        v_rcp_f32 v{U2}, v{U2}
        s_nop 0
        """)
    else:
        g(f"""
        v_add_f32 v{U2}, s48, v{U2}
        v_rsq_f32 v{U2}, v{U2}
        s_nop 0
        """)


def gemv16_plain(g, xs_off, wb, out):
    for j in range(14):
        g(f"ds_read_b128 v[{XA+4*j}:{XA+4*j+3}], v{vXA_} offset:{xs_off + j*64}")
    for j in range(14):
        g(f"s_waitcnt lgkmcnt({13-j})")
        g(mfma(ACC, XA + 4*j, wb + 4*j, None if j == 0 else ACC))
    g.nop(8)
    g(f"v_mov_b32 v{out}, v{ACC}")


def tr_reads(g, wb, vtr):
    for j in range(14):
        g(f"ds_read_b64_tr_b16 v[{wb+4*j}:{wb+4*j+1}], v{vtr} offset:{j*1024}")
        g(f"ds_read_b64_tr_b16 v[{wb+4*j+2}:{wb+4*j+3}], v{vtr} offset:{j*1024 + 128}")
        if j % 4 == 3:
            g("s_waitcnt lgkmcnt(0)")
    g("s_waitcnt lgkmcnt(0)")


def colsum(g, wb, cs):
    for j in range(14):
        g(mfma(ACC, W_ONES, wb + 4*j, None if j == 0 else ACC))
    g.nop(8)
    g(f"v_mov_b32 v{cs}, v{ACC}")


def load_WB(g, wb=WB, cs=CS, vtr=vTR):
    for j in range(14):
        g(f"ds_read_b64_tr_b16 v[{wb+4*j}:{wb+4*j+1}], v{vtr} offset:{j*1024}")
        g(f"ds_read_b64_tr_b16 v[{wb+4*j+2}:{wb+4*j+3}], v{vtr} offset:{j*1024 + 128}")
        if j % 4 == 3:
            g("s_waitcnt lgkmcnt(0)")
    g("s_waitcnt lgkmcnt(0)")
    for j in range(14):
        g(mfma(ACC, W_ONES, wb + 4*j, None if j == 0 else ACC))
    g.nop(8)
    g(f"v_mov_b32 v{cs}, v{ACC}")


def q_stage(g, layer, xs_idx):
    if layer == 0:
        gemv16_plain(g, L_XS + xs_idx*1024, WQB, U4)
    else:
        gemv16(g, L_XS + xs_idx*1024, WQB, CSQ, U4)
    g(f"""
    s_nop 1
    v_mov_b32_dpp v{U3}, v{U4} quad_perm:[1,0,3,2] row_mask:0xf bank_mask:0xf
    v_mov_b32 v{YP+1}, s6
    v_cvt_pk_bf16_f32 v{YP}, v{U4}, v{U3}
    v_lshlrev_b32 v{U0}, 2, v0
    s_lshl_b32 s28, s4, 11
    s_lshl_b32 s29, s40, 6
    s_add_u32 s28, s28, s29
    s_add_u32 s28, s28, {WS_QB + layer*8*2048}
    s_mov_b64 exec, 0x5555
    """)
    st = f"buffer_store_dwordx2 v[{YP}:{YP+1}], v{U0}, s[8:11], s28 offen"
    if layer == 0:
        g(st + " sc1")
    else:
        g.pub(st)
    g("s_mov_b64 exec, -1")


def reducer(g, stage, nprod):
    lab = g.label("nored")
    g(f"""
    s_cmp_ge_u32 s5, 14
    s_cbranch_scc1 {lab}
    s_lshl_b32 s28, s4, 16
    s_lshl_b32 s29, s5, 7
    s_add_u32 s28, s28, s29
    s_add_u32 s28, s28, {WS_YB + stage*8*65536}
    s_add_u32 s29, s28, 16384
    s_add_u32 s30, s28, 32768
    s_add_u32 s31, s28, 49152
    """)
    R = XA
    if nprod == 28:
        for k in range(4):
            g(f"v_mov_b32 v{R+12+k}, 0")
    def loads():
        for u in range(2 if nprod == 16 else 3):
            g(f"buffer_load_dwordx4 v[{R+4*u}:{R+4*u+3}], v{vRB}, s[8:11], s{28+u} offen sc1")
        if nprod == 28:
            g("s_mov_b32 exec_lo, 0x00ff00ff\ns_mov_b32 exec_hi, 0x00ff00ff")
            g(f"buffer_load_dwordx4 v[{R+12}:{R+15}], v{vRB}, s[8:11], s31 offen sc1")
            g("s_mov_b64 exec, -1")
    def check():
        g.sentinel_check(range(R, R + (8 if nprod == 16 else 16)), U0)
    g.poll(loads, check)
    g.stamp(24 + stage, W_VTS, 3)
    for k in range(4):
        g(f"v_add_f32 v{R+k}, v{R+k}, v{R+4+k}")
        if nprod == 28:
            g(f"v_add_f32 v{R+8+k}, v{R+8+k}, v{R+12+k}")
    if nprod == 28:
        for k in range(4):
            g(f"v_add_f32 v{R+k}, v{R+k}, v{R+8+k}")
    g("s_nop 0")
    for sh in (2, 4, 8):
        for k in range(4):
            g(f"v_add_f32_dpp v{R+k}, v{R+k}, v{R+k} row_ror:{sh} row_mask:0xf bank_mask:0xf")
    g(f"""
    s_lshl_b32 s28, s4, 7
    s_lshl_b32 s29, s5, 10
    s_add_u32 s28, s28, s29
    s_add_u32 s28, s28, {WS_ZB + stage*8*16384}
    buffer_store_dwordx4 v[{R}:{R+3}], v{vZD}, s[8:11], s28 offen sc1
    s_lshl_b32 s28, s4, 14
    s_add_u32 s28, s28, s29
    s_add_u32 s28, s28, {WS_ZB + stage*8*16384}
    """)
    if stage == 3:
        g(f"""
        s_cmp_lg_u32 s4, 0
        s_cbranch_scc1 {lab}
        """)
    R2 = XA + 16
    if g.npipe > 1:
        base = 24 + (stage & 1)*16
        g.poll_pipe(lambda b: g(f"buffer_load_dwordx4 v[{b}:{b+3}], v{vZR}, s[8:11], s28 offen sc1"), 4,
                    [base + 4*k for k in range(g.npipe)], R2, U0)
        g("s_nop 1")
    else:
        def loads2():
            g(f"buffer_load_dwordx4 v[{R2}:{R2+3}], v{vZR}, s[8:11], s28 offen sc1")
        def check2():
            g.sentinel_check(range(R2, R2+4), U0)
        g.poll(loads2, check2)
    for sh in (2, 4, 8):
        for k in range(4):
            g(f"v_add_f32_dpp v{R2+k}, v{R2+k}, v{R2+k} row_ror:{sh} row_mask:0xf bank_mask:0xf")
    if g.mimic:
        g(f"""
        v_cvt_pk_bf16_f32 v{U0}, v{R2}, v{R2+1}
        v_cvt_pk_bf16_f32 v{U1}, v{R2+2}, v{R2+3}
        v_lshlrev_b32 v{R2}, 16, v{U0}
        v_and_b32 v{R2+1}, 0xffff0000, v{U0}
        v_lshlrev_b32 v{R2+2}, 16, v{U1}
        v_and_b32 v{R2+3}, 0xffff0000, v{U1}
        """)
    g(f"""
    v_pk_add_f32 v[{XR}:{XR+1}], v[{XR}:{XR+1}], v[{R2}:{R2+1}]
    v_pk_add_f32 v[{XR+2}:{XR+3}], v[{XR+2}:{XR+3}], v[{R2+2}:{R2+3}]
    v_cvt_pk_bf16_f32 v{YP}, v{XR}, v{XR+1}
    v_cvt_pk_bf16_f32 v{YP+1}, v{XR+2}, v{XR+3}
    v_lshrrev_b32 v{U0}, 1, v{vZW}
    s_mov_b32 exec_lo, 0x00030003
    s_mov_b32 exec_hi, 0x00030003
    """)
    if stage < 3:
        g(f"""
        s_lshl_b32 s28, s4, 10
        s_lshl_b32 s29, s5, 6
        s_add_u32 s28, s28, s29
        s_add_u32 s28, s28, {WS_XB + stage*8*1024}
        """)
        g.pub(f"buffer_store_dwordx2 v[{YP}:{YP+1}], v{U0}, s[8:11], s28 offen")
        g(f"""
        s_mov_b64 exec, -1
        v_lshlrev_b32 v{XR}, 16, v{YP}
        v_and_b32 v{XR+1}, 0xffff0000, v{YP}
        v_lshlrev_b32 v{XR+2}, 16, v{YP+1}
        v_and_b32 v{XR+3}, 0xffff0000, v{YP+1}
        """)
    else:
        g(f"""
        s_lshl_b32 s28, s5, 6
        buffer_store_dwordx2 v[{YP}:{YP+1}], v{U0}, s[20:23], s28 offen
        s_mov_b64 exec, -1
        s_cmp_lg_u32 s2, 0
        s_cbranch_scc1 {lab}
        s_add_u32 s50, s50, 1
        v_mov_b32 v{U1}, s50
        v_mov_b32 v{U0}, 0
        s_mov_b64 exec, 1
        buffer_store_dword v{U1}, v{U0}, s[8:11], 0 offen sc1
        s_mov_b64 exec, -1
        """)
        if "--dbgtime" in sys.argv:
            g(f"""
            s_memrealtime s[92:93]
            s_waitcnt lgkmcnt(0)
            s_sub_u32 s92, s92, s90
            v_mov_b32 v{U1}, s92
            s_mov_b64 exec, 1
            buffer_store_dword v{U1}, v{U0}, s[96:99], 0 offen
            s_mov_b64 exec, -1
            """)
    g(f"{lab}:")


def x_gather(g, stage, xs_idx):
    R = XA
    g(f"""
    s_lshl_b32 s28, s4, 10
    s_add_u32 s28, s28, {WS_XB + stage*8*1024}
    s_mov_b64 exec, s[36:37]
    """)
    def loads():
        g(f"buffer_load_dwordx4 v[{R}:{R+3}], v{vXSt}, s[8:11], s28 offen sc1")
    def check():
        g.sentinel_check(range(R, R+4), U0)
    g.poll(loads, check)
    g(f"""
    ds_write_b128 v{vXSt}, v[{R}:{R+3}] offset:{L_XS + xs_idx*1024}
    s_mov_b64 exec, -1
    s_waitcnt lgkmcnt(0)
    """)


def pub_y(g, stage):
    g(f"""
    s_lshl_b32 s28, s4, 16
    s_lshl_b32 s29, s5, 11
    s_add_u32 s28, s28, s29
    s_add_u32 s28, s28, {WS_YB + stage*8*65536}
    s_mov_b64 exec, s[36:37]
    """)
    g.pub(f"buffer_store_dwordx2 v[{YP}:{YP+1}], v{vCOL}, s[8:11], s28 offen")
    g("s_mov_b64 exec, -1")


def hop_a(g, layer):
    R = XA
    g(f"""
    s_lshl_b32 s28, s4, 16
    s_lshl_b32 s29, s33, 6
    s_add_u32 s28, s28, s29
    s_add_u32 s28, s28, {WS_OB + layer*8*65536}
    s_add_u32 s29, s28, 32768
    s_lshl_b32 s30, s4, 9
    s_lshr_b32 s31, s33, 4
    s_lshl_b32 s31, s31, 3
    s_add_u32 s30, s30, s31
    s_add_u32 s30, s30, {WS_MLB + layer*8*512}
    """)
    def loads():
        g(f"buffer_load_dwordx2 v[{R+8}:{R+9}], v{vHM}, s[8:11], s30 offen sc1")
        g(f"buffer_load_dwordx2 v[{R+10}:{R+11}], v{vHM}, s[8:11], s30 offen offset:256 sc1")
        g(f"buffer_load_dwordx4 v[{R}:{R+3}], v{vHA}, s[8:11], s28 offen sc1")
        g(f"buffer_load_dwordx4 v[{R+4}:{R+7}], v{vHA}, s[8:11], s29 offen sc1")
    def check():
        g.sentinel_check(range(R, R+12), U0)
    g.poll(loads, check)
    g(f"v_max_f32 v{U0}, v{R+8}, v{R+10}")
    for sh in (1, 2, 4, 8):
        g("s_nop 1")
        g(f"v_max_f32_dpp v{U0}, v{U0}, v{U0} row_ror:{sh} row_mask:0xf bank_mask:0xf")
    g(f"""
    v_sub_f32 v{U1}, v{R+8}, v{U0}
    v_sub_f32 v{U2}, v{R+10}, v{U0}
    v_exp_f32 v{U1}, v{U1}
    v_exp_f32 v{U2}, v{U2}
    s_nop 0
    v_mul_f32 v{U3}, v{U1}, v{R+9}
    v_mul_f32 v{R}, v{U1}, v{R}
    v_mul_f32 v{R+1}, v{U1}, v{R+1}
    v_mul_f32 v{R+2}, v{U1}, v{R+2}
    v_mul_f32 v{R+3}, v{U1}, v{R+3}
    v_fmac_f32 v{U3}, v{U2}, v{R+11}
    v_fmac_f32 v{R}, v{U2}, v{R+4}
    v_fmac_f32 v{R+1}, v{U2}, v{R+5}
    v_fmac_f32 v{R+2}, v{U2}, v{R+6}
    v_fmac_f32 v{R+3}, v{U2}, v{R+7}
    """)
    for sh in (1, 2, 4, 8):
        for r in (U3, R, R+1, R+2, R+3):
            g(f"v_add_f32_dpp v{r}, v{r}, v{r} row_ror:{sh} row_mask:0xf bank_mask:0xf")
    g(f"""
    v_rcp_f32 v{U3}, v{U3}
    s_lshl_b32 s28, s35, 6
    v_lshl_add_u32 v{U0}, v2, 4, s28
    v_mul_f32 v{R}, v{U3}, v{R}
    v_mul_f32 v{R+1}, v{U3}, v{R+1}
    v_mul_f32 v{R+2}, v{U3}, v{R+2}
    v_mul_f32 v{R+3}, v{U3}, v{R+3}
    """)
    if g.mimic:
        g(f"""
        v_cvt_pk_bf16_f32 v{U1}, v{R}, v{R+1}
        v_cvt_pk_bf16_f32 v{U2}, v{R+2}, v{R+3}
        v_lshlrev_b32 v{R}, 16, v{U1}
        v_and_b32 v{R+1}, 0xffff0000, v{U1}
        v_lshlrev_b32 v{R+2}, 16, v{U2}
        v_and_b32 v{R+3}, 0xffff0000, v{U2}
        """)
    g(f"""
    s_mov_b32 exec_lo, 0x00010001
    s_mov_b32 exec_hi, 0x00010001
    ds_write_b128 v{U0}, v[{R}:{R+3}] offset:{L_OS}
    s_mov_b64 exec, -1
    s_waitcnt lgkmcnt(0)
    """)


TCALC = """
s_waitcnt lgkmcnt(0)
s_mul_i32 s6, s50, 0x9E3779B1
s_add_u32 s6, s6, 0x7F4A7C15
"""


def addr_setup(g):
    g(f"""
    v_lshlrev_b32 v{vXA_}, 4, v2
    v_lshrrev_b32 v{U0}, 2, v1
    v_lshl_add_u32 v{U0}, v2, 3, v{U0}
    v_lshlrev_b32 v{vTR}, 5, v{U0}
    v_and_b32 v{U0}, 3, v1
    v_lshl_add_u32 v{vTR}, v{U0}, 3, v{vTR}
    s_mul_i32 s28, s32, 14336
    s_add_u32 s28, s28, {L_IMG}
    v_add_u32 v{vTR}, s28, v{vTR}
    v_lshlrev_b32 v{vHA}, 11, v1
    v_lshl_add_u32 v{vHA}, v2, 4, v{vHA}
    v_lshlrev_b32 v{vHM}, 4, v1
    v_and_b32 v{U0}, 1, v1
    v_lshl_add_u32 v{U0}, v2, 1, v{U0}
    v_lshlrev_b32 v{vZW}, 4, v{U0}
    v_lshrrev_b32 v{U1}, 1, v1
    v_lshl_add_u32 v{vRB}, v{U1}, 11, v{vZW}
    v_lshl_add_u32 v{vZD}, v{U1}, 14, v{vZW}
    v_lshl_add_u32 v{vZR}, v{U1}, 7, v{vZW}
    v_mov_b32 v{W_ONES}, 0x3f803f80
    v_mov_b32 v{W_ONES+1}, 0x3f803f80
    v_mov_b32 v{W_ONES+2}, 0x3f803f80
    v_mov_b32 v{W_ONES+3}, 0x3f803f80
    s_mov_b32 s45, {f32hex(1.0/448.0)}
    s_mov_b32 s48, {f32hex(1e-5)}
    s_mov_b32 s49, {f32hex(-LOG2E)}
    """)


def clears(g, role):
    g(f"""
    v_mov_b32 v{XA}, -1
    v_mov_b32 v{XA+1}, -1
    v_mov_b32 v{XA+2}, -1
    v_mov_b32 v{XA+3}, -1
    s_lshl_b32 s28, s4, 16
    s_lshl_b32 s29, s5, 11
    s_add_u32 s28, s28, s29
    """)
    def st2k(sreg):
        g(f"buffer_store_dwordx4 v[{XA}:{XA+3}], v{vXSt}, s[8:11], {sreg} offen sc1")
        g(f"buffer_store_dwordx4 v[{XA}:{XA+3}], v{vXSt}, s[8:11], {sreg} offen offset:1024 sc1")
    for l in range(2):
        g(f"s_add_u32 s29, s28, {WS_OB + l*8*65536}")
        st2k("s29")
    if role == "R":
        for st in (0, 2):
            g(f"s_add_u32 s29, s28, {WS_YB + st*8*65536}")
            st2k("s29")
    else:
        ly = g.label("noy")
        g(f"""
        s_cmp_ge_u32 s5, 30
        s_cbranch_scc1 {ly}
        s_sub_u32 s30, s5, 16
        s_lshl_b32 s30, s30, 12
        s_lshl_b32 s31, s4, 16
        s_add_u32 s30, s30, s31
        """)
        for st in (1, 3):
            for t in range(2):
                g(f"s_add_u32 s29, s30, {WS_YB + st*8*65536 + t*2048}")
                st2k("s29")
        g(f"{ly}:")
    g(f"""
    s_lshl_b32 s28, s4, 9
    s_lshl_b32 s29, s5, 4
    s_add_u32 s28, s28, s29
    s_mov_b64 exec, 1
    """)
    for l in range(2):
        g(f"s_add_u32 s29, s28, {WS_MLB + l*8*512}")
        g(f"buffer_store_dwordx4 v[{XA}:{XA+3}], v{vXSt}, s[8:11], s29 offen sc1")
    if role == "R":
        lz = g.label("noz")
        g(f"""
        s_cmp_ge_u32 s5, 14
        s_cbranch_scc1 {lz}
        s_mov_b64 exec, -1
        v_lshrrev_b32 v{U0}, 3, v0
        v_lshlrev_b32 v{U0}, 14, v{U0}
        v_and_b32 v{U1}, 7, v0
        v_lshl_add_u32 v{U0}, v{U1}, 4, v{U0}
        s_lshl_b32 s28, s4, 7
        s_lshl_b32 s29, s5, 10
        s_add_u32 s28, s28, s29
        """)
        for st in range(4):
            g(f"s_add_u32 s29, s28, {WS_ZB + st*8*16384}")
            g(f"buffer_store_dwordx4 v[{XA}:{XA+3}], v{U0}, s[8:11], s29 offen sc1")
        g(f"""
        s_mov_b64 exec, 0xf
        s_lshl_b32 s28, s4, 10
        s_lshl_b32 s29, s5, 6
        s_add_u32 s28, s28, s29
        """)
        for st in range(3):
            g(f"s_add_u32 s29, s28, {WS_XB + st*8*1024}")
            g(f"buffer_store_dwordx4 v[{XA}:{XA+3}], v{vXSt}, s[8:11], s29 offen sc1")
        g(f"{lz}:")
    g("s_mov_b64 exec, -1")


def hello_pub(g):
    g(TCALC)
    g(f"""
    s_getreg_b32 s51, hwreg(HW_REG_XCC_ID)
    s_and_b32 s51, s51, 15
    s_or_b32 s51, s51, 0x100
    v_mov_b32 v{YP}, s51
    v_mov_b32 v{YP+1}, s6
    v_mov_b32 v{U0}, 0
    s_lshl_b32 s28, s2, 3
    s_add_u32 s28, s28, {WS_HB}
    s_waitcnt vmcnt(0)
    s_mov_b64 exec, 1
    buffer_store_dwordx2 v[{YP}:{YP+1}], v{U0}, s[8:11], s28 offen sc1
    s_mov_b64 exec, -1
    """)


def hello_poll(g):
    HR = XA
    g(f"s_movk_i32 s28, {WS_HB}")
    def loads():
        g(f"buffer_load_dwordx4 v[{HR}:{HR+3}], v{vXSt}, s[8:11], s28 offen sc1")
        g(f"buffer_load_dwordx4 v[{HR+4}:{HR+7}], v{vXSt}, s[8:11], s28 offen offset:1024 sc1")
    def check():
        g(f"""
        v_xor_b32 v{U0}, s6, v{HR+1}
        v_xor_b32 v{U1}, s6, v{HR+3}
        v_xor_b32 v{U2}, s6, v{HR+5}
        v_xor_b32 v{U3}, s6, v{HR+7}
        v_or3_b32 v{U0}, v{U0}, v{U1}, v{U2}
        v_or_b32 v{U0}, v{U0}, v{U3}
        v_cmp_ne_u32 vcc, 0, v{U0}
        """)
    g.poll(loads, check)
    g(f"""
    v_lshlrev_b32 v{U0}, 1, v0
    v_and_b32 v{U0}, 7, v{U0}
    v_or_b32 v{U1}, 1, v{U0}
    v_cmp_eq_u32 s[52:53], s4, v{U0}
    v_cmp_eq_u32 s[54:55], s4, v{U1}
    v_cmp_ne_u32 s[56:57], s51, v{HR}
    v_cmp_ne_u32 s[58:59], s51, v{HR+4}
    v_cmp_ne_u32 s[60:61], s51, v{HR+2}
    v_cmp_ne_u32 s[62:63], s51, v{HR+6}
    s_or_b64 s[56:57], s[56:57], s[58:59]
    s_or_b64 s[60:61], s[60:61], s[62:63]
    s_and_b64 s[56:57], s[56:57], s[52:53]
    s_and_b64 s[60:61], s[60:61], s[54:55]
    s_or_b64 s[56:57], s[56:57], s[60:61]
    s_cmp_eq_u64 s[56:57], 0
    s_cselect_b32 s7, {0 if '--slow' in sys.argv else 1}, 0
    v_mov_b32 v{U0}, {L_TL}
    v_mov_b32 v{U1}, s7
    ds_write_b32 v{U0}, v{U1} offset:4
    s_waitcnt lgkmcnt(0)
    """)


def read_fast(g):
    g(f"""
    v_mov_b32 v{U0}, {L_TL}
    ds_read_b32 v{U1}, v{U0} offset:4
    s_waitcnt lgkmcnt(0)
    v_readfirstlane_b32 s7, v{U1}
    """)


def only(g, w, fn):
    lab = g.label("only")
    g(f"""
    s_cmp_lg_u32 s35, {w}
    s_cbranch_scc1 {lab}
    """)
    fn()
    g(f"{lab}:")


def w_wave_R(g, lend):
    g("; ---------------- W wave, role R (wo, hop A, reducers) ----------------")
    l3 = g.label("r3"); lj = g.label("rj")
    g(f"""
    s_and_b32 s32, s35, 1
    s_lshl_b32 s33, s5, 1
    s_add_u32 s33, s33, s32
    s_cmp_eq_u32 s35, 3
    s_cbranch_scc1 {l3}
    s_barrier
    """)
    addr_setup(g)
    g(f"""
    s_lshl_b32 s28, s5, 6
    v_lshrrev_b32 v{U0}, 1, v{vZW}
    buffer_load_dwordx2 v[{XR+2}:{XR+3}], v{U0}, s[12:15], s28 offen
    """)
    lw2 = g.label("rw2")
    g(f"""
    s_cmp_eq_u32 s35, 2
    s_cbranch_scc1 {lw2}
    s_lshl_b32 s28, s4, 9
    s_lshl_b32 s29, s5, 5
    s_add_u32 s28, s28, s29
    s_lshl_b32 s29, s35, 4
    s_add_u32 s28, s28, s29
    s_mul_i32 s28, s28, 896
    """)
    srd_off(g, 24, 72, 73, 28, 16*896)
    g(f"""
    s_mul_i32 s28, s35, {16*896}
    s_add_u32 s28, s28, {L_WO}
    v_add_u32 v{U4}, s28, v{vXSt}
    s_mov_b64 exec, s[36:37]
    """)
    for r in range(16):
        g(f"s_movk_i32 s28, {r*896}")
        if g.thr[2]: g(f"s_waitcnt vmcnt({g.thr[2]-1})")
        g(f"buffer_load_dwordx4 v[{WO+4*r}:{WO+4*r+3}], v{vXSt}, s[24:27], s28 offen nt")
    for r in range(16):
        g(f"s_waitcnt vmcnt({15-r})")
        g(f"ds_write_b128 v{U4}, v[{WO+4*r}:{WO+4*r+3}] offset:{r*896}")
        if r % 8 == 7: g("s_waitcnt lgkmcnt(0)")
    g(f"""
    s_mov_b64 exec, -1
    {lw2}:
    s_waitcnt vmcnt(0)
    v_lshlrev_b32 v{XR}, 16, v{XR+2}
    v_and_b32 v{XR+1}, 0xffff0000, v{XR+2}
    v_lshlrev_b32 v{XR+2}, 16, v{XR+3}
    v_and_b32 v{XR+3}, 0xffff0000, v{XR+3}
    s_branch {lj}
    {l3}:
    """)
    clears(g, "R")
    g("s_barrier")
    addr_setup(g)
    hello_pub(g)
    g(f"{lj}:")
    g("s_waitcnt lgkmcnt(0)")
    g.stamp(4, W_VTS)
    g("s_barrier")
    g.ts_zero_late()
    only(g, 3, lambda: hello_poll(g))
    g(f"v_add_u32 v{U4}, {L_WO}, v{vXSW}")
    for r in range(32):
        g(f"ds_read_b32 v{WO+2*r+1}, v{U4} offset:{r*896}")
        if r % 8 == 7: g("s_waitcnt lgkmcnt(0)")
    for r in range(32):
        g(f"v_lshlrev_b32 v{WO+2*r}, 16, v{WO+2*r+1}")
        g(f"v_and_b32 v{WO+2*r+1}, 0xffff0000, v{WO+2*r+1}")
    for layer in range(2):
        sb = 5 + layer*8
        g.stamp(sb, W_VTS)
        g("s_barrier")
        if layer == 0:
            read_fast(g)
        la = g.label("noa")
        g(f"""
        s_cmp_ge_u32 s35, 2
        s_cbranch_scc1 {la}
        """)
        hop_a(g, layer)
        g(f"{la}:")
        g.stamp(sb+1, W_VTS)
        g("s_barrier")
        g(f"v_mov_b32 v{U0}, {L_OS}")
        for k in range(8):
            g(f"ds_read_b128 v[{XA+4*k}:{XA+4*k+3}], v{U0} offset:{k*16}")
        accs = [YP, U2, XA+32, XA+34]
        for k in range(8):
            g(f"s_waitcnt lgkmcnt({7-k})")
            for r in range(4*k, 4*k+4):
                src = XA + (r & ~1)
                dst = accs[r & 3]
                sel = "op_sel:[1,0,0] op_sel_hi:[1,1,1]" if r & 1 else "op_sel_hi:[0,1,1]"
                if r < 4:
                    sel2 = "op_sel:[1,0] op_sel_hi:[1,1]" if r & 1 else "op_sel_hi:[0,1]"
                    g(f"v_pk_mul_f32 v[{dst}:{dst+1}], v[{src}:{src+1}], v[{WO+2*r}:{WO+2*r+1}] {sel2}")
                else:
                    g(f"v_pk_fma_f32 v[{dst}:{dst+1}], v[{src}:{src+1}], v[{WO+2*r}:{WO+2*r+1}], v[{dst}:{dst+1}] {sel}")
        g(f"""
        v_pk_add_f32 v[{YP}:{YP+1}], v[{YP}:{YP+1}], v[{U2}:{U2+1}]
        v_pk_add_f32 v[{XA+32}:{XA+33}], v[{XA+32}:{XA+33}], v[{XA+34}:{XA+35}]
        v_pk_add_f32 v[{YP}:{YP+1}], v[{YP}:{YP+1}], v[{XA+32}:{XA+33}]
        """)
        pub_y(g, 2*layer)
        g.stamp(sb+2, W_VTS)
        if layer == 0:
            g("s_barrier\ns_barrier")
        def red():
            reducer(g, 2*layer, 16)
            g.stamp(sb+3, W_VTS)
            reducer(g, 2*layer + 1, 28)
            g.stamp(sb+4, W_VTS)
        only(g, 2, red)
        if layer == 0:
            g("s_barrier")
    g(f"s_branch {lend}")


def w_wave_F(g, lend):
    g("; ---------------- W wave, role F (wq/q, FFN) ----------------")
    g(f"""
    s_and_b32 s32, s35, 1
    s_lshr_b32 s33, s35, 1
    s_sub_u32 s30, s5, 16
    s_lshl_b32 s40, s30, 1
    s_add_u32 s40, s40, s32
    """)
    l23 = g.label("f23"); lj = g.label("fj")
    g(f"""
    s_cmp_ge_u32 s35, 2
    s_cbranch_scc1 {l23}
    """)
    g(f"""
    v_mov_b32 v{XST}, 0
    v_mov_b32 v{XST+1}, 0
    v_mov_b32 v{XST+2}, 0
    v_mov_b32 v{XST+3}, 0
    s_mov_b64 exec, s[36:37]
    buffer_load_dwordx4 v[{XST}:{XST+3}], v{vXSt}, s[12:15], 0 offen
    s_mov_b64 exec, -1
    s_lshl_b32 s28, s4, 10
    s_lshl_b32 s29, s30, 6
    s_add_u32 s28, s28, s29
    s_mul_i32 s29, s35, {224*8192}
    s_add_u32 s28, s28, s29
    s_sub_u32 s29, {448*8192}, s28
    """)
    srd_off(g, 16, 70, 71, 28, "s29")
    g(f"""
    v_lshrrev_b32 v{U2}, 2, v0
    v_lshlrev_b32 v{U0}, 13, v{U2}
    v_and_b32 v{U1}, 3, v0
    v_lshl_add_u32 v{U0}, v{U1}, 4, v{U0}
    """)
    for jj in range(14):
        g(f"s_mov_b32 s28, {jj*16*8192}")
        g(f"buffer_load_dwordx4 v[{XA+4*jj}:{XA+4*jj+3}], v{U0}, s[16:19], s28 offen nt")
    g("s_barrier")
    g(f"""
    v_lshrrev_b32 v{U3}, 1, v{U1}
    v_and_b32 v{U1}, 1, v{U1}
    s_movk_i32 s28, 14336
    v_mul_lo_u32 v{U3}, v{U3}, s28
    v_lshl_add_u32 v{U3}, v{U2}, 5, v{U3}
    v_lshl_add_u32 v{U3}, v{U1}, 4, v{U3}
    s_mul_i32 s28, s35, {224*32}
    s_add_u32 s28, s28, {L_WO}
    v_add_u32 v{U4}, s28, v{U3}
    """)
    addr_setup(g)
    g(f"""
    v_add_u32 v{vTRQ}, {L_WO - L_IMG}, v{vTR}
    s_waitcnt vmcnt(14)
    """)
    stats_serial(g)
    for k in range(4):
        g(f"""
        v_lshlrev_b32 v{SS1}, 16, v{XST+k}
        v_and_b32 v{SS2}, 0xffff0000, v{XST+k}
        v_sub_f32 v{SS1}, v{SS1}, v{U1}
        v_sub_f32 v{SS2}, v{SS2}, v{U1}
        """)
        if g.mimic:
            g(f"""
            v_cvt_pk_bf16_f32 v{U3}, v{SS1}, v{SS2}
            v_lshlrev_b32 v{SS1}, 16, v{U3}
            v_and_b32 v{SS2}, 0xffff0000, v{U3}
            """)
        g(f"""
        v_mul_f32 v{SS1}, v{SS1}, v{U2}
        v_mul_f32 v{SS2}, v{SS2}, v{U2}
        v_cvt_pk_bf16_f32 v{XST+k}, v{SS1}, v{SS2}
        """)
    g(f"""
    s_mov_b64 exec, s[36:37]
    ds_write_b128 v{vXSt}, v[{XST}:{XST+3}] offset:{L_XS}
    s_mov_b64 exec, -1
    """)
    for jj in range(14):
        g(f"s_waitcnt vmcnt({13-jj})")
        g(f"ds_write_b128 v{U4}, v[{XA+4*jj}:{XA+4*jj+3}] offset:{jj*512}")
        if jj % 8 == 7: g("s_waitcnt lgkmcnt(0)")
    g(TCALC)
    lsp = g.label("spin"); lsd = g.label("spind")
    g(f"""
    s_lshl_b32 s28, s35, 2
    s_add_u32 s28, s28, {L_TL + 8}
    v_mov_b32 v{U0}, s28
    v_mov_b32 v{U1}, 1
    ds_write_b32 v{U0}, v{U1}
    v_xor_b32 v{U0}, 4, v{U0}
    s_mov_b32 s34, 0
    {lsp}:
    ds_read_b32 v{U1}, v{U0}
    s_waitcnt lgkmcnt(0)
    v_readfirstlane_b32 s28, v{U1}
    s_cmp_eq_u32 s28, 1
    s_cbranch_scc1 {lsd}
    s_add_u32 s34, s34, 1
    s_cmp_lt_u32 s34, {POLL_LIMIT*8}
    s_cbranch_scc1 {lsp}
    {lsd}:
    """)
    tr_reads(g, WQB, vTRQ)
    q_stage(g, 0, 0)
    g.stamp(3, W_VTS)
    colsum(g, WQB, CSQ)

    g(f"s_branch {lj}")
    g(f"{l23}:")
    only(g, 3, lambda: clears(g, "F"))
    g("s_barrier")
    addr_setup(g)
    only(g, 3, lambda: hello_pub(g))
    g(f"{lj}:")
    g(f"""
    s_sub_u32 s30, s5, 16
    s_mul_i32 s28, s4, 448
    s_lshl_b32 s29, s30, 5
    s_add_u32 s28, s28, s29
    s_sub_u32 s29, {448*3584}, s28
    s_cmp_lt_u32 s5, 30
    s_cselect_b32 s28, s28, 0
    s_cselect_b32 s29, s29, 0
    s_cmp_eq_u32 s32, 0
    s_cselect_b32 s16, s76, s78
    s_cselect_b32 s17, s77, s79
    s_add_u32 s16, s16, s28
    s_addc_u32 s17, s17, 0
    s_mov_b32 s18, s29
    s_mov_b32 s19, 0x00020000
    s_mul_i32 s28, s4, 224
    s_lshl_b32 s29, s30, 4
    s_add_u32 s28, s28, s29
    s_lshl_b32 s29, s32, 3
    s_add_u32 s28, s28, s29
    s_mul_i32 s28, s28, 896
    s_cmp_lt_u32 s5, 30
    s_cselect_b32 s28, s28, 0
    s_cselect_b32 s29, {8*896}, 0
    """)
    srd_off(g, 24, 80, 81, 28, "s29")
    g(f"""
    v_lshrrev_b32 v{U0}, 1, v0
    s_mul_i32 s28, s33, 224
    v_add_u32 v{U0}, s28, v{U0}
    s_movk_i32 s28, 3584
    v_mul_lo_u32 v{vHA}, v{U0}, s28
    v_and_b32 v{U1}, 1, v0
    v_lshl_add_u32 v{vHA}, v{U1}, 4, v{vHA}
    s_movk_i32 s28, 14336
    v_mul_lo_u32 v{vHM}, v{U1}, s28
    v_lshl_add_u32 v{vHM}, v{U0}, 5, v{vHM}
    s_lshl_b32 s28, s32, 4
    s_add_u32 s28, s28, {L_IMG}
    v_add_u32 v{vHM}, s28, v{vHM}
    s_mul_i32 s28, s33, 448
    v_lshlrev_b32 v{vXSW}, 3, v0
    v_add_u32 v{vXSW}, s28, v{vXSW}
    v_lshlrev_b32 v{vCOL}, 1, v{vXSW}
    s_waitcnt lgkmcnt(0)
    """)
    g.stamp(4, W_VTS)
    g("s_barrier")
    g.ts_zero_late()
    only(g, 3, lambda: hello_poll(g))
    def ffn_loads(lo, hi, thr):
        for k in range(lo, hi):
            if thr: g(f"s_waitcnt vmcnt({thr-1})")
            if k < 7:
                g(f"s_mov_b32 s28, {k*32*3584}")
                g(f"buffer_load_dwordx4 v[{XA+4*k}:{XA+4*k+3}], v{vHA}, s[16:19], s28 offen nt")
            else:
                f = k - 7
                g("s_mov_b64 exec, s[36:37]")
                g(f"s_movk_i32 s28, {f*896}")
                g(f"buffer_load_dwordx2 v[{WD+4*f+2}:{WD+4*f+3}], v{vXSW}, s[24:27], s28 offen nt")
                g("s_mov_b64 exec, -1")
    ffn_loads(0, g.early, 0)
    for layer in range(2):
        sb = 5 + layer*8
        g.stamp(sb, W_VTS)
        g("s_barrier")
        if layer == 0:
            read_fast(g)
            g("s_barrier")
            ffn_loads(g.early, 15, 0)
            for jj in range(7):
                g(f"s_waitcnt vmcnt({14-jj})")
                g(f"ds_write_b128 v{vHM}, v[{XA+4*jj}:{XA+4*jj+3}] offset:{jj*1024}")
            g("s_waitcnt vmcnt(0)")
            for f in range(8):
                r = WD + 4*f
                g(f"""
                v_lshlrev_b32 v{r}, 16, v{r+2}
                v_and_b32 v{r+1}, 0xffff0000, v{r+2}
                v_lshlrev_b32 v{r+2}, 16, v{r+3}
                v_and_b32 v{r+3}, 0xffff0000, v{r+3}
                """)
            g("s_waitcnt lgkmcnt(0)")
            g.stamp(sb+1, W_VTS)
            g("s_barrier")
            load_WB(g)
        else:
            g(f"""
            s_cmp_ge_u32 s5, 30
            s_cbranch_scc1 {lend}
            """)
        lx = g.label("nox")
        g(f"""
        s_cmp_ge_u32 s5, 30
        s_cbranch_scc1 {lx}
        """)
        only(g, 2, lambda: x_gather(g, 2*layer, 2*layer + 1))
        g(f"{lx}:")
        g.stamp(sb+2, W_VTS)
        g("s_barrier")
        lf = g.label("noffn")
        g(f"""
        s_cmp_ge_u32 s5, 30
        s_cbranch_scc1 {lf}
        """)
        gemv16(g, L_XS + (2*layer+1)*1024, WB, CS, U4)
        if g.mimic:
            g(f"""
            v_cvt_pk_bf16_f32 v{U3}, v{U4}, v{U4}
            v_lshlrev_b32 v{U4}, 16, v{U3}
            """)
        g(f"""
        v_mul_f32 v{U0}, s49, v{U4}
        v_exp_f32 v{U0}, v{U0}
        v_mov_b32_dpp v{U3}, v{U4} row_ror:8 row_mask:0xf bank_mask:0xf
        v_add_f32 v{U0}, 1.0, v{U0}
        v_rcp_f32 v{U0}, v{U0}
        s_nop 0
        v_mul_f32 v{U0}, v{U0}, v{U4}
        """)
        if g.mimic:
            g(f"""
            v_cvt_pk_bf16_f32 v{U1}, v{U0}, v{U0}
            v_lshlrev_b32 v{U0}, 16, v{U1}
            """)
        g(f"v_mul_f32 v{U0}, v{U0}, v{U3}")
        if g.mimic:
            g(f"""
            v_cvt_pk_bf16_f32 v{U1}, v{U0}, v{U0}
            v_lshlrev_b32 v{U0}, 16, v{U1}
            """)
        g(f"""
        v_mov_b32 v{Y4}, 0
        v_mov_b32 v{Y4+1}, 0
        v_mov_b32 v{Y4+2}, 0
        v_mov_b32 v{Y4+3}, 0
        """)
        for f in range(8):
            for c in range(4):
                g(f"v_fmac_f32_dpp v{Y4+c}, v{U0}, v{WD+4*f+c} row_newbcast:{f} row_mask:0xf bank_mask:0xf")
        g(f"""
        s_lshl_b32 s28, s40, 11
        s_lshl_b32 s29, s4, 16
        s_add_u32 s28, s28, s29
        s_add_u32 s28, s28, {WS_YB + (2*layer+1)*8*65536}
        s_mov_b64 exec, s[36:37]
        """)
        g.pub(f"buffer_store_dwordx4 v[{Y4}:{Y4+3}], v{vCOL}, s[8:11], s28 offen")
        g("s_mov_b64 exec, -1")
        g(f"{lf}:")
        g.stamp(sb+3, W_VTS)
        if layer == 0:
            only(g, 2, lambda: x_gather(g, 1, 2))
            g.stamp(sb+4, W_VTS)
            g("s_barrier")
            lq = g.label("noq")
            g(f"""
            s_cmp_ge_u32 s35, 2
            s_cbranch_scc1 {lq}
            """)
            q_stage(g, 1, 2)
            g(f"{lq}:")
            g.stamp(sb+6, W_VTS)


def w_wave(g):
    g.ts_begin(W_TS)
    for idx in (0, 3, 4, 5):
        g.tsmap[idx] = g.tsfree.pop(0)
    g.stamp(0, W_VTS, 1)
    g(f"""
    s_sub_u32 s35, s3, 4
    v_cmp_gt_u32 s[36:37], 56, v0
    s_mul_i32 s28, s35, 448
    v_lshlrev_b32 v{vCOL}, 3, v0
    v_add_u32 v{vCOL}, s28, v{vCOL}
    v_lshrrev_b32 v{vXSW}, 1, v{vCOL}
    v_lshlrev_b32 v{vXSt}, 4, v0
    """)
    srd(g, 12, 64, 65, 896)
    srd(g, 20, 82, 83, 896)
    if "--dbgtime" in sys.argv:
        g("s_memrealtime s[90:91]")
        srd(g, 96, 84, 85, 256)
    lF = g.label("roleF"); lend = g.label("wend")
    g(f"""
    s_cmp_ge_u32 s5, 16
    s_cbranch_scc1 {lF}
    """)
    w_wave_R(g, lend)
    g(f"{lF}:")
    w_wave_F(g, lend)
    g(f"{lend}:")
    g.stamp(31, W_VTS, 1)
    dump_ts(g, W_VTS)
    g("s_endpgm")


HEADER = open("cdna_kernels/" + NAME + ".s.ref").read().split("; Override launch")[0]


def build(ts=False, mimic=True, sleep=0, thr=(3, 0, 6)):
    g = Gen(ts, mimic, sleep, thr)
    g.L.append(HEADER.rstrip("\n"))
    g.L.append(f"; @launch grid=(256,1,1) block=(512,1,1) lds={LDS_BYTES}")
    g.L.append('.amdgcn_target "amdgcn-amd-amdhsa--gfx950"')
    g.L.append(".text")
    g.L.append(f".globl {KNAME}")
    g.L.append(".p2align 8")
    g.L.append(f".type {KNAME},@function")
    g.L.append(f"{KNAME}:")
    PERM = ""
    if "--perm" in sys.argv:
        PERM = "s_lshr_b32 s4, s2, 5\ns_lshl_b32 s5, s2, 3\ns_and_b32 s5, s5, 0xff\ns_or_b32 s2, s4, s5"
    g(f"""
    s_cmp_ge_u32 s2, 256
    s_cbranch_scc1 L_exit
    s_load_dwordx16 s[64:79], s[0:1], 0
    s_load_dwordx8 s[80:87], s[0:1], 64
    v_lshrrev_b32 v1, 6, v0
    v_and_b32 v0, 63, v0
    v_readfirstlane_b32 s3, v1
    v_and_b32 v1, 15, v0
    v_lshrrev_b32 v2, 4, v0
    {PERM}
    s_and_b32 s4, s2, 7
    s_lshr_b32 s5, s2, 3
    s_mov_b32 s7, 0
    s_waitcnt lgkmcnt(0)
    """)
    srd(g, 8, 86, 87, WS_SIZE)
    g(f"""
    s_cmp_lg_u32 s3, 6
    s_cbranch_scc1 L_noreset
    v_mov_b32 v3, {L_TL + 8}
    v_mov_b32 v4, 0
    v_mov_b32 v5, 0
    ds_write_b64 v3, v[4:5]
    s_waitcnt lgkmcnt(0)
    L_noreset:
    s_load_dword s50, s[86:87], {WS_EPOCH}
    s_cmp_ge_u32 s3, 4
    s_cbranch_scc1 L_wwave
    """)
    a_wave(g)
    g("L_wwave:")
    w_wave(g)
    g("L_exit:")
    g("s_endpgm")
    g.L.append('.section .rodata,"a"')
    g.L.append(".p2align 6")
    g.L.append(f".amdhsa_kernel {KNAME}")
    for d in ["next_free_vgpr 256", "next_free_sgpr 102", "accum_offset 256", "group_segment_fixed_size 0",
              "kernarg_size 96", "user_sgpr_count 2", "user_sgpr_kernarg_segment_ptr 1",
              "system_sgpr_workgroup_id_x 1", "float_denorm_mode_32 3"]:
        g.L.append("  .amdhsa_" + d)
    g.L.append(".end_amdhsa_kernel")
    return "\n".join(g.L) + "\n"


if __name__ == "__main__":
    out = sys.argv[1] if len(sys.argv) > 1 else "cdna_kernels/" + NAME + ".s"
    ts = 3 if "--ts3" in sys.argv else 2 if "--ts" in sys.argv else (1 if "--ts1" in sys.argv else 0)
    mimic = "--mimic" in sys.argv
    sleep = int(sys.argv[sys.argv.index("--sleep")+1]) if "--sleep" in sys.argv else 0
    thr = tuple(int(x) for x in sys.argv[sys.argv.index("--thr")+1].split(",")) if "--thr" in sys.argv else (3, 0, 6)
    open(out, "w").write(build(ts, mimic, sleep, thr))
    print("wrote", out)
```

```python
import sys, math

NAME = "interleave_layers__sliding_block_cached__swiglu_ffn__decode"
KNAME = NAME + "_kernel"

WS_EPOCH = 0
WS_HB = 0x1000
WS_QB = 0x2000
WS_MLB = 0xA000
WS_ZB = 0x40000
WS_XB = 0x20000
WS_OB = 0x100000
WS_YB = 0x200000
WS_TS = 0x400000
WS_SIZE = 0x800000

L_XS = 0x0000
L_TL = 0x1000
L_OS = 0x1040
L_QS = 0x1400
L_OP = 0x2400
L_MLP = 0x4400
L_IMG = 0x4800
L_WO = 0xB800
LDS_BYTES = 0xB800 + 32*896

POLL_LIMIT = 20000
A_TS = list(range(52, 64, 2)) + list(range(88, 102, 2)) + list(range(64, 88, 2))
W_TS = list(range(88, 102, 2)) + list(range(64, 88, 2))
LOG2E = 1.4426950408889634


def f32hex(x):
    import struct
    return "0x%08x" % struct.unpack("<I", struct.pack("<f", x))[0]


class Gen:
    def __init__(self, ts=False, mimic=True, sleep=0, thr=(3, 0, 6)):
        self.sleep = sleep
        self.thr = thr
        self.qwait = '--noqwait' not in sys.argv
        self.thrR = tuple(int(x) for x in sys.argv[sys.argv.index('--thrR')+1].split(',')) if '--thrR' in sys.argv else (thr[0], thr[1])
        self.npipe = int(sys.argv[sys.argv.index('--npipe')+1]) if '--npipe' in sys.argv else 1
        self.ppgap = int(sys.argv[sys.argv.index('--ppgap')+1]) if '--ppgap' in sys.argv else 3
        self.early = int(sys.argv[sys.argv.index('--early')+1]) if '--early' in sys.argv else 2
        self.L = []
        self.ts = ts
        self.mimic = mimic
        self.uid = 0
        self.nts = 0

    def __call__(self, s):
        for line in s.strip("\n").split("\n"):
            self.L.append("    " + line.strip() if line.strip() and not line.strip().endswith(":") else line.strip())

    def label(self, base):
        self.uid += 1
        return f"L_{base}_{self.uid}"

    def nop(self, n):
        while n > 0:
            k = min(n, 16)
            self(f"s_nop {k-1}")
            n -= k

    def stamp(self, idx, vts, lvl=2):
        if not self.ts or lvl > self.ts:
            return
        if idx not in self.tsmap:
            self.tsmap[idx] = self.tsfree.pop(0)
        r = self.tsmap[idx]
        self(f"s_memrealtime s[{r}:{r+1}]")

    def ts_begin(self, regs):
        self.tsmap = {}
        self.tsfree = list(regs)
        if self.ts:
            for r in regs:
                if r >= 88:
                    self(f"s_mov_b32 s{r}, 0")

    def ts_zero_late(self):
        if self.ts:
            for r in range(64, 88, 2):
                self(f"s_mov_b32 s{r}, 0")

    def pub(self, store_txt):
        a = self.label("slow"); b = self.label("pubd")
        self(f"""
        s_cmp_eq_u32 s7, 0
        s_cbranch_scc1 {a}
        {store_txt}
        s_branch {b}
        {a}:
        {store_txt} sc1
        {b}:
        """)

    def poll(self, loads, check):
        a = self.label("poll"); b = self.label("polld")
        self("s_mov_b32 s34, 0")
        self(f"{a}:")
        loads()
        self("s_waitcnt vmcnt(0)")
        check()
        self(f"""
        s_cmp_eq_u64 vcc, 0
        s_cbranch_scc1 {b}
        {("s_sleep %d" % self.sleep) if self.sleep else ""}
        s_add_u32 s34, s34, 1
        s_cmp_lt_u32 s34, {POLL_LIMIT}
        s_cbranch_scc1 {a}
        {b}:
        """)

    def poll_pipe(self, load, nregs, sets, out, tmp):
        n = len(sets)
        top = self.label("pp"); done = self.label("ppd")
        hits = [self.label("pph") for _ in sets]
        self("s_mov_b32 s34, 0")
        for b in sets:
            load(b)
            if self.ppgap: self(f"s_sleep {self.ppgap}")
        self(f"{top}:")
        for k, b in enumerate(sets):
            self(f"s_waitcnt vmcnt({n-1})")
            self.sentinel_check(range(b, b+nregs), tmp)
            self(f"""
            s_cmp_eq_u64 vcc, 0
            s_cbranch_scc1 {hits[k]}
            """)
            load(b)
        self(f"""
        s_add_u32 s34, s34, 1
        s_cmp_lt_u32 s34, {POLL_LIMIT}
        s_cbranch_scc1 {top}
        s_waitcnt vmcnt(0)
        """)
        for k, b in enumerate(sets):
            self(f"{hits[k]}:")
            for r in range(nregs):
                self(f"v_mov_b32 v{out+r}, v{b+r}")
            if k < n-1:
                self(f"s_branch {done}")
        self(f"{done}:")

    def sentinel_check(self, regs, tmp):
        regs = list(regs)
        first = True
        while len(regs) > 0:
            if first:
                if len(regs) >= 3:
                    self(f"v_max3_u32 v{tmp}, v{regs[0]}, v{regs[1]}, v{regs[2]}"); regs = regs[3:]
                elif len(regs) == 2:
                    self(f"v_max_u32 v{tmp}, v{regs[0]}, v{regs[1]}"); regs = []
                else:
                    self(f"v_mov_b32 v{tmp}, v{regs[0]}"); regs = []
                first = False
            elif len(regs) >= 2:
                self(f"v_max3_u32 v{tmp}, v{tmp}, v{regs[0]}, v{regs[1]}"); regs = regs[2:]
            else:
                self(f"v_max_u32 v{tmp}, v{tmp}, v{regs[0]}"); regs = []
        self(f"v_cmp_eq_u32 vcc, -1, v{tmp}")


def srd(g, d, lo, hi, nbytes):
    g(f"""
    s_mov_b32 s{d}, s{lo}
    s_mov_b32 s{d+1}, s{hi}
    s_mov_b32 s{d+2}, {nbytes}
    s_mov_b32 s{d+3}, 0x00020000
    """)


def srd_off(g, d, lo, hi, soff, nbytes):
    g(f"""
    s_add_u32 s{d}, s{lo}, s{soff}
    s_addc_u32 s{d+1}, s{hi}, 0
    s_mov_b32 s{d+2}, {nbytes}
    s_mov_b32 s{d+3}, 0x00020000
    """)


def mfma(d, a, b, c):
    cs = "0" if c is None else f"v[{c}:{c+3}]"
    return f"v_mfma_f32_16x16x32_bf16 v[{d}:{d+3}], v[{a}:{a+3}], v[{b}:{b+3}], {cs}"


def a_wave(g):
    KA = 16; VB = 80; VL = 144
    QBR = 144; QG = 176; S0 = 184; S1 = 188; P = 192; PM = (196, 200); D0 = 204; D1 = 208; DL = 212; ONES = 216
    T0, T1, T2, T3 = 220, 221, 222, 223
    M2 = 224; E = 226
    CO = 234
    CM = 242
    VTS = 255
    vK, vV, vQG, vQSW, vQSR, vOPW, vMLW, vOPR, vPUB, vMLR = 3, 4, 5, 6, 7, 8, 9, 10, 11, 12
    g("; ---------------- A wave ----------------")
    g.ts_begin(A_TS)
    g.stamp(0, VTS, 1)
    g(f"""
    s_lshl_b32 s28, s4, 25
    s_lshl_b32 s29, s5, 16
    s_add_u32 s28, s28, s29
    s_lshl_b32 s29, s3, 14
    s_add_u32 s28, s28, s29
    s_add_u32 s28, s28, {61440*512}
    """)
    srd_off(g, 12, 66, 67, 28, 16384)
    srd_off(g, 16, 68, 69, 28, 16384)
    g(f"""
    v_lshlrev_b32 v{vK}, 9, v1
    v_lshl_add_u32 v{vK}, v2, 4, v{vK}
    v_lshlrev_b32 v{vV}, 11, v2
    v_lshl_add_u32 v{vV}, v1, 4, v{vV}
    s_movk_i32 s30, 0x2000
    s_barrier
    """)
    def kv_loads(TK, TV):
        cnt = 0
        for t in range(2):
            for j in range(8):
                r = KA + t*32 + j*4
                if TK and cnt >= 2*TK and cnt % 2 == 0: g(f"s_waitcnt vmcnt({2*TK-2})")
                g(f"buffer_load_dwordx4 v[{r}:{r+3}], v{vK}, s[12:15], {'s30' if t else '0'} offen offset:{j*64} nt")
                cnt += 1
        if g.qwait:
            lsp = g.label("qw"); lsd = g.label("qwd")
            g(f"""
            s_cmp_lt_u32 s5, 16
            s_cbranch_scc1 {lsd}
            v_mov_b32 v{T0}, {L_TL + 16}
            s_mov_b32 s34, 0
            {lsp}:
            ds_read_b64 v[{T2}:{T3}], v{T0}
            s_waitcnt lgkmcnt(0)
            v_and_b32 v{T2}, v{T2}, v{T3}
            s_nop 0
            v_readfirstlane_b32 s28, v{T2}
            s_cmp_eq_u32 s28, 1
            s_cbranch_scc1 {lsd}
            s_sleep 1
            s_add_u32 s34, s34, 1
            s_cmp_lt_u32 s34, {POLL_LIMIT*4}
            s_cbranch_scc1 {lsp}
            {lsd}:
            """)
        cnt = 0
        for t in range(2):
            for rr in range(4):
                for hf in range(2):
                    r = VL + (t*8 + rr*2 + hf)*4
                    if TV: g(f"s_waitcnt vmcnt({max(TV-1, 2*TK-2-cnt)})")
                    g(f"buffer_load_dwordx4 v[{r}:{r+3}], v{vV}, s[16:19], {'s30' if t else '0'} offen offset:{rr*512+hf*256} nt")
                    cnt += 1
    if g.thrR == (g.thr[0], g.thr[1]):
        kv_loads(g.thr[0], g.thr[1])
    else:
        lr = g.label("kvR"); ld = g.label("kvd")
        g(f"""
        s_cmp_lt_u32 s5, 16
        s_cbranch_scc1 {lr}
        """)
        kv_loads(g.thr[0], g.thr[1])
        g(f"s_branch {ld}")
        g(f"{lr}:")
        kv_loads(*g.thrR)
        g(f"{ld}:")
    g(f"""
    v_lshlrev_b32 v{vQG}, 4, v0
    s_lshl_b32 s28, s3, 10
    s_add_u32 s28, s28, {L_QS}
    v_lshlrev_b32 v{vQSW}, 3, v0
    v_add_u32 v{vQSW}, s28, v{vQSW}
    v_lshrrev_b32 v{T0}, 3, v1
    v_lshlrev_b32 v{vQSR}, 9, v{T0}
    v_lshl_add_u32 v{vQSR}, v2, 4, v{vQSR}
    v_add_u32 v{vQSR}, s28, v{vQSR}
    s_lshl_b32 s28, s3, 11
    s_add_u32 s28, s28, {L_OP}
    v_lshlrev_b32 v{vOPW}, 5, v0
    v_add_u32 v{vOPW}, s28, v{vOPW}
    s_lshl_b32 s28, s3, 4
    s_add_u32 s28, s28, {L_MLP}
    v_lshrrev_b32 v{T1}, 5, v0
    v_lshlrev_b32 v{vMLW}, 3, v{T1}
    v_add_u32 v{vMLW}, s28, v{vMLW}
    s_lshl_b32 s28, s3, 9
    v_lshlrev_b32 v{vPUB}, 3, v0
    v_add_u32 v{vPUB}, s28, v{vPUB}
    v_add_u32 v{vOPR}, {L_OP}, v{vPUB}
    s_lshr_b32 s28, s3, 1
    s_lshl_b32 s28, s28, 3
    s_add_u32 s28, s28, {L_MLP}
    v_mov_b32 v{vMLR}, s28
    v_cmp_eq_u32 s[36:37], v{T0}, v{T1}
    v_mov_b32 v{ONES}, 0x3f803f80
    v_mov_b32 v{ONES+1}, 0x3f803f80
    v_mov_b32 v{ONES+2}, 0x3f803f80
    v_mov_b32 v{ONES+3}, 0x3f803f80
    s_mov_b32 s38, {f32hex(LOG2E/16.0)}
    s_mov_b32 s39, 0x05040100
    s_mov_b32 s44, 0x07060302
    s_mov_b32 s40, 0x01010101
    s_mov_b32 s41, 0x01010101
    """)
    g.stamp(1, VTS)
    g("""s_waitcnt lgkmcnt(0)
    s_mul_i32 s6, s50, 0x9E3779B1
    s_add_u32 s6, s6, 0x7F4A7C15""")
    g("s_waitcnt vmcnt(0)")
    g.stamp(2, VTS)
    for hf in range(2):
        for t in range(2):
            for q in range(2):
                x = VL + (t*8 + (2*q)*2 + hf)*4
                y = VL + (t*8 + (2*q+1)*2 + hf)*4
                for d in range(4):
                    p = 2*t + q
                    g(f"v_perm_b32 v{VB + (hf*8 + 2*d)*4 + p}, v{y+d}, v{x+d}, s39")
                    g(f"v_perm_b32 v{VB + (hf*8 + 2*d + 1)*4 + p}, v{y+d}, v{x+d}, s44")
    for layer in range(2):
        sb = 3 + layer*8
        g(f"""
        s_lshl_b32 s28, s4, 11
        s_add_u32 s28, s28, {WS_QB + layer*8*2048}
        """)
        def loads():
            g(f"buffer_load_dwordx4 v[{QG}:{QG+3}], v{vQG}, s[8:11], s28 offen sc1")
            g(f"buffer_load_dwordx4 v[{QG+4}:{QG+7}], v{vQG}, s[8:11], s28 offen offset:1024 sc1")
        def check():
            g(f"""
            v_xor_b32 v{T0}, s6, v{QG+1}
            v_xor_b32 v{T1}, s6, v{QG+3}
            v_xor_b32 v{T2}, s6, v{QG+5}
            v_xor_b32 v{T3}, s6, v{QG+7}
            v_or3_b32 v{T0}, v{T0}, v{T1}, v{T2}
            v_or_b32 v{T0}, v{T0}, v{T3}
            v_cmp_ne_u32 vcc, 0, v{T0}
            """)
        g.poll(loads, check)
        g.stamp(sb, VTS)
        if layer == 0:
            g("s_barrier")
        g(f"""
        ds_write2_b32 v{vQSW}, v{QG}, v{QG+2} offset0:0 offset1:1
        ds_write2_b32 v{vQSW}, v{QG+4}, v{QG+6} offset0:128 offset1:129
        s_waitcnt lgkmcnt(0)
        """)
        for j in range(8):
            g(f"ds_read_b128 v[{QBR+4*j}:{QBR+4*j+3}], v{vQSR} offset:{j*64}")
        for j in range(8):
            g(f"s_waitcnt lgkmcnt({7-j})")
            g(mfma(S0, KA + j*4, QBR + 4*j, None if j == 0 else S0))
            g(mfma(S1, KA + 32 + j*4, QBR + 4*j, None if j == 0 else S1))
        g.nop(8)
        g(f"""
        v_max3_f32 v{M2}, v{S0}, v{S0+1}, v{S0+2}
        v_max3_f32 v{M2}, v{M2}, v{S0+3}, v{S1}
        v_max3_f32 v{M2}, v{M2}, v{S1+1}, v{S1+2}
        v_max_f32 v{M2}, v{M2}, v{S1+3}
        v_mov_b32 v{T0}, v{M2}
        s_nop 1
        v_permlane16_swap_b32 v{M2}, v{T0}
        s_nop 1
        v_max_f32 v{M2}, v{M2}, v{T0}
        v_mov_b32 v{T0}, v{M2}
        s_nop 1
        v_permlane32_swap_b32 v{M2}, v{T0}
        s_nop 1
        v_max_f32 v{M2}, v{M2}, v{T0}
        v_mul_f32 v{M2}, s38, v{M2}
        """)
        for k in range(8):
            g(f"v_fma_f32 v{E+k}, v{S0+k}, s38, -v{M2}")
        for k in range(8):
            g(f"v_exp_f32 v{E+k}, v{E+k}")
        g(f"""
        v_mov_b32_dpp v{T0}, v{M2} row_ror:8 row_mask:0xf bank_mask:0xf
        v_cvt_pk_bf16_f32 v{P}, v{E}, v{E+1}
        v_cvt_pk_bf16_f32 v{P+1}, v{E+2}, v{E+3}
        v_cvt_pk_bf16_f32 v{P+2}, v{E+4}, v{E+5}
        v_cvt_pk_bf16_f32 v{P+3}, v{E+6}, v{E+7}
        v_cndmask_b32 v{M2}, v{T0}, v{M2}, s[36:37]
        s_mov_b64 s[42:43], s[40:41]
        """)
        def pm(v):
            b = PM[v & 1]
            for k in range(4):
                g(f"v_cndmask_b32 v{b+k}, 0, v{P+k}, s[42:43]")
            g("s_lshl_b64 s[42:43], s[42:43], 1")
        pm(0)
        g(mfma(DL, P, ONES, None))
        g("s_nop 0")
        for v in range(8):
            b = PM[v & 1]
            hf = v >> 2; tt = v & 3
            g(mfma(D0, b, VB + (hf*8 + tt)*4, None if v == 0 else D0))
            g(mfma(D1, b, VB + (hf*8 + tt + 4)*4, None if v == 0 else D1))
            if v < 7:
                pm(v + 1)
                g("s_nop 0")
        g(f"v_mov_b32 v{M2+1}, v{DL}")
        g.nop(8)
        g(f"""
        ds_write_b128 v{vOPW}, v[{D0}:{D0+3}]
        ds_write_b128 v{vOPW}, v[{D1}:{D1+3}] offset:16
        s_mov_b64 s[32:33], exec
        s_mov_b32 exec_lo, 1
        s_mov_b32 exec_hi, 1
        ds_write_b64 v{vMLW}, v[{M2}:{M2+1}]
        s_mov_b64 exec, s[32:33]
        s_waitcnt lgkmcnt(0)
        """)
        g.stamp(sb+1, VTS)
        g("s_barrier")
        for a in range(4):
            g(f"ds_read_b64 v[{CM+2*a}:{CM+2*a+1}], v{vMLR} offset:{a*16}")
        for a in range(4):
            g(f"ds_read_b64 v[{CO+2*a}:{CO+2*a+1}], v{vOPR} offset:{a*2048}")
        if layer == 0:
            g(f"""
            v_mov_b32 v{T0}, {L_TL}
            ds_read_b32 v{T1}, v{T0} offset:4
            """)
            g("s_waitcnt lgkmcnt(0)")
            g(f"v_readfirstlane_b32 s7, v{T1}")
        else:
            g("s_waitcnt lgkmcnt(4)")
        g(f"""
        v_max3_f32 v{M2}, v{CM}, v{CM+2}, v{CM+4}
        v_max_f32 v{M2}, v{M2}, v{CM+6}
        v_sub_f32 v{E}, v{CM}, v{M2}
        v_sub_f32 v{E+1}, v{CM+2}, v{M2}
        v_sub_f32 v{E+2}, v{CM+4}, v{M2}
        v_sub_f32 v{E+3}, v{CM+6}, v{M2}
        v_exp_f32 v{E}, v{E}
        v_exp_f32 v{E+1}, v{E+1}
        v_exp_f32 v{E+2}, v{E+2}
        v_exp_f32 v{E+3}, v{E+3}
        s_waitcnt lgkmcnt(0)
        v_mul_f32 v{T0}, v{E}, v{CO}
        v_mul_f32 v{T1}, v{E}, v{CO+1}
        v_mul_f32 v{M2+1}, v{E}, v{CM+1}
        """)
        for a in range(1, 4):
            g(f"""
            v_fmac_f32 v{T0}, v{E+a}, v{CO+2*a}
            v_fmac_f32 v{T1}, v{E+a}, v{CO+2*a+1}
            v_fmac_f32 v{M2+1}, v{E+a}, v{CM+2*a+1}
            """)
        g(f"""
        s_lshl_b32 s28, s4, 16
        s_lshl_b32 s29, s5, 11
        s_add_u32 s28, s28, s29
        s_add_u32 s28, s28, {WS_OB + layer*8*65536}
        """)
        g.pub(f"buffer_store_dwordx2 v[{T0}:{T1}], v{vPUB}, s[8:11], s28 offen")
        lab = g.label("noml")
        g(f"""
        s_bitcmp1_b32 s3, 0
        s_cbranch_scc1 {lab}
        s_lshl_b32 s28, s4, 9
        s_lshl_b32 s29, s5, 4
        s_add_u32 s28, s28, s29
        s_lshl_b32 s29, s3, 2
        s_add_u32 s28, s28, s29
        s_add_u32 s28, s28, {WS_MLB + layer*8*512}
        v_mov_b32 v{T2}, 0
        s_mov_b64 s[32:33], exec
        s_mov_b64 exec, 1
        """)
        g.pub(f"buffer_store_dwordx2 v[{M2}:{M2+1}], v{T2}, s[8:11], s28 offen")
        g(f"""
        s_mov_b64 exec, s[32:33]
        {lab}:
        """)
        g.stamp(sb+2, VTS)
        if layer == 0:
            g("s_barrier\ns_barrier\ns_barrier\ns_barrier")
    dump_ts(g, VTS)
    g("s_endpgm")


def dump_ts(g, vts):
    if not g.ts:
        return
    g(f"""
    s_mov_b64 exec, -1
    s_waitcnt lgkmcnt(0)
    v_mov_b32 v{vts}, 0
    """)
    for idx, r in g.tsmap.items():
        g(f"v_writelane_b32 v{vts}, s{r}, {idx}")
    g(f"""
    s_lshl_b32 s28, s2, 11
    s_lshl_b32 s29, s3, 8
    s_add_u32 s28, s28, s29
    s_add_u32 s28, s28, {WS_TS}
    v_lshlrev_b32 v1, 2, v0
    buffer_store_dword v{vts}, v1, s[8:11], s28 offen
    """)


WB = 16; WO = 72; WQB = 72; WD = 128; XA = 176
ACC = 232; CS = 236; CSQ = 237; vTRQ = 238; W_ONES = 240; XST = 244; SS1 = 248; SS2 = 249
U0, U1, U2, U3, U4 = 250, 251, 252, 253, 254
W_VTS = 255
vCOL, vXSW, vXA_, vXSt, vTR, vHA, vHM, vRB, vZW = 3, 4, 5, 6, 7, 8, 9, 12, 13
YP = 14
vZD, vZR = 10, 11
XR = 16
Y4 = 244


def gemv16(g, xs_off, WB, CS, out):
    g(f"""
    v_mov_b32 v{XST}, 0
    v_mov_b32 v{XST+1}, 0
    v_mov_b32 v{XST+2}, 0
    v_mov_b32 v{XST+3}, 0
    s_mov_b64 exec, s[36:37]
    ds_read_b128 v[{XST}:{XST+3}], v{vXSt} offset:{xs_off}
    s_mov_b64 exec, -1
    """)
    for j in range(14):
        g(f"ds_read_b128 v[{XA+4*j}:{XA+4*j+3}], v{vXA_} offset:{xs_off + j*64}")
    dpp = "row_mask:0xf bank_mask:0xf bound_ctrl:0"
    side = []
    side.append([f"v_dot2_f32_bf16 v{SS1}, v{XST}, v{W_ONES}, 0",
                 f"v_dot2_f32_bf16 v{SS2}, v{XST}, v{XST}, 0",
                 f"v_dot2_f32_bf16 v{SS1}, v{XST+1}, v{W_ONES}, v{SS1}"])
    side.append([f"v_dot2_f32_bf16 v{SS2}, v{XST+1}, v{XST+1}, v{SS2}",
                 f"v_dot2_f32_bf16 v{SS1}, v{XST+2}, v{W_ONES}, v{SS1}",
                 f"v_dot2_f32_bf16 v{SS2}, v{XST+2}, v{XST+2}, v{SS2}"])
    side.append([f"v_dot2_f32_bf16 v{SS1}, v{XST+3}, v{W_ONES}, v{SS1}",
                 f"v_dot2_f32_bf16 v{SS2}, v{XST+3}, v{XST+3}, v{SS2}",
                 "s_nop 2"])
    for sh in (1, 2, 4, 8):
        side.append([f"v_add_f32_dpp v{SS1}, v{SS1}, v{SS1} row_shr:{sh} {dpp}",
                     f"v_add_f32_dpp v{SS2}, v{SS2}, v{SS2} row_shr:{sh} {dpp}",
                     "s_nop 0"])
    side.append([f"v_add_f32_dpp v{SS1}, v{SS1}, v{SS1} row_bcast:15 row_mask:0xa bank_mask:0xf",
                 f"v_add_f32_dpp v{SS2}, v{SS2}, v{SS2} row_bcast:15 row_mask:0xa bank_mask:0xf",
                 "s_nop 0"])
    side.append([f"v_add_f32_dpp v{SS1}, v{SS1}, v{SS1} row_bcast:31 row_mask:0xc bank_mask:0xf",
                 f"v_add_f32_dpp v{SS2}, v{SS2}, v{SS2} row_bcast:31 row_mask:0xc bank_mask:0xf",
                 "s_nop 0"])
    side.append([f"v_readlane_b32 s46, v{SS1}, 63",
                 f"v_readlane_b32 s47, v{SS2}, 63",
                 f"v_mov_b32 v{U0}, s45",
                 "s_nop 0"])
    side.append([f"v_mul_f32 v{U1}, s46, v{U0}",
                 f"v_mul_f32 v{U2}, s47, v{U0}",
                 f"v_fma_f32 v{U2}, -v{U1}, v{U1}, v{U2}",
                 f"v_max_f32 v{U2}, 0, v{U2}"])
    if g.mimic:
        side.append([f"v_cvt_pk_bf16_f32 v{U3}, v{U1}, v{U2}",
                     f"v_lshlrev_b32 v{U1}, 16, v{U3}",
                     f"v_and_b32 v{U2}, 0xffff0000, v{U3}",
                     f"v_add_f32 v{U2}, s48, v{U2}"])
        side.append([f"v_cvt_pk_bf16_f32 v{U3}, v{U2}, v{U2}",
                     f"v_lshlrev_b32 v{U2}, 16, v{U3}",
                     f"v_sqrt_f32 v{U2}, v{U2}",
                     "s_nop 0"])
        side.append([f"v_cvt_pk_bf16_f32 v{U3}, v{U2}, v{U2}",
                     f"v_lshlrev_b32 v{U2}, 16, v{U3}",
                     f"v_rcp_f32 v{U2}, v{U2}"])
    else:
        side.append([f"v_add_f32 v{U2}, s48, v{U2}",
                     f"v_rsq_f32 v{U2}, v{U2}"])
    assert len(side) <= 14
    g("s_waitcnt lgkmcnt(14)")
    for j in range(14):
        g(f"s_waitcnt lgkmcnt({13-j})")
        g(mfma(ACC, XA + 4*j, WB + 4*j, None if j == 0 else ACC))
        if j < len(side):
            for s in side[j]:
                g(s)
    g.nop(8)
    g(f"""
    v_fma_f32 v{out}, -v{U1}, v{CS}, v{ACC}
    v_mul_f32 v{out}, v{out}, v{U2}
    """)


def stats_serial(g):
    dpp = "row_mask:0xf bank_mask:0xf bound_ctrl:0"
    g(f"v_dot2_f32_bf16 v{SS1}, v{XST}, v{W_ONES}, 0")
    g(f"v_dot2_f32_bf16 v{SS2}, v{XST}, v{XST}, 0")
    for k in range(1, 4):
        g(f"v_dot2_f32_bf16 v{SS1}, v{XST+k}, v{W_ONES}, v{SS1}")
        g(f"v_dot2_f32_bf16 v{SS2}, v{XST+k}, v{XST+k}, v{SS2}")
    g("s_nop 3")
    for sh in (1, 2, 4, 8):
        g(f"v_add_f32_dpp v{SS1}, v{SS1}, v{SS1} row_shr:{sh} {dpp}")
        g(f"v_add_f32_dpp v{SS2}, v{SS2}, v{SS2} row_shr:{sh} {dpp}")
        g("s_nop 1")
    for bc, rm in ((15, "0xa"), (31, "0xc")):
        g(f"v_add_f32_dpp v{SS1}, v{SS1}, v{SS1} row_bcast:{bc} row_mask:{rm} bank_mask:0xf")
        g(f"v_add_f32_dpp v{SS2}, v{SS2}, v{SS2} row_bcast:{bc} row_mask:{rm} bank_mask:0xf")
        g("s_nop 1")
    g(f"""
    v_readlane_b32 s46, v{SS1}, 63
    v_readlane_b32 s47, v{SS2}, 63
    v_mov_b32 v{U0}, s45
    s_nop 1
    v_mul_f32 v{U1}, s46, v{U0}
    v_mul_f32 v{U2}, s47, v{U0}
    v_fma_f32 v{U2}, -v{U1}, v{U1}, v{U2}
    v_max_f32 v{U2}, 0, v{U2}
    """)
    if g.mimic:
        g(f"""
        v_cvt_pk_bf16_f32 v{U3}, v{U1}, v{U2}
        v_lshlrev_b32 v{U1}, 16, v{U3}
        v_and_b32 v{U2}, 0xffff0000, v{U3}
        v_add_f32 v{U2}, s48, v{U2}
        v_cvt_pk_bf16_f32 v{U3}, v{U2}, v{U2}
        v_lshlrev_b32 v{U2}, 16, v{U3}
        v_sqrt_f32 v{U2}, v{U2}
        s_nop 0
        v_cvt_pk_bf16_f32 v{U3}, v{U2}, v{U2}
        v_lshlrev_b32 v{U2}, 16, v{U3}
        v_rcp_f32 v{U2}, v{U2}
        s_nop 0
        """)
    else:
        g(f"""
        v_add_f32 v{U2}, s48, v{U2}
        v_rsq_f32 v{U2}, v{U2}
        s_nop 0
        """)


def gemv16_plain(g, xs_off, wb, out):
    for j in range(14):
        g(f"ds_read_b128 v[{XA+4*j}:{XA+4*j+3}], v{vXA_} offset:{xs_off + j*64}")
    for j in range(14):
        g(f"s_waitcnt lgkmcnt({13-j})")
        g(mfma(ACC, XA + 4*j, wb + 4*j, None if j == 0 else ACC))
    g.nop(8)
    g(f"v_mov_b32 v{out}, v{ACC}")


def tr_reads(g, wb, vtr):
    for j in range(14):
        g(f"ds_read_b64_tr_b16 v[{wb+4*j}:{wb+4*j+1}], v{vtr} offset:{j*1024}")
        g(f"ds_read_b64_tr_b16 v[{wb+4*j+2}:{wb+4*j+3}], v{vtr} offset:{j*1024 + 128}")
        if j % 4 == 3:
            g("s_waitcnt lgkmcnt(0)")
    g("s_waitcnt lgkmcnt(0)")


def colsum(g, wb, cs):
    for j in range(14):
        g(mfma(ACC, W_ONES, wb + 4*j, None if j == 0 else ACC))
    g.nop(8)
    g(f"v_mov_b32 v{cs}, v{ACC}")


def load_WB(g, wb=WB, cs=CS, vtr=vTR):
    for j in range(14):
        g(f"ds_read_b64_tr_b16 v[{wb+4*j}:{wb+4*j+1}], v{vtr} offset:{j*1024}")
        g(f"ds_read_b64_tr_b16 v[{wb+4*j+2}:{wb+4*j+3}], v{vtr} offset:{j*1024 + 128}")
        if j % 4 == 3:
            g("s_waitcnt lgkmcnt(0)")
    g("s_waitcnt lgkmcnt(0)")
    for j in range(14):
        g(mfma(ACC, W_ONES, wb + 4*j, None if j == 0 else ACC))
    g.nop(8)
    g(f"v_mov_b32 v{cs}, v{ACC}")


def q_stage(g, layer, xs_idx):
    if layer == 0:
        gemv16_plain(g, L_XS + xs_idx*1024, WQB, U4)
    else:
        gemv16(g, L_XS + xs_idx*1024, WQB, CSQ, U4)
    g(f"""
    s_nop 1
    v_mov_b32_dpp v{U3}, v{U4} quad_perm:[1,0,3,2] row_mask:0xf bank_mask:0xf
    v_mov_b32 v{YP+1}, s6
    v_cvt_pk_bf16_f32 v{YP}, v{U4}, v{U3}
    v_lshlrev_b32 v{U0}, 2, v0
    s_lshl_b32 s28, s4, 11
    s_lshl_b32 s29, s40, 6
    s_add_u32 s28, s28, s29
    s_add_u32 s28, s28, {WS_QB + layer*8*2048}
    s_mov_b64 exec, 0x5555
    """)
    st = f"buffer_store_dwordx2 v[{YP}:{YP+1}], v{U0}, s[8:11], s28 offen"
    if layer == 0:
        g(st + " sc1")
    else:
        g.pub(st)
    g("s_mov_b64 exec, -1")


def reducer(g, stage, nprod):
    lab = g.label("nored")
    g(f"""
    s_cmp_ge_u32 s5, 14
    s_cbranch_scc1 {lab}
    s_lshl_b32 s28, s4, 16
    s_lshl_b32 s29, s5, 7
    s_add_u32 s28, s28, s29
    s_add_u32 s28, s28, {WS_YB + stage*8*65536}
    s_add_u32 s29, s28, 16384
    s_add_u32 s30, s28, 32768
    s_add_u32 s31, s28, 49152
    """)
    R = XA
    if nprod == 28:
        for k in range(4):
            g(f"v_mov_b32 v{R+12+k}, 0")
    def loads():
        for u in range(2 if nprod == 16 else 3):
            g(f"buffer_load_dwordx4 v[{R+4*u}:{R+4*u+3}], v{vRB}, s[8:11], s{28+u} offen sc1")
        if nprod == 28:
            g("s_mov_b32 exec_lo, 0x00ff00ff\ns_mov_b32 exec_hi, 0x00ff00ff")
            g(f"buffer_load_dwordx4 v[{R+12}:{R+15}], v{vRB}, s[8:11], s31 offen sc1")
            g("s_mov_b64 exec, -1")
    def check():
        g.sentinel_check(range(R, R + (8 if nprod == 16 else 16)), U0)
    g.poll(loads, check)
    g.stamp(24 + stage, W_VTS, 3)
    for k in range(4):
        g(f"v_add_f32 v{R+k}, v{R+k}, v{R+4+k}")
        if nprod == 28:
            g(f"v_add_f32 v{R+8+k}, v{R+8+k}, v{R+12+k}")
    if nprod == 28:
        for k in range(4):
            g(f"v_add_f32 v{R+k}, v{R+k}, v{R+8+k}")
    g("s_nop 0")
    for sh in (2, 4, 8):
        for k in range(4):
            g(f"v_add_f32_dpp v{R+k}, v{R+k}, v{R+k} row_ror:{sh} row_mask:0xf bank_mask:0xf")
    g(f"""
    s_lshl_b32 s28, s4, 7
    s_lshl_b32 s29, s5, 10
    s_add_u32 s28, s28, s29
    s_add_u32 s28, s28, {WS_ZB + stage*8*16384}
    buffer_store_dwordx4 v[{R}:{R+3}], v{vZD}, s[8:11], s28 offen sc1
    s_lshl_b32 s28, s4, 14
    s_add_u32 s28, s28, s29
    s_add_u32 s28, s28, {WS_ZB + stage*8*16384}
    """)
    if stage == 3:
        g(f"""
        s_cmp_lg_u32 s4, 0
        s_cbranch_scc1 {lab}
        """)
    R2 = XA + 16
    if g.npipe > 1:
        base = 24 + (stage & 1)*16
        g.poll_pipe(lambda b: g(f"buffer_load_dwordx4 v[{b}:{b+3}], v{vZR}, s[8:11], s28 offen sc1"), 4,
                    [base + 4*k for k in range(g.npipe)], R2, U0)
        g("s_nop 1")
    else:
        def loads2():
            g(f"buffer_load_dwordx4 v[{R2}:{R2+3}], v{vZR}, s[8:11], s28 offen sc1")
        def check2():
            g.sentinel_check(range(R2, R2+4), U0)
        g.poll(loads2, check2)
    for sh in (2, 4, 8):
        for k in range(4):
            g(f"v_add_f32_dpp v{R2+k}, v{R2+k}, v{R2+k} row_ror:{sh} row_mask:0xf bank_mask:0xf")
    if g.mimic:
        g(f"""
        v_cvt_pk_bf16_f32 v{U0}, v{R2}, v{R2+1}
        v_cvt_pk_bf16_f32 v{U1}, v{R2+2}, v{R2+3}
        v_lshlrev_b32 v{R2}, 16, v{U0}
        v_and_b32 v{R2+1}, 0xffff0000, v{U0}
        v_lshlrev_b32 v{R2+2}, 16, v{U1}
        v_and_b32 v{R2+3}, 0xffff0000, v{U1}
        """)
    g(f"""
    v_pk_add_f32 v[{XR}:{XR+1}], v[{XR}:{XR+1}], v[{R2}:{R2+1}]
    v_pk_add_f32 v[{XR+2}:{XR+3}], v[{XR+2}:{XR+3}], v[{R2+2}:{R2+3}]
    v_cvt_pk_bf16_f32 v{YP}, v{XR}, v{XR+1}
    v_cvt_pk_bf16_f32 v{YP+1}, v{XR+2}, v{XR+3}
    v_lshrrev_b32 v{U0}, 1, v{vZW}
    s_mov_b32 exec_lo, 0x00030003
    s_mov_b32 exec_hi, 0x00030003
    """)
    if stage < 3:
        g(f"""
        s_lshl_b32 s28, s4, 10
        s_lshl_b32 s29, s5, 6
        s_add_u32 s28, s28, s29
        s_add_u32 s28, s28, {WS_XB + stage*8*1024}
        """)
        g.pub(f"buffer_store_dwordx2 v[{YP}:{YP+1}], v{U0}, s[8:11], s28 offen")
        g(f"""
        s_mov_b64 exec, -1
        v_lshlrev_b32 v{XR}, 16, v{YP}
        v_and_b32 v{XR+1}, 0xffff0000, v{YP}
        v_lshlrev_b32 v{XR+2}, 16, v{YP+1}
        v_and_b32 v{XR+3}, 0xffff0000, v{YP+1}
        """)
    else:
        g(f"""
        s_lshl_b32 s28, s5, 6
        buffer_store_dwordx2 v[{YP}:{YP+1}], v{U0}, s[20:23], s28 offen
        s_mov_b64 exec, -1
        s_cmp_lg_u32 s2, 0
        s_cbranch_scc1 {lab}
        s_add_u32 s50, s50, 1
        v_mov_b32 v{U1}, s50
        v_mov_b32 v{U0}, 0
        s_mov_b64 exec, 1
        buffer_store_dword v{U1}, v{U0}, s[8:11], 0 offen sc1
        s_mov_b64 exec, -1
        """)
        if "--dbgtime" in sys.argv:
            g(f"""
            s_memrealtime s[92:93]
            s_waitcnt lgkmcnt(0)
            s_sub_u32 s92, s92, s90
            v_mov_b32 v{U1}, s92
            s_mov_b64 exec, 1
            buffer_store_dword v{U1}, v{U0}, s[96:99], 0 offen
            s_mov_b64 exec, -1
            """)
    g(f"{lab}:")


def x_gather(g, stage, xs_idx):
    R = XA
    g(f"""
    s_lshl_b32 s28, s4, 10
    s_add_u32 s28, s28, {WS_XB + stage*8*1024}
    s_mov_b64 exec, s[36:37]
    """)
    def loads():
        g(f"buffer_load_dwordx4 v[{R}:{R+3}], v{vXSt}, s[8:11], s28 offen sc1")
    def check():
        g.sentinel_check(range(R, R+4), U0)
    g.poll(loads, check)
    g(f"""
    ds_write_b128 v{vXSt}, v[{R}:{R+3}] offset:{L_XS + xs_idx*1024}
    s_mov_b64 exec, -1
    s_waitcnt lgkmcnt(0)
    """)


def pub_y(g, stage):
    g(f"""
    s_lshl_b32 s28, s4, 16
    s_lshl_b32 s29, s5, 11
    s_add_u32 s28, s28, s29
    s_add_u32 s28, s28, {WS_YB + stage*8*65536}
    s_mov_b64 exec, s[36:37]
    """)
    g.pub(f"buffer_store_dwordx2 v[{YP}:{YP+1}], v{vCOL}, s[8:11], s28 offen")
    g("s_mov_b64 exec, -1")


def hop_a(g, layer):
    R = XA
    g(f"""
    s_lshl_b32 s28, s4, 16
    s_lshl_b32 s29, s33, 6
    s_add_u32 s28, s28, s29
    s_add_u32 s28, s28, {WS_OB + layer*8*65536}
    s_add_u32 s29, s28, 32768
    s_lshl_b32 s30, s4, 9
    s_lshr_b32 s31, s33, 4
    s_lshl_b32 s31, s31, 3
    s_add_u32 s30, s30, s31
    s_add_u32 s30, s30, {WS_MLB + layer*8*512}
    """)
    def loads():
        g(f"buffer_load_dwordx2 v[{R+8}:{R+9}], v{vHM}, s[8:11], s30 offen sc1")
        g(f"buffer_load_dwordx2 v[{R+10}:{R+11}], v{vHM}, s[8:11], s30 offen offset:256 sc1")
        g(f"buffer_load_dwordx4 v[{R}:{R+3}], v{vHA}, s[8:11], s28 offen sc1")
        g(f"buffer_load_dwordx4 v[{R+4}:{R+7}], v{vHA}, s[8:11], s29 offen sc1")
    def check():
        g.sentinel_check(range(R, R+12), U0)
    g.poll(loads, check)
    g(f"v_max_f32 v{U0}, v{R+8}, v{R+10}")
    for sh in (1, 2, 4, 8):
        g("s_nop 1")
        g(f"v_max_f32_dpp v{U0}, v{U0}, v{U0} row_ror:{sh} row_mask:0xf bank_mask:0xf")
    g(f"""
    v_sub_f32 v{U1}, v{R+8}, v{U0}
    v_sub_f32 v{U2}, v{R+10}, v{U0}
    v_exp_f32 v{U1}, v{U1}
    v_exp_f32 v{U2}, v{U2}
    s_nop 0
    v_mul_f32 v{U3}, v{U1}, v{R+9}
    v_mul_f32 v{R}, v{U1}, v{R}
    v_mul_f32 v{R+1}, v{U1}, v{R+1}
    v_mul_f32 v{R+2}, v{U1}, v{R+2}
    v_mul_f32 v{R+3}, v{U1}, v{R+3}
    v_fmac_f32 v{U3}, v{U2}, v{R+11}
    v_fmac_f32 v{R}, v{U2}, v{R+4}
    v_fmac_f32 v{R+1}, v{U2}, v{R+5}
    v_fmac_f32 v{R+2}, v{U2}, v{R+6}
    v_fmac_f32 v{R+3}, v{U2}, v{R+7}
    """)
    for sh in (1, 2, 4, 8):
        for r in (U3, R, R+1, R+2, R+3):
            g(f"v_add_f32_dpp v{r}, v{r}, v{r} row_ror:{sh} row_mask:0xf bank_mask:0xf")
    g(f"""
    v_rcp_f32 v{U3}, v{U3}
    s_lshl_b32 s28, s35, 6
    v_lshl_add_u32 v{U0}, v2, 4, s28
    v_mul_f32 v{R}, v{U3}, v{R}
    v_mul_f32 v{R+1}, v{U3}, v{R+1}
    v_mul_f32 v{R+2}, v{U3}, v{R+2}
    v_mul_f32 v{R+3}, v{U3}, v{R+3}
    """)
    if g.mimic:
        g(f"""
        v_cvt_pk_bf16_f32 v{U1}, v{R}, v{R+1}
        v_cvt_pk_bf16_f32 v{U2}, v{R+2}, v{R+3}
        v_lshlrev_b32 v{R}, 16, v{U1}
        v_and_b32 v{R+1}, 0xffff0000, v{U1}
        v_lshlrev_b32 v{R+2}, 16, v{U2}
        v_and_b32 v{R+3}, 0xffff0000, v{U2}
        """)
    g(f"""
    s_mov_b32 exec_lo, 0x00010001
    s_mov_b32 exec_hi, 0x00010001
    ds_write_b128 v{U0}, v[{R}:{R+3}] offset:{L_OS}
    s_mov_b64 exec, -1
    s_waitcnt lgkmcnt(0)
    """)


TCALC = """
s_waitcnt lgkmcnt(0)
s_mul_i32 s6, s50, 0x9E3779B1
s_add_u32 s6, s6, 0x7F4A7C15
"""


def addr_setup(g):
    g(f"""
    v_lshlrev_b32 v{vXA_}, 4, v2
    v_lshrrev_b32 v{U0}, 2, v1
    v_lshl_add_u32 v{U0}, v2, 3, v{U0}
    v_lshlrev_b32 v{vTR}, 5, v{U0}
    v_and_b32 v{U0}, 3, v1
    v_lshl_add_u32 v{vTR}, v{U0}, 3, v{vTR}
    s_mul_i32 s28, s32, 14336
    s_add_u32 s28, s28, {L_IMG}
    v_add_u32 v{vTR}, s28, v{vTR}
    v_lshlrev_b32 v{vHA}, 11, v1
    v_lshl_add_u32 v{vHA}, v2, 4, v{vHA}
    v_lshlrev_b32 v{vHM}, 4, v1
    v_and_b32 v{U0}, 1, v1
    v_lshl_add_u32 v{U0}, v2, 1, v{U0}
    v_lshlrev_b32 v{vZW}, 4, v{U0}
    v_lshrrev_b32 v{U1}, 1, v1
    v_lshl_add_u32 v{vRB}, v{U1}, 11, v{vZW}
    v_lshl_add_u32 v{vZD}, v{U1}, 14, v{vZW}
    v_lshl_add_u32 v{vZR}, v{U1}, 7, v{vZW}
    v_mov_b32 v{W_ONES}, 0x3f803f80
    v_mov_b32 v{W_ONES+1}, 0x3f803f80
    v_mov_b32 v{W_ONES+2}, 0x3f803f80
    v_mov_b32 v{W_ONES+3}, 0x3f803f80
    s_mov_b32 s45, {f32hex(1.0/448.0)}
    s_mov_b32 s48, {f32hex(1e-5)}
    s_mov_b32 s49, {f32hex(-LOG2E)}
    """)


def clears(g, role):
    g(f"""
    v_mov_b32 v{XA}, -1
    v_mov_b32 v{XA+1}, -1
    v_mov_b32 v{XA+2}, -1
    v_mov_b32 v{XA+3}, -1
    s_lshl_b32 s28, s4, 16
    s_lshl_b32 s29, s5, 11
    s_add_u32 s28, s28, s29
    """)
    def st2k(sreg):
        g(f"buffer_store_dwordx4 v[{XA}:{XA+3}], v{vXSt}, s[8:11], {sreg} offen sc1")
        g(f"buffer_store_dwordx4 v[{XA}:{XA+3}], v{vXSt}, s[8:11], {sreg} offen offset:1024 sc1")
    for l in range(2):
        g(f"s_add_u32 s29, s28, {WS_OB + l*8*65536}")
        st2k("s29")
    if role == "R":
        for st in (0, 2):
            g(f"s_add_u32 s29, s28, {WS_YB + st*8*65536}")
            st2k("s29")
    else:
        ly = g.label("noy")
        g(f"""
        s_cmp_ge_u32 s5, 30
        s_cbranch_scc1 {ly}
        s_sub_u32 s30, s5, 16
        s_lshl_b32 s30, s30, 12
        s_lshl_b32 s31, s4, 16
        s_add_u32 s30, s30, s31
        """)
        for st in (1, 3):
            for t in range(2):
                g(f"s_add_u32 s29, s30, {WS_YB + st*8*65536 + t*2048}")
                st2k("s29")
        g(f"{ly}:")
    g(f"""
    s_lshl_b32 s28, s4, 9
    s_lshl_b32 s29, s5, 4
    s_add_u32 s28, s28, s29
    s_mov_b64 exec, 1
    """)
    for l in range(2):
        g(f"s_add_u32 s29, s28, {WS_MLB + l*8*512}")
        g(f"buffer_store_dwordx4 v[{XA}:{XA+3}], v{vXSt}, s[8:11], s29 offen sc1")
    if role == "R":
        lz = g.label("noz")
        g(f"""
        s_cmp_ge_u32 s5, 14
        s_cbranch_scc1 {lz}
        s_mov_b64 exec, -1
        v_lshrrev_b32 v{U0}, 3, v0
        v_lshlrev_b32 v{U0}, 14, v{U0}
        v_and_b32 v{U1}, 7, v0
        v_lshl_add_u32 v{U0}, v{U1}, 4, v{U0}
        s_lshl_b32 s28, s4, 7
        s_lshl_b32 s29, s5, 10
        s_add_u32 s28, s28, s29
        """)
        for st in range(4):
            g(f"s_add_u32 s29, s28, {WS_ZB + st*8*16384}")
            g(f"buffer_store_dwordx4 v[{XA}:{XA+3}], v{U0}, s[8:11], s29 offen sc1")
        g(f"""
        s_mov_b64 exec, 0xf
        s_lshl_b32 s28, s4, 10
        s_lshl_b32 s29, s5, 6
        s_add_u32 s28, s28, s29
        """)
        for st in range(3):
            g(f"s_add_u32 s29, s28, {WS_XB + st*8*1024}")
            g(f"buffer_store_dwordx4 v[{XA}:{XA+3}], v{vXSt}, s[8:11], s29 offen sc1")
        g(f"{lz}:")
    g("s_mov_b64 exec, -1")


def hello_pub(g):
    g(TCALC)
    g(f"""
    s_getreg_b32 s51, hwreg(HW_REG_XCC_ID)
    s_and_b32 s51, s51, 15
    s_or_b32 s51, s51, 0x100
    v_mov_b32 v{YP}, s51
    v_mov_b32 v{YP+1}, s6
    v_mov_b32 v{U0}, 0
    s_lshl_b32 s28, s2, 3
    s_add_u32 s28, s28, {WS_HB}
    s_waitcnt vmcnt(0)
    s_mov_b64 exec, 1
    buffer_store_dwordx2 v[{YP}:{YP+1}], v{U0}, s[8:11], s28 offen sc1
    s_mov_b64 exec, -1
    """)


def hello_poll(g):
    HR = XA
    g(f"s_movk_i32 s28, {WS_HB}")
    def loads():
        g(f"buffer_load_dwordx4 v[{HR}:{HR+3}], v{vXSt}, s[8:11], s28 offen sc1")
        g(f"buffer_load_dwordx4 v[{HR+4}:{HR+7}], v{vXSt}, s[8:11], s28 offen offset:1024 sc1")
    def check():
        g(f"""
        v_xor_b32 v{U0}, s6, v{HR+1}
        v_xor_b32 v{U1}, s6, v{HR+3}
        v_xor_b32 v{U2}, s6, v{HR+5}
        v_xor_b32 v{U3}, s6, v{HR+7}
        v_or3_b32 v{U0}, v{U0}, v{U1}, v{U2}
        v_or_b32 v{U0}, v{U0}, v{U3}
        v_cmp_ne_u32 vcc, 0, v{U0}
        """)
    g.poll(loads, check)
    g(f"""
    v_lshlrev_b32 v{U0}, 1, v0
    v_and_b32 v{U0}, 7, v{U0}
    v_or_b32 v{U1}, 1, v{U0}
    v_cmp_eq_u32 s[52:53], s4, v{U0}
    v_cmp_eq_u32 s[54:55], s4, v{U1}
    v_cmp_ne_u32 s[56:57], s51, v{HR}
    v_cmp_ne_u32 s[58:59], s51, v{HR+4}
    v_cmp_ne_u32 s[60:61], s51, v{HR+2}
    v_cmp_ne_u32 s[62:63], s51, v{HR+6}
    s_or_b64 s[56:57], s[56:57], s[58:59]
    s_or_b64 s[60:61], s[60:61], s[62:63]
    s_and_b64 s[56:57], s[56:57], s[52:53]
    s_and_b64 s[60:61], s[60:61], s[54:55]
    s_or_b64 s[56:57], s[56:57], s[60:61]
    s_cmp_eq_u64 s[56:57], 0
    s_cselect_b32 s7, {0 if '--slow' in sys.argv else 1}, 0
    v_mov_b32 v{U0}, {L_TL}
    v_mov_b32 v{U1}, s7
    ds_write_b32 v{U0}, v{U1} offset:4
    s_waitcnt lgkmcnt(0)
    """)


def read_fast(g):
    g(f"""
    v_mov_b32 v{U0}, {L_TL}
    ds_read_b32 v{U1}, v{U0} offset:4
    s_waitcnt lgkmcnt(0)
    v_readfirstlane_b32 s7, v{U1}
    """)


def only(g, w, fn):
    lab = g.label("only")
    g(f"""
    s_cmp_lg_u32 s35, {w}
    s_cbranch_scc1 {lab}
    """)
    fn()
    g(f"{lab}:")


def w_wave_R(g, lend):
    g("; ---------------- W wave, role R (wo, hop A, reducers) ----------------")
    l3 = g.label("r3"); lj = g.label("rj")
    g(f"""
    s_and_b32 s32, s35, 1
    s_lshl_b32 s33, s5, 1
    s_add_u32 s33, s33, s32
    s_cmp_eq_u32 s35, 3
    s_cbranch_scc1 {l3}
    """)
    lw2 = g.label("rw2"); lw3 = g.label("rw3")
    g(f"""
    s_cmp_eq_u32 s35, 2
    s_cbranch_scc1 {lw2}
    s_lshl_b32 s28, s4, 9
    s_lshl_b32 s29, s5, 5
    s_add_u32 s28, s28, s29
    s_lshl_b32 s29, s35, 4
    s_add_u32 s28, s28, s29
    s_mul_i32 s28, s28, 896
    """)
    srd_off(g, 24, 72, 73, 28, 16*896)
    g(f"""
    s_mul_i32 s28, s35, {16*896}
    s_add_u32 s28, s28, {L_WO}
    v_add_u32 v{U4}, s28, v{vXSt}
    s_mov_b64 exec, s[36:37]
    """)
    for r in range(16):
        g(f"s_movk_i32 s28, {r*896}")
        g(f"buffer_load_dwordx4 v[{WO+4*r}:{WO+4*r+3}], v{vXSt}, s[24:27], s28 offen nt")
    g("""
    s_mov_b64 exec, -1
    s_barrier
    """)
    addr_setup(g)
    g("s_mov_b64 exec, s[36:37]")
    for r in range(16):
        g(f"s_waitcnt vmcnt({15-r})")
        g(f"ds_write_b128 v{U4}, v[{WO+4*r}:{WO+4*r+3}] offset:{r*896}")
        if r % 8 == 7: g("s_waitcnt lgkmcnt(0)")
    g(f"""
    s_mov_b64 exec, -1
    s_branch {lj}
    {lw2}:
    s_barrier
    """)
    addr_setup(g)
    g(f"""
    s_lshl_b32 s28, s5, 6
    v_lshrrev_b32 v{U0}, 1, v{vZW}
    buffer_load_dwordx2 v[{XR+2}:{XR+3}], v{U0}, s[12:15], s28 offen
    s_waitcnt vmcnt(0)
    v_lshlrev_b32 v{XR}, 16, v{XR+2}
    v_and_b32 v{XR+1}, 0xffff0000, v{XR+2}
    v_lshlrev_b32 v{XR+2}, 16, v{XR+3}
    v_and_b32 v{XR+3}, 0xffff0000, v{XR+3}
    s_branch {lj}
    {l3}:
    """)
    clears(g, "R")
    g("s_barrier")
    addr_setup(g)
    hello_pub(g)
    g(f"{lj}:")
    g("s_waitcnt lgkmcnt(0)")
    g.stamp(4, W_VTS)
    g("s_barrier")
    g.ts_zero_late()
    only(g, 3, lambda: hello_poll(g))
    g(f"v_add_u32 v{U4}, {L_WO}, v{vXSW}")
    for r in range(32):
        g(f"ds_read_b32 v{WO+2*r+1}, v{U4} offset:{r*896}")
        if r % 8 == 7: g("s_waitcnt lgkmcnt(0)")
    for r in range(32):
        g(f"v_lshlrev_b32 v{WO+2*r}, 16, v{WO+2*r+1}")
        g(f"v_and_b32 v{WO+2*r+1}, 0xffff0000, v{WO+2*r+1}")
    for layer in range(2):
        sb = 5 + layer*8
        g.stamp(sb, W_VTS)
        g("s_barrier")
        if layer == 0:
            read_fast(g)
        la = g.label("noa")
        g(f"""
        s_cmp_ge_u32 s35, 2
        s_cbranch_scc1 {la}
        """)
        hop_a(g, layer)
        g(f"{la}:")
        g.stamp(sb+1, W_VTS)
        g("s_barrier")
        g(f"v_mov_b32 v{U0}, {L_OS}")
        for k in range(8):
            g(f"ds_read_b128 v[{XA+4*k}:{XA+4*k+3}], v{U0} offset:{k*16}")
        accs = [YP, U2, XA+32, XA+34]
        for k in range(8):
            g(f"s_waitcnt lgkmcnt({7-k})")
            for r in range(4*k, 4*k+4):
                src = XA + (r & ~1)
                dst = accs[r & 3]
                sel = "op_sel:[1,0,0] op_sel_hi:[1,1,1]" if r & 1 else "op_sel_hi:[0,1,1]"
                if r < 4:
                    sel2 = "op_sel:[1,0] op_sel_hi:[1,1]" if r & 1 else "op_sel_hi:[0,1]"
                    g(f"v_pk_mul_f32 v[{dst}:{dst+1}], v[{src}:{src+1}], v[{WO+2*r}:{WO+2*r+1}] {sel2}")
                else:
                    g(f"v_pk_fma_f32 v[{dst}:{dst+1}], v[{src}:{src+1}], v[{WO+2*r}:{WO+2*r+1}], v[{dst}:{dst+1}] {sel}")
        g(f"""
        v_pk_add_f32 v[{YP}:{YP+1}], v[{YP}:{YP+1}], v[{U2}:{U2+1}]
        v_pk_add_f32 v[{XA+32}:{XA+33}], v[{XA+32}:{XA+33}], v[{XA+34}:{XA+35}]
        v_pk_add_f32 v[{YP}:{YP+1}], v[{YP}:{YP+1}], v[{XA+32}:{XA+33}]
        """)
        pub_y(g, 2*layer)
        g.stamp(sb+2, W_VTS)
        if layer == 0:
            g("s_barrier\ns_barrier")
        def red():
            reducer(g, 2*layer, 16)
            g.stamp(sb+3, W_VTS)
            reducer(g, 2*layer + 1, 28)
            g.stamp(sb+4, W_VTS)
        only(g, 2, red)
        if layer == 0:
            g("s_barrier")
    g(f"s_branch {lend}")


def w_wave_F(g, lend):
    g("; ---------------- W wave, role F (wq/q, FFN) ----------------")
    g(f"""
    s_and_b32 s32, s35, 1
    s_lshr_b32 s33, s35, 1
    s_sub_u32 s30, s5, 16
    s_lshl_b32 s40, s30, 1
    s_add_u32 s40, s40, s32
    """)
    l23 = g.label("f23"); lj = g.label("fj")
    g(f"""
    s_cmp_ge_u32 s35, 2
    s_cbranch_scc1 {l23}
    """)
    g(f"""
    v_mov_b32 v{XST}, 0
    v_mov_b32 v{XST+1}, 0
    v_mov_b32 v{XST+2}, 0
    v_mov_b32 v{XST+3}, 0
    s_mov_b64 exec, s[36:37]
    buffer_load_dwordx4 v[{XST}:{XST+3}], v{vXSt}, s[12:15], 0 offen
    s_mov_b64 exec, -1
    s_lshl_b32 s28, s4, 10
    s_lshl_b32 s29, s30, 6
    s_add_u32 s28, s28, s29
    s_mul_i32 s29, s35, {224*8192}
    s_add_u32 s28, s28, s29
    s_sub_u32 s29, {448*8192}, s28
    """)
    srd_off(g, 16, 70, 71, 28, "s29")
    g(f"""
    v_lshrrev_b32 v{U2}, 2, v0
    v_lshlrev_b32 v{U0}, 13, v{U2}
    v_and_b32 v{U1}, 3, v0
    v_lshl_add_u32 v{U0}, v{U1}, 4, v{U0}
    """)
    for jj in range(14):
        g(f"s_mov_b32 s28, {jj*16*8192}")
        g(f"buffer_load_dwordx4 v[{XA+4*jj}:{XA+4*jj+3}], v{U0}, s[16:19], s28 offen nt")
    g("s_barrier")
    g(f"""
    v_lshrrev_b32 v{U3}, 1, v{U1}
    v_and_b32 v{U1}, 1, v{U1}
    s_movk_i32 s28, 14336
    v_mul_lo_u32 v{U3}, v{U3}, s28
    v_lshl_add_u32 v{U3}, v{U2}, 5, v{U3}
    v_lshl_add_u32 v{U3}, v{U1}, 4, v{U3}
    s_mul_i32 s28, s35, {224*32}
    s_add_u32 s28, s28, {L_WO}
    v_add_u32 v{U4}, s28, v{U3}
    """)
    addr_setup(g)
    g(f"""
    v_add_u32 v{vTRQ}, {L_WO - L_IMG}, v{vTR}
    s_waitcnt vmcnt(14)
    """)
    stats_serial(g)
    for k in range(4):
        g(f"""
        v_lshlrev_b32 v{SS1}, 16, v{XST+k}
        v_and_b32 v{SS2}, 0xffff0000, v{XST+k}
        v_sub_f32 v{SS1}, v{SS1}, v{U1}
        v_sub_f32 v{SS2}, v{SS2}, v{U1}
        """)
        if g.mimic:
            g(f"""
            v_cvt_pk_bf16_f32 v{U3}, v{SS1}, v{SS2}
            v_lshlrev_b32 v{SS1}, 16, v{U3}
            v_and_b32 v{SS2}, 0xffff0000, v{U3}
            """)
        g(f"""
        v_mul_f32 v{SS1}, v{SS1}, v{U2}
        v_mul_f32 v{SS2}, v{SS2}, v{U2}
        v_cvt_pk_bf16_f32 v{XST+k}, v{SS1}, v{SS2}
        """)
    g(f"""
    s_mov_b64 exec, s[36:37]
    ds_write_b128 v{vXSt}, v[{XST}:{XST+3}] offset:{L_XS}
    s_mov_b64 exec, -1
    """)
    for jj in range(14):
        g(f"s_waitcnt vmcnt({13-jj})")
        g(f"ds_write_b128 v{U4}, v[{XA+4*jj}:{XA+4*jj+3}] offset:{jj*512}")
        if jj % 8 == 7: g("s_waitcnt lgkmcnt(0)")
    g(TCALC)
    lsp = g.label("spin"); lsd = g.label("spind")
    g(f"""
    s_lshl_b32 s28, s35, 2
    s_add_u32 s28, s28, {L_TL + 8}
    v_mov_b32 v{U0}, s28
    v_mov_b32 v{U1}, 1
    ds_write_b32 v{U0}, v{U1}
    v_xor_b32 v{U0}, 4, v{U0}
    s_mov_b32 s34, 0
    {lsp}:
    ds_read_b32 v{U1}, v{U0}
    s_waitcnt lgkmcnt(0)
    v_readfirstlane_b32 s28, v{U1}
    s_cmp_eq_u32 s28, 1
    s_cbranch_scc1 {lsd}
    s_add_u32 s34, s34, 1
    s_cmp_lt_u32 s34, {POLL_LIMIT*8}
    s_cbranch_scc1 {lsp}
    {lsd}:
    """)
    tr_reads(g, WQB, vTRQ)
    q_stage(g, 0, 0)
    g.stamp(3, W_VTS)
    g(f"""
    s_lshl_b32 s28, s35, 2
    s_add_u32 s28, s28, {L_TL + 16}
    v_mov_b32 v{U0}, s28
    v_mov_b32 v{U1}, 1
    s_waitcnt vmcnt(0)
    ds_write_b32 v{U0}, v{U1}
    """)
    colsum(g, WQB, CSQ)

    g(f"s_branch {lj}")
    g(f"{l23}:")
    only(g, 3, lambda: clears(g, "F"))
    g("s_barrier")
    addr_setup(g)
    only(g, 3, lambda: hello_pub(g))
    g(f"{lj}:")
    g(f"""
    s_sub_u32 s30, s5, 16
    s_mul_i32 s28, s4, 448
    s_lshl_b32 s29, s30, 5
    s_add_u32 s28, s28, s29
    s_sub_u32 s29, {448*3584}, s28
    s_cmp_lt_u32 s5, 30
    s_cselect_b32 s28, s28, 0
    s_cselect_b32 s29, s29, 0
    s_cmp_eq_u32 s32, 0
    s_cselect_b32 s16, s76, s78
    s_cselect_b32 s17, s77, s79
    s_add_u32 s16, s16, s28
    s_addc_u32 s17, s17, 0
    s_mov_b32 s18, s29
    s_mov_b32 s19, 0x00020000
    s_mul_i32 s28, s4, 224
    s_lshl_b32 s29, s30, 4
    s_add_u32 s28, s28, s29
    s_lshl_b32 s29, s32, 3
    s_add_u32 s28, s28, s29
    s_mul_i32 s28, s28, 896
    s_cmp_lt_u32 s5, 30
    s_cselect_b32 s28, s28, 0
    s_cselect_b32 s29, {8*896}, 0
    """)
    srd_off(g, 24, 80, 81, 28, "s29")
    g(f"""
    v_lshrrev_b32 v{U0}, 1, v0
    s_mul_i32 s28, s33, 224
    v_add_u32 v{U0}, s28, v{U0}
    s_movk_i32 s28, 3584
    v_mul_lo_u32 v{vHA}, v{U0}, s28
    v_and_b32 v{U1}, 1, v0
    v_lshl_add_u32 v{vHA}, v{U1}, 4, v{vHA}
    s_movk_i32 s28, 14336
    v_mul_lo_u32 v{vHM}, v{U1}, s28
    v_lshl_add_u32 v{vHM}, v{U0}, 5, v{vHM}
    s_lshl_b32 s28, s32, 4
    s_add_u32 s28, s28, {L_IMG}
    v_add_u32 v{vHM}, s28, v{vHM}
    s_mul_i32 s28, s33, 448
    v_lshlrev_b32 v{vXSW}, 3, v0
    v_add_u32 v{vXSW}, s28, v{vXSW}
    v_lshlrev_b32 v{vCOL}, 1, v{vXSW}
    s_waitcnt lgkmcnt(0)
    """)
    g.stamp(4, W_VTS)
    g("s_barrier")
    g.ts_zero_late()
    only(g, 3, lambda: hello_poll(g))
    def ffn_loads(lo, hi, thr):
        for k in range(lo, hi):
            if thr: g(f"s_waitcnt vmcnt({thr-1})")
            if k < 7:
                g(f"s_mov_b32 s28, {k*32*3584}")
                g(f"buffer_load_dwordx4 v[{XA+4*k}:{XA+4*k+3}], v{vHA}, s[16:19], s28 offen nt")
            else:
                f = k - 7
                g("s_mov_b64 exec, s[36:37]")
                g(f"s_movk_i32 s28, {f*896}")
                g(f"buffer_load_dwordx2 v[{WD+4*f+2}:{WD+4*f+3}], v{vXSW}, s[24:27], s28 offen nt")
                g("s_mov_b64 exec, -1")
    ffn_loads(0, g.early, 0)
    for layer in range(2):
        sb = 5 + layer*8
        g.stamp(sb, W_VTS)
        g("s_barrier")
        if layer == 0:
            read_fast(g)
            g("s_barrier")
            ffn_loads(g.early, 15, 0)
            for jj in range(7):
                g(f"s_waitcnt vmcnt({14-jj})")
                g(f"ds_write_b128 v{vHM}, v[{XA+4*jj}:{XA+4*jj+3}] offset:{jj*1024}")
            g("s_waitcnt vmcnt(0)")
            for f in range(8):
                r = WD + 4*f
                g(f"""
                v_lshlrev_b32 v{r}, 16, v{r+2}
                v_and_b32 v{r+1}, 0xffff0000, v{r+2}
                v_lshlrev_b32 v{r+2}, 16, v{r+3}
                v_and_b32 v{r+3}, 0xffff0000, v{r+3}
                """)
            g("s_waitcnt lgkmcnt(0)")
            g.stamp(sb+1, W_VTS)
            g("s_barrier")
            load_WB(g)
        else:
            g(f"""
            s_cmp_ge_u32 s5, 30
            s_cbranch_scc1 {lend}
            """)
        lx = g.label("nox")
        g(f"""
        s_cmp_ge_u32 s5, 30
        s_cbranch_scc1 {lx}
        """)
        only(g, 2, lambda: x_gather(g, 2*layer, 2*layer + 1))
        g(f"{lx}:")
        g.stamp(sb+2, W_VTS)
        g("s_barrier")
        lf = g.label("noffn")
        g(f"""
        s_cmp_ge_u32 s5, 30
        s_cbranch_scc1 {lf}
        """)
        gemv16(g, L_XS + (2*layer+1)*1024, WB, CS, U4)
        if g.mimic:
            g(f"""
            v_cvt_pk_bf16_f32 v{U3}, v{U4}, v{U4}
            v_lshlrev_b32 v{U4}, 16, v{U3}
            """)
        g(f"""
        v_mul_f32 v{U0}, s49, v{U4}
        v_exp_f32 v{U0}, v{U0}
        v_mov_b32_dpp v{U3}, v{U4} row_ror:8 row_mask:0xf bank_mask:0xf
        v_add_f32 v{U0}, 1.0, v{U0}
        v_rcp_f32 v{U0}, v{U0}
        s_nop 0
        v_mul_f32 v{U0}, v{U0}, v{U4}
        """)
        if g.mimic:
            g(f"""
            v_cvt_pk_bf16_f32 v{U1}, v{U0}, v{U0}
            v_lshlrev_b32 v{U0}, 16, v{U1}
            """)
        g(f"v_mul_f32 v{U0}, v{U0}, v{U3}")
        if g.mimic:
            g(f"""
            v_cvt_pk_bf16_f32 v{U1}, v{U0}, v{U0}
            v_lshlrev_b32 v{U0}, 16, v{U1}
            """)
        g(f"""
        v_mov_b32 v{Y4}, 0
        v_mov_b32 v{Y4+1}, 0
        v_mov_b32 v{Y4+2}, 0
        v_mov_b32 v{Y4+3}, 0
        """)
        for f in range(8):
            for c in range(4):
                g(f"v_fmac_f32_dpp v{Y4+c}, v{U0}, v{WD+4*f+c} row_newbcast:{f} row_mask:0xf bank_mask:0xf")
        g(f"""
        s_lshl_b32 s28, s40, 11
        s_lshl_b32 s29, s4, 16
        s_add_u32 s28, s28, s29
        s_add_u32 s28, s28, {WS_YB + (2*layer+1)*8*65536}
        s_mov_b64 exec, s[36:37]
        """)
        g.pub(f"buffer_store_dwordx4 v[{Y4}:{Y4+3}], v{vCOL}, s[8:11], s28 offen")
        g("s_mov_b64 exec, -1")
        g(f"{lf}:")
        g.stamp(sb+3, W_VTS)
        if layer == 0:
            only(g, 2, lambda: x_gather(g, 1, 2))
            g.stamp(sb+4, W_VTS)
            g("s_barrier")
            lq = g.label("noq")
            g(f"""
            s_cmp_ge_u32 s35, 2
            s_cbranch_scc1 {lq}
            """)
            q_stage(g, 1, 2)
            g(f"{lq}:")
            g.stamp(sb+6, W_VTS)


def w_wave(g):
    g.ts_begin(W_TS)
    for idx in (0, 3, 4, 5):
        g.tsmap[idx] = g.tsfree.pop(0)
    g.stamp(0, W_VTS, 1)
    g(f"""
    s_sub_u32 s35, s3, 4
    v_cmp_gt_u32 s[36:37], 56, v0
    s_mul_i32 s28, s35, 448
    v_lshlrev_b32 v{vCOL}, 3, v0
    v_add_u32 v{vCOL}, s28, v{vCOL}
    v_lshrrev_b32 v{vXSW}, 1, v{vCOL}
    v_lshlrev_b32 v{vXSt}, 4, v0
    """)
    srd(g, 12, 64, 65, 896)
    srd(g, 20, 82, 83, 896)
    if "--dbgtime" in sys.argv:
        g("s_memrealtime s[90:91]")
        srd(g, 96, 84, 85, 256)
    lF = g.label("roleF"); lend = g.label("wend")
    g(f"""
    s_cmp_ge_u32 s5, 16
    s_cbranch_scc1 {lF}
    """)
    w_wave_R(g, lend)
    g(f"{lF}:")
    w_wave_F(g, lend)
    g(f"{lend}:")
    g.stamp(31, W_VTS, 1)
    dump_ts(g, W_VTS)
    g("s_endpgm")


HEADER = open("cdna_kernels/" + NAME + ".s.ref").read().split("; Override launch")[0]


def build(ts=False, mimic=True, sleep=0, thr=(3, 0, 6)):
    g = Gen(ts, mimic, sleep, thr)
    g.L.append(HEADER.rstrip("\n"))
    g.L.append(f"; @launch grid=(256,1,1) block=(512,1,1) lds={LDS_BYTES}")
    g.L.append('.amdgcn_target "amdgcn-amd-amdhsa--gfx950"')
    g.L.append(".text")
    g.L.append(f".globl {KNAME}")
    g.L.append(".p2align 8")
    g.L.append(f".type {KNAME},@function")
    g.L.append(f"{KNAME}:")
    PERM = ""
    if "--perm" in sys.argv:
        PERM = "s_lshr_b32 s4, s2, 5\ns_lshl_b32 s5, s2, 3\ns_and_b32 s5, s5, 0xff\ns_or_b32 s2, s4, s5"
    g(f"""
    s_cmp_ge_u32 s2, 256
    s_cbranch_scc1 L_exit
    s_load_dwordx16 s[64:79], s[0:1], 0
    s_load_dwordx8 s[80:87], s[0:1], 64
    v_lshrrev_b32 v1, 6, v0
    v_and_b32 v0, 63, v0
    v_readfirstlane_b32 s3, v1
    v_and_b32 v1, 15, v0
    v_lshrrev_b32 v2, 4, v0
    {PERM}
    s_and_b32 s4, s2, 7
    s_lshr_b32 s5, s2, 3
    s_mov_b32 s7, 0
    s_waitcnt lgkmcnt(0)
    """)
    srd(g, 8, 86, 87, WS_SIZE)
    g(f"""
    s_cmp_lg_u32 s3, 6
    s_cbranch_scc1 L_noreset
    v_mov_b32 v3, {L_TL + 8}
    v_mov_b32 v4, 0
    v_mov_b32 v5, 0
    ds_write_b64 v3, v[4:5]
    ds_write_b64 v3, v[4:5] offset:8
    s_waitcnt lgkmcnt(0)
    L_noreset:
    s_load_dword s50, s[86:87], {WS_EPOCH}
    s_cmp_ge_u32 s3, 4
    s_cbranch_scc1 L_wwave
    """)
    a_wave(g)
    g("L_wwave:")
    w_wave(g)
    g("L_exit:")
    g("s_endpgm")
    g.L.append('.section .rodata,"a"')
    g.L.append(".p2align 6")
    g.L.append(f".amdhsa_kernel {KNAME}")
    for d in ["next_free_vgpr 256", "next_free_sgpr 102", "accum_offset 256", "group_segment_fixed_size 0",
              "kernarg_size 96", "user_sgpr_count 2", "user_sgpr_kernarg_segment_ptr 1",
              "system_sgpr_workgroup_id_x 1", "float_denorm_mode_32 3"]:
        g.L.append("  .amdhsa_" + d)
    g.L.append(".end_amdhsa_kernel")
    return "\n".join(g.L) + "\n"


if __name__ == "__main__":
    out = sys.argv[1] if len(sys.argv) > 1 else "cdna_kernels/" + NAME + ".s"
    ts = 3 if "--ts3" in sys.argv else 2 if "--ts" in sys.argv else (1 if "--ts1" in sys.argv else 0)
    mimic = "--mimic" in sys.argv
    sleep = int(sys.argv[sys.argv.index("--sleep")+1]) if "--sleep" in sys.argv else 0
    thr = tuple(int(x) for x in sys.argv[sys.argv.index("--thr")+1].split(",")) if "--thr" in sys.argv else (3, 0, 6)
    open(out, "w").write(build(ts, mimic, sleep, thr))
    print("wrote", out)
```

```python
import sys, math

NAME = "interleave_layers__sliding_block_cached__swiglu_ffn__decode"
KNAME = NAME + "_kernel"

WS_EPOCH = 0
WS_HB = 0x1000
WS_QB = 0x2000
WS_MLB = 0xA000
WS_ZB = 0x40000
WS_XB = 0x20000
WS_OB = 0x100000
WS_YB = 0x200000
WS_TS = 0x400000
WS_SIZE = 0x800000

L_XS = 0x0000
L_TL = 0x1000
L_OS = 0x1040
L_QS = 0x1400
L_OP = 0x2400
L_MLP = 0x4400
L_IMG = 0x4800
L_WO = 0xB800
LDS_BYTES = 0xB800 + 32*896

POLL_LIMIT = 100000
A_TS = list(range(52, 64, 2)) + list(range(88, 102, 2)) + list(range(64, 88, 2))
W_TS = list(range(88, 102, 2)) + list(range(64, 88, 2))
LOG2E = 1.4426950408889634


def f32hex(x):
    import struct
    return "0x%08x" % struct.unpack("<I", struct.pack("<f", x))[0]


class Gen:
    def __init__(self, ts=False, mimic=True, sleep=0, thr=(3, 0, 6)):
        self.sleep = sleep
        self.thr = thr
        self.hmode = sys.argv[sys.argv.index('--hmode')+1] if '--hmode' in sys.argv else 'bk'
        self.hback = int(sys.argv[sys.argv.index('--hback')+1]) if '--hback' in sys.argv else 2
        self.qback = (int(sys.argv[sys.argv.index('--qback0')+1]) if '--qback0' in sys.argv else 2, int(sys.argv[sys.argv.index('--qback1')+1]) if '--qback1' in sys.argv else 0)
        self.xback = int(sys.argv[sys.argv.index('--xback')+1]) if '--xback' in sys.argv else 0
        self.hsleep = int(sys.argv[sys.argv.index('--hsleep')+1]) if '--hsleep' in sys.argv else 32
        self.qwait = '--noqwait' not in sys.argv
        self.thrR = tuple(int(x) for x in sys.argv[sys.argv.index('--thrR')+1].split(',')) if '--thrR' in sys.argv else (thr[0], thr[1])
        self.npipe = int(sys.argv[sys.argv.index('--npipe')+1]) if '--npipe' in sys.argv else 1
        self.ppgap = int(sys.argv[sys.argv.index('--ppgap')+1]) if '--ppgap' in sys.argv else 3
        self.early = int(sys.argv[sys.argv.index('--early')+1]) if '--early' in sys.argv else 2
        self.L = []
        self.ts = ts
        self.mimic = mimic
        self.uid = 0
        self.nts = 0

    def __call__(self, s):
        for line in s.strip("\n").split("\n"):
            self.L.append("    " + line.strip() if line.strip() and not line.strip().endswith(":") else line.strip())

    def label(self, base):
        self.uid += 1
        return f"L_{base}_{self.uid}"

    def nop(self, n):
        while n > 0:
            k = min(n, 16)
            self(f"s_nop {k-1}")
            n -= k

    def stamp(self, idx, vts, lvl=2):
        if not self.ts or lvl > self.ts:
            return
        if idx not in self.tsmap:
            self.tsmap[idx] = self.tsfree.pop(0)
        r = self.tsmap[idx]
        self(f"s_memrealtime s[{r}:{r+1}]")

    def ts_begin(self, regs):
        self.tsmap = {}
        self.tsfree = list(regs)
        if self.ts:
            for r in regs:
                if r >= 88:
                    self(f"s_mov_b32 s{r}, 0")

    def ts_zero_late(self):
        if self.ts:
            for r in range(64, 88, 2):
                self(f"s_mov_b32 s{r}, 0")

    def pub(self, store_txt):
        a = self.label("slow"); b = self.label("pubd")
        self(f"""
        s_cmp_eq_u32 s7, 0
        s_cbranch_scc1 {a}
        {store_txt}
        s_branch {b}
        {a}:
        {store_txt} sc1
        {b}:
        """)

    def poll(self, loads, check, sleep=None):
        if sleep is None: sleep = self.sleep
        a = self.label("poll"); b = self.label("polld")
        self("s_mov_b32 s34, 0")
        self(f"{a}:")
        loads()
        self("s_waitcnt vmcnt(0)")
        check()
        self(f"""
        s_cmp_eq_u64 vcc, 0
        s_cbranch_scc1 {b}
        {("s_sleep %d" % sleep) if sleep else ""}
        s_add_u32 s34, s34, 1
        s_cmp_lt_u32 s34, {POLL_LIMIT}
        s_cbranch_scc1 {a}
        {b}:
        """)

    def poll_pipe(self, load, nregs, sets, out, tmp):
        n = len(sets)
        top = self.label("pp"); done = self.label("ppd")
        hits = [self.label("pph") for _ in sets]
        self("s_mov_b32 s34, 0")
        for b in sets:
            load(b)
            if self.ppgap: self(f"s_sleep {self.ppgap}")
        self(f"{top}:")
        for k, b in enumerate(sets):
            self(f"s_waitcnt vmcnt({n-1})")
            self.sentinel_check(range(b, b+nregs), tmp)
            self(f"""
            s_cmp_eq_u64 vcc, 0
            s_cbranch_scc1 {hits[k]}
            """)
            load(b)
        self(f"""
        s_add_u32 s34, s34, 1
        s_cmp_lt_u32 s34, {POLL_LIMIT}
        s_cbranch_scc1 {top}
        s_waitcnt vmcnt(0)
        """)
        for k, b in enumerate(sets):
            self(f"{hits[k]}:")
            for r in range(nregs):
                self(f"v_mov_b32 v{out+r}, v{b+r}")
            if k < n-1:
                self(f"s_branch {done}")
        self(f"{done}:")

    def sentinel_check(self, regs, tmp):
        regs = list(regs)
        first = True
        while len(regs) > 0:
            if first:
                if len(regs) >= 3:
                    self(f"v_max3_u32 v{tmp}, v{regs[0]}, v{regs[1]}, v{regs[2]}"); regs = regs[3:]
                elif len(regs) == 2:
                    self(f"v_max_u32 v{tmp}, v{regs[0]}, v{regs[1]}"); regs = []
                else:
                    self(f"v_mov_b32 v{tmp}, v{regs[0]}"); regs = []
                first = False
            elif len(regs) >= 2:
                self(f"v_max3_u32 v{tmp}, v{tmp}, v{regs[0]}, v{regs[1]}"); regs = regs[2:]
            else:
                self(f"v_max_u32 v{tmp}, v{tmp}, v{regs[0]}"); regs = []
        self(f"v_cmp_eq_u32 vcc, -1, v{tmp}")


def srd(g, d, lo, hi, nbytes):
    g(f"""
    s_mov_b32 s{d}, s{lo}
    s_mov_b32 s{d+1}, s{hi}
    s_mov_b32 s{d+2}, {nbytes}
    s_mov_b32 s{d+3}, 0x00020000
    """)


def srd_off(g, d, lo, hi, soff, nbytes):
    g(f"""
    s_add_u32 s{d}, s{lo}, s{soff}
    s_addc_u32 s{d+1}, s{hi}, 0
    s_mov_b32 s{d+2}, {nbytes}
    s_mov_b32 s{d+3}, 0x00020000
    """)


def mfma(d, a, b, c):
    cs = "0" if c is None else f"v[{c}:{c+3}]"
    return f"v_mfma_f32_16x16x32_bf16 v[{d}:{d+3}], v[{a}:{a+3}], v[{b}:{b+3}], {cs}"


def a_wave(g):
    KA = 16; VB = 80; VL = 144
    QBR = 144; QG = 176; S0 = 184; S1 = 188; P = 192; PM = (196, 200); D0 = 204; D1 = 208; DL = 212; ONES = 216
    T0, T1, T2, T3 = 220, 221, 222, 223
    M2 = 224; E = 226
    CO = 234
    CM = 242
    VTS = 255
    vK, vV, vQG, vQSW, vQSR, vOPW, vMLW, vOPR, vPUB, vMLR = 3, 4, 5, 6, 7, 8, 9, 10, 11, 12
    g("; ---------------- A wave ----------------")
    g.ts_begin(A_TS)
    g.stamp(0, VTS, 1)
    g(f"""
    s_lshl_b32 s28, s4, 25
    s_lshl_b32 s29, s5, 16
    s_add_u32 s28, s28, s29
    s_lshl_b32 s29, s3, 14
    s_add_u32 s28, s28, s29
    s_add_u32 s28, s28, {61440*512}
    """)
    srd_off(g, 12, 66, 67, 28, 16384)
    srd_off(g, 16, 68, 69, 28, 16384)
    g(f"""
    v_lshlrev_b32 v{vK}, 9, v1
    v_lshl_add_u32 v{vK}, v2, 4, v{vK}
    v_lshlrev_b32 v{vV}, 11, v2
    v_lshl_add_u32 v{vV}, v1, 4, v{vV}
    s_movk_i32 s30, 0x2000
    s_barrier
    """)
    def kv_loads(TK, TV):
        cnt = 0
        for t in range(2):
            for j in range(8):
                r = KA + t*32 + j*4
                if TK and cnt >= 2*TK and cnt % 2 == 0: g(f"s_waitcnt vmcnt({2*TK-2})")
                g(f"buffer_load_dwordx4 v[{r}:{r+3}], v{vK}, s[12:15], {'s30' if t else '0'} offen offset:{j*64} nt")
                cnt += 1
        if g.qwait:
            lsp = g.label("qw"); lsd = g.label("qwd")
            g(f"""
            s_cmp_lt_u32 s5, 16
            s_cbranch_scc1 {lsd}
            v_mov_b32 v{T0}, {L_TL + 16}
            s_mov_b32 s34, 0
            {lsp}:
            ds_read_b64 v[{T2}:{T3}], v{T0}
            s_waitcnt lgkmcnt(0)
            v_and_b32 v{T2}, v{T2}, v{T3}
            s_nop 0
            v_readfirstlane_b32 s28, v{T2}
            s_cmp_eq_u32 s28, 1
            s_cbranch_scc1 {lsd}
            s_sleep 1
            s_add_u32 s34, s34, 1
            s_cmp_lt_u32 s34, {POLL_LIMIT*4}
            s_cbranch_scc1 {lsp}
            {lsd}:
            """)
        cnt = 0
        for t in range(2):
            for rr in range(4):
                for hf in range(2):
                    r = VL + (t*8 + rr*2 + hf)*4
                    if TV: g(f"s_waitcnt vmcnt({max(TV-1, 2*TK-2-cnt)})")
                    g(f"buffer_load_dwordx4 v[{r}:{r+3}], v{vV}, s[16:19], {'s30' if t else '0'} offen offset:{rr*512+hf*256} nt")
                    cnt += 1
    if g.thrR == (g.thr[0], g.thr[1]):
        kv_loads(g.thr[0], g.thr[1])
    else:
        lr = g.label("kvR"); ld = g.label("kvd")
        g(f"""
        s_cmp_lt_u32 s5, 16
        s_cbranch_scc1 {lr}
        """)
        kv_loads(g.thr[0], g.thr[1])
        g(f"s_branch {ld}")
        g(f"{lr}:")
        kv_loads(*g.thrR)
        g(f"{ld}:")
    g(f"""
    v_lshlrev_b32 v{vQG}, 4, v0
    s_lshl_b32 s28, s3, 10
    s_add_u32 s28, s28, {L_QS}
    v_lshlrev_b32 v{vQSW}, 3, v0
    v_add_u32 v{vQSW}, s28, v{vQSW}
    v_lshrrev_b32 v{T0}, 3, v1
    v_lshlrev_b32 v{vQSR}, 9, v{T0}
    v_lshl_add_u32 v{vQSR}, v2, 4, v{vQSR}
    v_add_u32 v{vQSR}, s28, v{vQSR}
    s_lshl_b32 s28, s3, 11
    s_add_u32 s28, s28, {L_OP}
    v_lshlrev_b32 v{vOPW}, 5, v0
    v_add_u32 v{vOPW}, s28, v{vOPW}
    s_lshl_b32 s28, s3, 4
    s_add_u32 s28, s28, {L_MLP}
    v_lshrrev_b32 v{T1}, 5, v0
    v_lshlrev_b32 v{vMLW}, 3, v{T1}
    v_add_u32 v{vMLW}, s28, v{vMLW}
    s_lshl_b32 s28, s3, 9
    v_lshlrev_b32 v{vPUB}, 3, v0
    v_add_u32 v{vPUB}, s28, v{vPUB}
    v_add_u32 v{vOPR}, {L_OP}, v{vPUB}
    s_lshr_b32 s28, s3, 1
    s_lshl_b32 s28, s28, 3
    s_add_u32 s28, s28, {L_MLP}
    v_mov_b32 v{vMLR}, s28
    v_cmp_eq_u32 s[36:37], v{T0}, v{T1}
    v_mov_b32 v{ONES}, 0x3f803f80
    v_mov_b32 v{ONES+1}, 0x3f803f80
    v_mov_b32 v{ONES+2}, 0x3f803f80
    v_mov_b32 v{ONES+3}, 0x3f803f80
    s_mov_b32 s38, {f32hex(LOG2E/16.0)}
    s_mov_b32 s39, 0x05040100
    s_mov_b32 s44, 0x07060302
    s_mov_b32 s40, 0x01010101
    s_mov_b32 s41, 0x01010101
    """)
    g.stamp(1, VTS)
    g("""s_waitcnt lgkmcnt(0)
    s_mul_i32 s6, s50, 0x9E3779B1
    s_add_u32 s6, s6, 0x7F4A7C15""")
    g("s_waitcnt vmcnt(0)")
    g.stamp(2, VTS)
    for hf in range(2):
        for t in range(2):
            for q in range(2):
                x = VL + (t*8 + (2*q)*2 + hf)*4
                y = VL + (t*8 + (2*q+1)*2 + hf)*4
                for d in range(4):
                    p = 2*t + q
                    g(f"v_perm_b32 v{VB + (hf*8 + 2*d)*4 + p}, v{y+d}, v{x+d}, s39")
                    g(f"v_perm_b32 v{VB + (hf*8 + 2*d + 1)*4 + p}, v{y+d}, v{x+d}, s44")
    for layer in range(2):
        sb = 3 + layer*8
        g(f"""
        s_lshl_b32 s28, s4, 11
        s_add_u32 s28, s28, {WS_QB + layer*8*2048}
        """)
        def loads():
            g(f"buffer_load_dwordx4 v[{QG}:{QG+3}], v{vQG}, s[8:11], s28 offen sc1")
            g(f"buffer_load_dwordx4 v[{QG+4}:{QG+7}], v{vQG}, s[8:11], s28 offen offset:1024 sc1")
        def check():
            g(f"""
            v_xor_b32 v{T0}, s6, v{QG+1}
            v_xor_b32 v{T1}, s6, v{QG+3}
            v_xor_b32 v{T2}, s6, v{QG+5}
            v_xor_b32 v{T3}, s6, v{QG+7}
            v_or3_b32 v{T0}, v{T0}, v{T1}, v{T2}
            v_or_b32 v{T0}, v{T0}, v{T3}
            v_cmp_ne_u32 vcc, 0, v{T0}
            """)
        g.poll(loads, check, g.qback[layer])
        g.stamp(sb, VTS)
        if layer == 0 and g.hmode == "bk":
            g("s_barrier")
        g(f"""
        ds_write2_b32 v{vQSW}, v{QG}, v{QG+2} offset0:0 offset1:1
        ds_write2_b32 v{vQSW}, v{QG+4}, v{QG+6} offset0:128 offset1:129
        s_waitcnt lgkmcnt(0)
        """)
        for j in range(8):
            g(f"ds_read_b128 v[{QBR+4*j}:{QBR+4*j+3}], v{vQSR} offset:{j*64}")
        for j in range(8):
            g(f"s_waitcnt lgkmcnt({7-j})")
            g(mfma(S0, KA + j*4, QBR + 4*j, None if j == 0 else S0))
            g(mfma(S1, KA + 32 + j*4, QBR + 4*j, None if j == 0 else S1))
        if layer == 0 and g.hmode != "bk":
            g("s_barrier")
        g.nop(8)
        g(f"""
        v_max3_f32 v{M2}, v{S0}, v{S0+1}, v{S0+2}
        v_max3_f32 v{M2}, v{M2}, v{S0+3}, v{S1}
        v_max3_f32 v{M2}, v{M2}, v{S1+1}, v{S1+2}
        v_max_f32 v{M2}, v{M2}, v{S1+3}
        v_mov_b32 v{T0}, v{M2}
        s_nop 1
        v_permlane16_swap_b32 v{M2}, v{T0}
        s_nop 1
        v_max_f32 v{M2}, v{M2}, v{T0}
        v_mov_b32 v{T0}, v{M2}
        s_nop 1
        v_permlane32_swap_b32 v{M2}, v{T0}
        s_nop 1
        v_max_f32 v{M2}, v{M2}, v{T0}
        v_mul_f32 v{M2}, s38, v{M2}
        """)
        for k in range(8):
            g(f"v_fma_f32 v{E+k}, v{S0+k}, s38, -v{M2}")
        for k in range(8):
            g(f"v_exp_f32 v{E+k}, v{E+k}")
        g(f"""
        v_mov_b32_dpp v{T0}, v{M2} row_ror:8 row_mask:0xf bank_mask:0xf
        v_cvt_pk_bf16_f32 v{P}, v{E}, v{E+1}
        v_cvt_pk_bf16_f32 v{P+1}, v{E+2}, v{E+3}
        v_cvt_pk_bf16_f32 v{P+2}, v{E+4}, v{E+5}
        v_cvt_pk_bf16_f32 v{P+3}, v{E+6}, v{E+7}
        v_cndmask_b32 v{M2}, v{T0}, v{M2}, s[36:37]
        s_mov_b64 s[42:43], s[40:41]
        """)
        def pm(v):
            b = PM[v & 1]
            for k in range(4):
                g(f"v_cndmask_b32 v{b+k}, 0, v{P+k}, s[42:43]")
            g("s_lshl_b64 s[42:43], s[42:43], 1")
        pm(0)
        g(mfma(DL, P, ONES, None))
        g("s_nop 0")
        for v in range(8):
            b = PM[v & 1]
            hf = v >> 2; tt = v & 3
            g(mfma(D0, b, VB + (hf*8 + tt)*4, None if v == 0 else D0))
            g(mfma(D1, b, VB + (hf*8 + tt + 4)*4, None if v == 0 else D1))
            if v < 7:
                pm(v + 1)
                g("s_nop 0")
        g(f"v_mov_b32 v{M2+1}, v{DL}")
        g.nop(8)
        g(f"""
        ds_write_b128 v{vOPW}, v[{D0}:{D0+3}]
        ds_write_b128 v{vOPW}, v[{D1}:{D1+3}] offset:16
        s_mov_b64 s[32:33], exec
        s_mov_b32 exec_lo, 1
        s_mov_b32 exec_hi, 1
        ds_write_b64 v{vMLW}, v[{M2}:{M2+1}]
        s_mov_b64 exec, s[32:33]
        s_waitcnt lgkmcnt(0)
        """)
        g.stamp(sb+1, VTS)
        g("s_barrier")
        for a in range(4):
            g(f"ds_read_b64 v[{CM+2*a}:{CM+2*a+1}], v{vMLR} offset:{a*16}")
        for a in range(4):
            g(f"ds_read_b64 v[{CO+2*a}:{CO+2*a+1}], v{vOPR} offset:{a*2048}")
        if layer == 0:
            g(f"""
            v_mov_b32 v{T0}, {L_TL}
            ds_read_b32 v{T1}, v{T0} offset:4
            """)
            g("s_waitcnt lgkmcnt(0)")
            g(f"v_readfirstlane_b32 s7, v{T1}")
        else:
            g("s_waitcnt lgkmcnt(4)")
        g(f"""
        v_max3_f32 v{M2}, v{CM}, v{CM+2}, v{CM+4}
        v_max_f32 v{M2}, v{M2}, v{CM+6}
        v_sub_f32 v{E}, v{CM}, v{M2}
        v_sub_f32 v{E+1}, v{CM+2}, v{M2}
        v_sub_f32 v{E+2}, v{CM+4}, v{M2}
        v_sub_f32 v{E+3}, v{CM+6}, v{M2}
        v_exp_f32 v{E}, v{E}
        v_exp_f32 v{E+1}, v{E+1}
        v_exp_f32 v{E+2}, v{E+2}
        v_exp_f32 v{E+3}, v{E+3}
        s_waitcnt lgkmcnt(0)
        v_mul_f32 v{T0}, v{E}, v{CO}
        v_mul_f32 v{T1}, v{E}, v{CO+1}
        v_mul_f32 v{M2+1}, v{E}, v{CM+1}
        """)
        for a in range(1, 4):
            g(f"""
            v_fmac_f32 v{T0}, v{E+a}, v{CO+2*a}
            v_fmac_f32 v{T1}, v{E+a}, v{CO+2*a+1}
            v_fmac_f32 v{M2+1}, v{E+a}, v{CM+2*a+1}
            """)
        g(f"""
        s_lshl_b32 s28, s4, 16
        s_lshl_b32 s29, s5, 11
        s_add_u32 s28, s28, s29
        s_add_u32 s28, s28, {WS_OB + layer*8*65536}
        """)
        g.pub(f"buffer_store_dwordx2 v[{T0}:{T1}], v{vPUB}, s[8:11], s28 offen")
        lab = g.label("noml")
        g(f"""
        s_bitcmp1_b32 s3, 0
        s_cbranch_scc1 {lab}
        s_lshl_b32 s28, s4, 9
        s_lshl_b32 s29, s5, 4
        s_add_u32 s28, s28, s29
        s_lshl_b32 s29, s3, 2
        s_add_u32 s28, s28, s29
        s_add_u32 s28, s28, {WS_MLB + layer*8*512}
        v_mov_b32 v{T2}, 0
        s_mov_b64 s[32:33], exec
        s_mov_b64 exec, 1
        """)
        g.pub(f"buffer_store_dwordx2 v[{M2}:{M2+1}], v{T2}, s[8:11], s28 offen")
        g(f"""
        s_mov_b64 exec, s[32:33]
        {lab}:
        """)
        g.stamp(sb+2, VTS)
        if layer == 0:
            g("s_barrier\ns_barrier\ns_barrier\ns_barrier")
    dump_ts(g, VTS)
    g("s_endpgm")


def dump_ts(g, vts):
    if not g.ts:
        return
    g(f"""
    s_mov_b64 exec, -1
    s_waitcnt lgkmcnt(0)
    v_mov_b32 v{vts}, 0
    """)
    for idx, r in g.tsmap.items():
        g(f"v_writelane_b32 v{vts}, s{r}, {idx}")
    g(f"""
    s_lshl_b32 s28, s2, 11
    s_lshl_b32 s29, s3, 8
    s_add_u32 s28, s28, s29
    s_add_u32 s28, s28, {WS_TS}
    v_lshlrev_b32 v1, 2, v0
    buffer_store_dword v{vts}, v1, s[8:11], s28 offen
    """)


WB = 16; WO = 72; WQB = 72; WD = 128; XA = 176
ACC = 232; CS = 236; CSQ = 237; vTRQ = 238; W_ONES = 240; XST = 244; SS1 = 248; SS2 = 249
U0, U1, U2, U3, U4 = 250, 251, 252, 253, 254
W_VTS = 255
vCOL, vXSW, vXA_, vXSt, vTR, vHA, vHM, vRB, vZW = 3, 4, 5, 6, 7, 8, 9, 12, 13
YP = 14
vZD, vZR = 10, 11
XR = 16
Y4 = 244


def gemv16(g, xs_off, WB, CS, out):
    g(f"""
    v_mov_b32 v{XST}, 0
    v_mov_b32 v{XST+1}, 0
    v_mov_b32 v{XST+2}, 0
    v_mov_b32 v{XST+3}, 0
    s_mov_b64 exec, s[36:37]
    ds_read_b128 v[{XST}:{XST+3}], v{vXSt} offset:{xs_off}
    s_mov_b64 exec, -1
    """)
    for j in range(14):
        g(f"ds_read_b128 v[{XA+4*j}:{XA+4*j+3}], v{vXA_} offset:{xs_off + j*64}")
    dpp = "row_mask:0xf bank_mask:0xf bound_ctrl:0"
    side = []
    side.append([f"v_dot2_f32_bf16 v{SS1}, v{XST}, v{W_ONES}, 0",
                 f"v_dot2_f32_bf16 v{SS2}, v{XST}, v{XST}, 0",
                 f"v_dot2_f32_bf16 v{SS1}, v{XST+1}, v{W_ONES}, v{SS1}"])
    side.append([f"v_dot2_f32_bf16 v{SS2}, v{XST+1}, v{XST+1}, v{SS2}",
                 f"v_dot2_f32_bf16 v{SS1}, v{XST+2}, v{W_ONES}, v{SS1}",
                 f"v_dot2_f32_bf16 v{SS2}, v{XST+2}, v{XST+2}, v{SS2}"])
    side.append([f"v_dot2_f32_bf16 v{SS1}, v{XST+3}, v{W_ONES}, v{SS1}",
                 f"v_dot2_f32_bf16 v{SS2}, v{XST+3}, v{XST+3}, v{SS2}",
                 "s_nop 2"])
    for sh in (1, 2, 4, 8):
        side.append([f"v_add_f32_dpp v{SS1}, v{SS1}, v{SS1} row_shr:{sh} {dpp}",
                     f"v_add_f32_dpp v{SS2}, v{SS2}, v{SS2} row_shr:{sh} {dpp}",
                     "s_nop 0"])
    side.append([f"v_add_f32_dpp v{SS1}, v{SS1}, v{SS1} row_bcast:15 row_mask:0xa bank_mask:0xf",
                 f"v_add_f32_dpp v{SS2}, v{SS2}, v{SS2} row_bcast:15 row_mask:0xa bank_mask:0xf",
                 "s_nop 0"])
    side.append([f"v_add_f32_dpp v{SS1}, v{SS1}, v{SS1} row_bcast:31 row_mask:0xc bank_mask:0xf",
                 f"v_add_f32_dpp v{SS2}, v{SS2}, v{SS2} row_bcast:31 row_mask:0xc bank_mask:0xf",
                 "s_nop 0"])
    side.append([f"v_readlane_b32 s46, v{SS1}, 63",
                 f"v_readlane_b32 s47, v{SS2}, 63",
                 f"v_mov_b32 v{U0}, s45",
                 "s_nop 0"])
    side.append([f"v_mul_f32 v{U1}, s46, v{U0}",
                 f"v_mul_f32 v{U2}, s47, v{U0}",
                 f"v_fma_f32 v{U2}, -v{U1}, v{U1}, v{U2}",
                 f"v_max_f32 v{U2}, 0, v{U2}"])
    if g.mimic:
        side.append([f"v_cvt_pk_bf16_f32 v{U3}, v{U1}, v{U2}",
                     f"v_lshlrev_b32 v{U1}, 16, v{U3}",
                     f"v_and_b32 v{U2}, 0xffff0000, v{U3}",
                     f"v_add_f32 v{U2}, s48, v{U2}"])
        side.append([f"v_cvt_pk_bf16_f32 v{U3}, v{U2}, v{U2}",
                     f"v_lshlrev_b32 v{U2}, 16, v{U3}",
                     f"v_sqrt_f32 v{U2}, v{U2}",
                     "s_nop 0"])
        side.append([f"v_cvt_pk_bf16_f32 v{U3}, v{U2}, v{U2}",
                     f"v_lshlrev_b32 v{U2}, 16, v{U3}",
                     f"v_rcp_f32 v{U2}, v{U2}"])
    else:
        side.append([f"v_add_f32 v{U2}, s48, v{U2}",
                     f"v_rsq_f32 v{U2}, v{U2}"])
    assert len(side) <= 14
    g("s_waitcnt lgkmcnt(14)")
    for j in range(14):
        g(f"s_waitcnt lgkmcnt({13-j})")
        g(mfma(ACC, XA + 4*j, WB + 4*j, None if j == 0 else ACC))
        if j < len(side):
            for s in side[j]:
                g(s)
    g.nop(8)
    g(f"""
    v_fma_f32 v{out}, -v{U1}, v{CS}, v{ACC}
    v_mul_f32 v{out}, v{out}, v{U2}
    """)


def stats_serial(g):
    dpp = "row_mask:0xf bank_mask:0xf bound_ctrl:0"
    g(f"v_dot2_f32_bf16 v{SS1}, v{XST}, v{W_ONES}, 0")
    g(f"v_dot2_f32_bf16 v{SS2}, v{XST}, v{XST}, 0")
    for k in range(1, 4):
        g(f"v_dot2_f32_bf16 v{SS1}, v{XST+k}, v{W_ONES}, v{SS1}")
        g(f"v_dot2_f32_bf16 v{SS2}, v{XST+k}, v{XST+k}, v{SS2}")
    g("s_nop 3")
    for sh in (1, 2, 4, 8):
        g(f"v_add_f32_dpp v{SS1}, v{SS1}, v{SS1} row_shr:{sh} {dpp}")
        g(f"v_add_f32_dpp v{SS2}, v{SS2}, v{SS2} row_shr:{sh} {dpp}")
        g("s_nop 1")
    for bc, rm in ((15, "0xa"), (31, "0xc")):
        g(f"v_add_f32_dpp v{SS1}, v{SS1}, v{SS1} row_bcast:{bc} row_mask:{rm} bank_mask:0xf")
        g(f"v_add_f32_dpp v{SS2}, v{SS2}, v{SS2} row_bcast:{bc} row_mask:{rm} bank_mask:0xf")
        g("s_nop 1")
    g(f"""
    v_readlane_b32 s46, v{SS1}, 63
    v_readlane_b32 s47, v{SS2}, 63
    v_mov_b32 v{U0}, s45
    s_nop 1
    v_mul_f32 v{U1}, s46, v{U0}
    v_mul_f32 v{U2}, s47, v{U0}
    v_fma_f32 v{U2}, -v{U1}, v{U1}, v{U2}
    v_max_f32 v{U2}, 0, v{U2}
    """)
    if g.mimic:
        g(f"""
        v_cvt_pk_bf16_f32 v{U3}, v{U1}, v{U2}
        v_lshlrev_b32 v{U1}, 16, v{U3}
        v_and_b32 v{U2}, 0xffff0000, v{U3}
        v_add_f32 v{U2}, s48, v{U2}
        v_cvt_pk_bf16_f32 v{U3}, v{U2}, v{U2}
        v_lshlrev_b32 v{U2}, 16, v{U3}
        v_sqrt_f32 v{U2}, v{U2}
        s_nop 0
        v_cvt_pk_bf16_f32 v{U3}, v{U2}, v{U2}
        v_lshlrev_b32 v{U2}, 16, v{U3}
        v_rcp_f32 v{U2}, v{U2}
        s_nop 0
        """)
    else:
        g(f"""
        v_add_f32 v{U2}, s48, v{U2}
        v_rsq_f32 v{U2}, v{U2}
        s_nop 0
        """)


def gemv16_plain(g, xs_off, wb, out):
    for j in range(14):
        g(f"ds_read_b128 v[{XA+4*j}:{XA+4*j+3}], v{vXA_} offset:{xs_off + j*64}")
    for j in range(14):
        g(f"s_waitcnt lgkmcnt({13-j})")
        g(mfma(ACC, XA + 4*j, wb + 4*j, None if j == 0 else ACC))
    g.nop(8)
    g(f"v_mov_b32 v{out}, v{ACC}")


def tr_reads(g, wb, vtr):
    for j in range(14):
        g(f"ds_read_b64_tr_b16 v[{wb+4*j}:{wb+4*j+1}], v{vtr} offset:{j*1024}")
        g(f"ds_read_b64_tr_b16 v[{wb+4*j+2}:{wb+4*j+3}], v{vtr} offset:{j*1024 + 128}")
        if j % 4 == 3:
            g("s_waitcnt lgkmcnt(0)")
    g("s_waitcnt lgkmcnt(0)")


def colsum(g, wb, cs):
    for j in range(14):
        g(mfma(ACC, W_ONES, wb + 4*j, None if j == 0 else ACC))
    g.nop(8)
    g(f"v_mov_b32 v{cs}, v{ACC}")


def load_WB(g, wb=WB, cs=CS, vtr=vTR):
    for j in range(14):
        g(f"ds_read_b64_tr_b16 v[{wb+4*j}:{wb+4*j+1}], v{vtr} offset:{j*1024}")
        g(f"ds_read_b64_tr_b16 v[{wb+4*j+2}:{wb+4*j+3}], v{vtr} offset:{j*1024 + 128}")
        if j % 4 == 3:
            g("s_waitcnt lgkmcnt(0)")
    g("s_waitcnt lgkmcnt(0)")
    for j in range(14):
        g(mfma(ACC, W_ONES, wb + 4*j, None if j == 0 else ACC))
    g.nop(8)
    g(f"v_mov_b32 v{cs}, v{ACC}")


def q_stage(g, layer, xs_idx):
    if layer == 0:
        gemv16_plain(g, L_XS + xs_idx*1024, WQB, U4)
    else:
        gemv16(g, L_XS + xs_idx*1024, WQB, CSQ, U4)
    g(f"""
    s_nop 1
    v_mov_b32_dpp v{U3}, v{U4} quad_perm:[1,0,3,2] row_mask:0xf bank_mask:0xf
    v_mov_b32 v{YP+1}, s6
    v_cvt_pk_bf16_f32 v{YP}, v{U4}, v{U3}
    v_lshlrev_b32 v{U0}, 2, v0
    s_lshl_b32 s28, s4, 11
    s_lshl_b32 s29, s40, 6
    s_add_u32 s28, s28, s29
    s_add_u32 s28, s28, {WS_QB + layer*8*2048}
    s_mov_b64 exec, 0x5555
    """)
    st = f"buffer_store_dwordx2 v[{YP}:{YP+1}], v{U0}, s[8:11], s28 offen"
    if layer == 0:
        g(st + " sc1")
    else:
        g.pub(st)
    g("s_mov_b64 exec, -1")


def reducer(g, stage, nprod):
    lab = g.label("nored")
    g(f"""
    s_cmp_ge_u32 s5, 14
    s_cbranch_scc1 {lab}
    s_lshl_b32 s28, s4, 16
    s_lshl_b32 s29, s5, 7
    s_add_u32 s28, s28, s29
    s_add_u32 s28, s28, {WS_YB + stage*8*65536}
    s_add_u32 s29, s28, 16384
    s_add_u32 s30, s28, 32768
    s_add_u32 s31, s28, 49152
    """)
    R = XA
    if nprod == 28:
        for k in range(4):
            g(f"v_mov_b32 v{R+12+k}, 0")
    def loads():
        for u in range(2 if nprod == 16 else 3):
            g(f"buffer_load_dwordx4 v[{R+4*u}:{R+4*u+3}], v{vRB}, s[8:11], s{28+u} offen sc1")
        if nprod == 28:
            g("s_mov_b32 exec_lo, 0x00ff00ff\ns_mov_b32 exec_hi, 0x00ff00ff")
            g(f"buffer_load_dwordx4 v[{R+12}:{R+15}], v{vRB}, s[8:11], s31 offen sc1")
            g("s_mov_b64 exec, -1")
    def check():
        g.sentinel_check(range(R, R + (8 if nprod == 16 else 16)), U0)
    g.poll(loads, check)
    g.stamp(24 + stage, W_VTS, 3)
    for k in range(4):
        g(f"v_add_f32 v{R+k}, v{R+k}, v{R+4+k}")
        if nprod == 28:
            g(f"v_add_f32 v{R+8+k}, v{R+8+k}, v{R+12+k}")
    if nprod == 28:
        for k in range(4):
            g(f"v_add_f32 v{R+k}, v{R+k}, v{R+8+k}")
    g("s_nop 0")
    for sh in (2, 4, 8):
        for k in range(4):
            g(f"v_add_f32_dpp v{R+k}, v{R+k}, v{R+k} row_ror:{sh} row_mask:0xf bank_mask:0xf")
    g(f"""
    s_lshl_b32 s28, s4, 7
    s_lshl_b32 s29, s5, 10
    s_add_u32 s28, s28, s29
    s_add_u32 s28, s28, {WS_ZB + stage*8*16384}
    buffer_store_dwordx4 v[{R}:{R+3}], v{vZD}, s[8:11], s28 offen sc1
    s_lshl_b32 s28, s4, 14
    s_add_u32 s28, s28, s29
    s_add_u32 s28, s28, {WS_ZB + stage*8*16384}
    """)
    if stage == 3:
        g(f"""
        s_cmp_lg_u32 s4, 0
        s_cbranch_scc1 {lab}
        """)
    R2 = XA + 16
    if g.npipe > 1:
        base = 24 + (stage & 1)*16
        g.poll_pipe(lambda b: g(f"buffer_load_dwordx4 v[{b}:{b+3}], v{vZR}, s[8:11], s28 offen sc1"), 4,
                    [base + 4*k for k in range(g.npipe)], R2, U0)
        g("s_nop 1")
    else:
        def loads2():
            g(f"buffer_load_dwordx4 v[{R2}:{R2+3}], v{vZR}, s[8:11], s28 offen sc1")
        def check2():
            g.sentinel_check(range(R2, R2+4), U0)
        g.poll(loads2, check2)
    for sh in (2, 4, 8):
        for k in range(4):
            g(f"v_add_f32_dpp v{R2+k}, v{R2+k}, v{R2+k} row_ror:{sh} row_mask:0xf bank_mask:0xf")
    if g.mimic:
        g(f"""
        v_cvt_pk_bf16_f32 v{U0}, v{R2}, v{R2+1}
        v_cvt_pk_bf16_f32 v{U1}, v{R2+2}, v{R2+3}
        v_lshlrev_b32 v{R2}, 16, v{U0}
        v_and_b32 v{R2+1}, 0xffff0000, v{U0}
        v_lshlrev_b32 v{R2+2}, 16, v{U1}
        v_and_b32 v{R2+3}, 0xffff0000, v{U1}
        """)
    g(f"""
    v_pk_add_f32 v[{XR}:{XR+1}], v[{XR}:{XR+1}], v[{R2}:{R2+1}]
    v_pk_add_f32 v[{XR+2}:{XR+3}], v[{XR+2}:{XR+3}], v[{R2+2}:{R2+3}]
    v_cvt_pk_bf16_f32 v{YP}, v{XR}, v{XR+1}
    v_cvt_pk_bf16_f32 v{YP+1}, v{XR+2}, v{XR+3}
    v_lshrrev_b32 v{U0}, 1, v{vZW}
    s_mov_b32 exec_lo, 0x00030003
    s_mov_b32 exec_hi, 0x00030003
    """)
    if stage < 3:
        g(f"""
        s_lshl_b32 s28, s4, 10
        s_lshl_b32 s29, s5, 6
        s_add_u32 s28, s28, s29
        s_add_u32 s28, s28, {WS_XB + stage*8*1024}
        """)
        g.pub(f"buffer_store_dwordx2 v[{YP}:{YP+1}], v{U0}, s[8:11], s28 offen")
        g(f"""
        s_mov_b64 exec, -1
        v_lshlrev_b32 v{XR}, 16, v{YP}
        v_and_b32 v{XR+1}, 0xffff0000, v{YP}
        v_lshlrev_b32 v{XR+2}, 16, v{YP+1}
        v_and_b32 v{XR+3}, 0xffff0000, v{YP+1}
        """)
    else:
        g(f"""
        s_lshl_b32 s28, s5, 6
        buffer_store_dwordx2 v[{YP}:{YP+1}], v{U0}, s[20:23], s28 offen
        s_mov_b64 exec, -1
        s_cmp_lg_u32 s2, 0
        s_cbranch_scc1 {lab}
        s_add_u32 s50, s50, 1
        v_mov_b32 v{U1}, s50
        v_mov_b32 v{U0}, 0
        s_mov_b64 exec, 1
        buffer_store_dword v{U1}, v{U0}, s[8:11], 0 offen sc1
        s_mov_b64 exec, -1
        """)
        if "--dbgtime" in sys.argv:
            g(f"""
            s_memrealtime s[92:93]
            s_waitcnt lgkmcnt(0)
            s_sub_u32 s92, s92, s90
            v_mov_b32 v{U1}, s92
            s_mov_b64 exec, 1
            buffer_store_dword v{U1}, v{U0}, s[96:99], 0 offen
            s_mov_b64 exec, -1
            """)
    g(f"{lab}:")


def x_gather(g, stage, xs_idx):
    R = XA
    g(f"""
    s_lshl_b32 s28, s4, 10
    s_add_u32 s28, s28, {WS_XB + stage*8*1024}
    s_mov_b64 exec, s[36:37]
    """)
    def loads():
        g(f"buffer_load_dwordx4 v[{R}:{R+3}], v{vXSt}, s[8:11], s28 offen sc1")
    def check():
        g.sentinel_check(range(R, R+4), U0)
    g.poll(loads, check, g.xback)
    g(f"""
    ds_write_b128 v{vXSt}, v[{R}:{R+3}] offset:{L_XS + xs_idx*1024}
    s_mov_b64 exec, -1
    s_waitcnt lgkmcnt(0)
    """)


def pub_y(g, stage):
    g(f"""
    s_lshl_b32 s28, s4, 16
    s_lshl_b32 s29, s5, 11
    s_add_u32 s28, s28, s29
    s_add_u32 s28, s28, {WS_YB + stage*8*65536}
    s_mov_b64 exec, s[36:37]
    """)
    g.pub(f"buffer_store_dwordx2 v[{YP}:{YP+1}], v{vCOL}, s[8:11], s28 offen")
    g("s_mov_b64 exec, -1")


def hop_a(g, layer):
    R = XA
    g(f"""
    s_lshl_b32 s28, s4, 16
    s_lshl_b32 s29, s33, 6
    s_add_u32 s28, s28, s29
    s_add_u32 s28, s28, {WS_OB + layer*8*65536}
    s_add_u32 s29, s28, 32768
    s_lshl_b32 s30, s4, 9
    s_lshr_b32 s31, s33, 4
    s_lshl_b32 s31, s31, 3
    s_add_u32 s30, s30, s31
    s_add_u32 s30, s30, {WS_MLB + layer*8*512}
    """)
    def loads():
        g(f"buffer_load_dwordx2 v[{R+8}:{R+9}], v{vHM}, s[8:11], s30 offen sc1")
        g(f"buffer_load_dwordx2 v[{R+10}:{R+11}], v{vHM}, s[8:11], s30 offen offset:256 sc1")
        g(f"buffer_load_dwordx4 v[{R}:{R+3}], v{vHA}, s[8:11], s28 offen sc1")
        g(f"buffer_load_dwordx4 v[{R+4}:{R+7}], v{vHA}, s[8:11], s29 offen sc1")
    def check():
        g.sentinel_check(range(R, R+12), U0)
    g.poll(loads, check)
    g(f"v_max_f32 v{U0}, v{R+8}, v{R+10}")
    for sh in (1, 2, 4, 8):
        g("s_nop 1")
        g(f"v_max_f32_dpp v{U0}, v{U0}, v{U0} row_ror:{sh} row_mask:0xf bank_mask:0xf")
    g(f"""
    v_sub_f32 v{U1}, v{R+8}, v{U0}
    v_sub_f32 v{U2}, v{R+10}, v{U0}
    v_exp_f32 v{U1}, v{U1}
    v_exp_f32 v{U2}, v{U2}
    s_nop 0
    v_mul_f32 v{U3}, v{U1}, v{R+9}
    v_mul_f32 v{R}, v{U1}, v{R}
    v_mul_f32 v{R+1}, v{U1}, v{R+1}
    v_mul_f32 v{R+2}, v{U1}, v{R+2}
    v_mul_f32 v{R+3}, v{U1}, v{R+3}
    v_fmac_f32 v{U3}, v{U2}, v{R+11}
    v_fmac_f32 v{R}, v{U2}, v{R+4}
    v_fmac_f32 v{R+1}, v{U2}, v{R+5}
    v_fmac_f32 v{R+2}, v{U2}, v{R+6}
    v_fmac_f32 v{R+3}, v{U2}, v{R+7}
    """)
    for sh in (1, 2, 4, 8):
        for r in (U3, R, R+1, R+2, R+3):
            g(f"v_add_f32_dpp v{r}, v{r}, v{r} row_ror:{sh} row_mask:0xf bank_mask:0xf")
    g(f"""
    v_rcp_f32 v{U3}, v{U3}
    s_lshl_b32 s28, s35, 6
    v_lshl_add_u32 v{U0}, v2, 4, s28
    v_mul_f32 v{R}, v{U3}, v{R}
    v_mul_f32 v{R+1}, v{U3}, v{R+1}
    v_mul_f32 v{R+2}, v{U3}, v{R+2}
    v_mul_f32 v{R+3}, v{U3}, v{R+3}
    """)
    if g.mimic:
        g(f"""
        v_cvt_pk_bf16_f32 v{U1}, v{R}, v{R+1}
        v_cvt_pk_bf16_f32 v{U2}, v{R+2}, v{R+3}
        v_lshlrev_b32 v{R}, 16, v{U1}
        v_and_b32 v{R+1}, 0xffff0000, v{U1}
        v_lshlrev_b32 v{R+2}, 16, v{U2}
        v_and_b32 v{R+3}, 0xffff0000, v{U2}
        """)
    g(f"""
    s_mov_b32 exec_lo, 0x00010001
    s_mov_b32 exec_hi, 0x00010001
    ds_write_b128 v{U0}, v[{R}:{R+3}] offset:{L_OS}
    s_mov_b64 exec, -1
    s_waitcnt lgkmcnt(0)
    """)


TCALC = """
s_waitcnt lgkmcnt(0)
s_mul_i32 s6, s50, 0x9E3779B1
s_add_u32 s6, s6, 0x7F4A7C15
"""


def addr_setup(g):
    g(f"""
    v_lshlrev_b32 v{vXA_}, 4, v2
    v_lshrrev_b32 v{U0}, 2, v1
    v_lshl_add_u32 v{U0}, v2, 3, v{U0}
    v_lshlrev_b32 v{vTR}, 5, v{U0}
    v_and_b32 v{U0}, 3, v1
    v_lshl_add_u32 v{vTR}, v{U0}, 3, v{vTR}
    s_mul_i32 s28, s32, 14336
    s_add_u32 s28, s28, {L_IMG}
    v_add_u32 v{vTR}, s28, v{vTR}
    v_lshlrev_b32 v{vHA}, 11, v1
    v_lshl_add_u32 v{vHA}, v2, 4, v{vHA}
    v_lshlrev_b32 v{vHM}, 4, v1
    v_and_b32 v{U0}, 1, v1
    v_lshl_add_u32 v{U0}, v2, 1, v{U0}
    v_lshlrev_b32 v{vZW}, 4, v{U0}
    v_lshrrev_b32 v{U1}, 1, v1
    v_lshl_add_u32 v{vRB}, v{U1}, 11, v{vZW}
    v_lshl_add_u32 v{vZD}, v{U1}, 14, v{vZW}
    v_lshl_add_u32 v{vZR}, v{U1}, 7, v{vZW}
    v_mov_b32 v{W_ONES}, 0x3f803f80
    v_mov_b32 v{W_ONES+1}, 0x3f803f80
    v_mov_b32 v{W_ONES+2}, 0x3f803f80
    v_mov_b32 v{W_ONES+3}, 0x3f803f80
    s_mov_b32 s45, {f32hex(1.0/448.0)}
    s_mov_b32 s48, {f32hex(1e-5)}
    s_mov_b32 s49, {f32hex(-LOG2E)}
    """)


def clears(g, role):
    g(f"""
    v_mov_b32 v{XA}, -1
    v_mov_b32 v{XA+1}, -1
    v_mov_b32 v{XA+2}, -1
    v_mov_b32 v{XA+3}, -1
    s_lshl_b32 s28, s4, 16
    s_lshl_b32 s29, s5, 11
    s_add_u32 s28, s28, s29
    """)
    def st2k(sreg):
        g(f"buffer_store_dwordx4 v[{XA}:{XA+3}], v{vXSt}, s[8:11], {sreg} offen sc1")
        g(f"buffer_store_dwordx4 v[{XA}:{XA+3}], v{vXSt}, s[8:11], {sreg} offen offset:1024 sc1")
    for l in range(2):
        g(f"s_add_u32 s29, s28, {WS_OB + l*8*65536}")
        st2k("s29")
    if role == "R":
        for st in (0, 2):
            g(f"s_add_u32 s29, s28, {WS_YB + st*8*65536}")
            st2k("s29")
    else:
        ly = g.label("noy")
        g(f"""
        s_cmp_ge_u32 s5, 30
        s_cbranch_scc1 {ly}
        s_sub_u32 s30, s5, 16
        s_lshl_b32 s30, s30, 12
        s_lshl_b32 s31, s4, 16
        s_add_u32 s30, s30, s31
        """)
        for st in (1, 3):
            for t in range(2):
                g(f"s_add_u32 s29, s30, {WS_YB + st*8*65536 + t*2048}")
                st2k("s29")
        g(f"{ly}:")
    g(f"""
    s_lshl_b32 s28, s4, 9
    s_lshl_b32 s29, s5, 4
    s_add_u32 s28, s28, s29
    s_mov_b64 exec, 1
    """)
    for l in range(2):
        g(f"s_add_u32 s29, s28, {WS_MLB + l*8*512}")
        g(f"buffer_store_dwordx4 v[{XA}:{XA+3}], v{vXSt}, s[8:11], s29 offen sc1")
    if role == "R":
        lz = g.label("noz")
        g(f"""
        s_cmp_ge_u32 s5, 14
        s_cbranch_scc1 {lz}
        s_mov_b64 exec, -1
        v_lshrrev_b32 v{U0}, 3, v0
        v_lshlrev_b32 v{U0}, 14, v{U0}
        v_and_b32 v{U1}, 7, v0
        v_lshl_add_u32 v{U0}, v{U1}, 4, v{U0}
        s_lshl_b32 s28, s4, 7
        s_lshl_b32 s29, s5, 10
        s_add_u32 s28, s28, s29
        """)
        for st in range(4):
            g(f"s_add_u32 s29, s28, {WS_ZB + st*8*16384}")
            g(f"buffer_store_dwordx4 v[{XA}:{XA+3}], v{U0}, s[8:11], s29 offen sc1")
        g(f"""
        s_mov_b64 exec, 0xf
        s_lshl_b32 s28, s4, 10
        s_lshl_b32 s29, s5, 6
        s_add_u32 s28, s28, s29
        """)
        for st in range(3):
            g(f"s_add_u32 s29, s28, {WS_XB + st*8*1024}")
            g(f"buffer_store_dwordx4 v[{XA}:{XA+3}], v{vXSt}, s[8:11], s29 offen sc1")
        g(f"{lz}:")
    g("s_mov_b64 exec, -1")


def hello_pub(g):
    g(TCALC)
    g(f"""
    s_getreg_b32 s51, hwreg(HW_REG_XCC_ID)
    s_and_b32 s51, s51, 15
    s_or_b32 s51, s51, 0x100
    v_mov_b32 v{YP}, s51
    v_mov_b32 v{YP+1}, s6
    v_mov_b32 v{U0}, 0
    s_lshl_b32 s28, s2, 3
    s_add_u32 s28, s28, {WS_HB}
    s_waitcnt vmcnt(0)
    s_mov_b64 exec, 1
    buffer_store_dwordx2 v[{YP}:{YP+1}], v{U0}, s[8:11], s28 offen sc1
    s_mov_b64 exec, -1
    """)


def hello_poll(g):
    HR = XA
    g(f"s_movk_i32 s28, {WS_HB}")
    def loads():
        g(f"buffer_load_dwordx4 v[{HR}:{HR+3}], v{vXSt}, s[8:11], s28 offen sc1")
        g(f"buffer_load_dwordx4 v[{HR+4}:{HR+7}], v{vXSt}, s[8:11], s28 offen offset:1024 sc1")
    def check():
        g(f"""
        v_xor_b32 v{U0}, s6, v{HR+1}
        v_xor_b32 v{U1}, s6, v{HR+3}
        v_xor_b32 v{U2}, s6, v{HR+5}
        v_xor_b32 v{U3}, s6, v{HR+7}
        v_or3_b32 v{U0}, v{U0}, v{U1}, v{U2}
        v_or_b32 v{U0}, v{U0}, v{U3}
        v_cmp_ne_u32 vcc, 0, v{U0}
        """)
    g.poll(loads, check, g.hback)
    g(f"""
    v_lshlrev_b32 v{U0}, 1, v0
    v_and_b32 v{U0}, 7, v{U0}
    v_or_b32 v{U1}, 1, v{U0}
    v_cmp_eq_u32 s[52:53], s4, v{U0}
    v_cmp_eq_u32 s[54:55], s4, v{U1}
    v_cmp_ne_u32 s[56:57], s51, v{HR}
    v_cmp_ne_u32 s[58:59], s51, v{HR+4}
    v_cmp_ne_u32 s[60:61], s51, v{HR+2}
    v_cmp_ne_u32 s[62:63], s51, v{HR+6}
    s_or_b64 s[56:57], s[56:57], s[58:59]
    s_or_b64 s[60:61], s[60:61], s[62:63]
    s_and_b64 s[56:57], s[56:57], s[52:53]
    s_and_b64 s[60:61], s[60:61], s[54:55]
    s_or_b64 s[56:57], s[56:57], s[60:61]
    s_cmp_eq_u64 s[56:57], 0
    s_cselect_b32 s7, {0 if '--slow' in sys.argv else 1}, 0
    v_mov_b32 v{U0}, {L_TL}
    v_mov_b32 v{U1}, s7
    ds_write_b32 v{U0}, v{U1} offset:4
    s_waitcnt lgkmcnt(0)
    """)


def read_fast(g):
    g(f"""
    v_mov_b32 v{U0}, {L_TL}
    ds_read_b32 v{U1}, v{U0} offset:4
    s_waitcnt lgkmcnt(0)
    v_readfirstlane_b32 s7, v{U1}
    """)


def only(g, w, fn):
    lab = g.label("only")
    g(f"""
    s_cmp_lg_u32 s35, {w}
    s_cbranch_scc1 {lab}
    """)
    fn()
    g(f"{lab}:")


def w_wave_R(g, lend):
    g("; ---------------- W wave, role R (wo, hop A, reducers) ----------------")
    l3 = g.label("r3"); lj = g.label("rj")
    g(f"""
    s_and_b32 s32, s35, 1
    s_lshl_b32 s33, s5, 1
    s_add_u32 s33, s33, s32
    s_cmp_eq_u32 s35, 3
    s_cbranch_scc1 {l3}
    """)
    lw2 = g.label("rw2"); lw3 = g.label("rw3")
    g(f"""
    s_cmp_eq_u32 s35, 2
    s_cbranch_scc1 {lw2}
    s_lshl_b32 s28, s4, 9
    s_lshl_b32 s29, s5, 5
    s_add_u32 s28, s28, s29
    s_lshl_b32 s29, s35, 4
    s_add_u32 s28, s28, s29
    s_mul_i32 s28, s28, 896
    """)
    srd_off(g, 24, 72, 73, 28, 16*896)
    g(f"""
    s_mul_i32 s28, s35, {16*896}
    s_add_u32 s28, s28, {L_WO}
    v_add_u32 v{U4}, s28, v{vXSt}
    s_mov_b64 exec, s[36:37]
    """)
    for r in range(16):
        g(f"s_movk_i32 s28, {r*896}")
        g(f"buffer_load_dwordx4 v[{WO+4*r}:{WO+4*r+3}], v{vXSt}, s[24:27], s28 offen nt")
    g("""
    s_mov_b64 exec, -1
    s_barrier
    """)
    addr_setup(g)
    g("s_mov_b64 exec, s[36:37]")
    for r in range(16):
        g(f"s_waitcnt vmcnt({15-r})")
        g(f"ds_write_b128 v{U4}, v[{WO+4*r}:{WO+4*r+3}] offset:{r*896}")
        if r % 8 == 7: g("s_waitcnt lgkmcnt(0)")
    g(f"""
    s_mov_b64 exec, -1
    s_branch {lj}
    {lw2}:
    s_barrier
    """)
    addr_setup(g)
    g(f"""
    s_lshl_b32 s28, s5, 6
    v_lshrrev_b32 v{U0}, 1, v{vZW}
    buffer_load_dwordx2 v[{XR+2}:{XR+3}], v{U0}, s[12:15], s28 offen
    s_waitcnt vmcnt(0)
    v_lshlrev_b32 v{XR}, 16, v{XR+2}
    v_and_b32 v{XR+1}, 0xffff0000, v{XR+2}
    v_lshlrev_b32 v{XR+2}, 16, v{XR+3}
    v_and_b32 v{XR+3}, 0xffff0000, v{XR+3}
    s_branch {lj}
    {l3}:
    """)
    clears(g, "R")
    g("s_barrier")
    addr_setup(g)
    hello_pub(g)
    if g.hmode != "bk":
        g(f"s_sleep {g.hsleep}")
        hello_poll(g)
    g(f"{lj}:")
    g("s_waitcnt lgkmcnt(0)")
    g.stamp(4, W_VTS)
    g("s_barrier")
    g.ts_zero_late()
    if g.hmode == "bk":
        only(g, 3, lambda: hello_poll(g))
    g(f"v_add_u32 v{U4}, {L_WO}, v{vXSW}")
    for r in range(32):
        g(f"ds_read_b32 v{WO+2*r+1}, v{U4} offset:{r*896}")
        if r % 8 == 7: g("s_waitcnt lgkmcnt(0)")
    for r in range(32):
        g(f"v_lshlrev_b32 v{WO+2*r}, 16, v{WO+2*r+1}")
        g(f"v_and_b32 v{WO+2*r+1}, 0xffff0000, v{WO+2*r+1}")
    for layer in range(2):
        sb = 5 + layer*8
        g.stamp(sb, W_VTS)
        g("s_barrier")
        if layer == 0:
            read_fast(g)
        la = g.label("noa")
        g(f"""
        s_cmp_ge_u32 s35, 2
        s_cbranch_scc1 {la}
        """)
        hop_a(g, layer)
        g(f"{la}:")
        g.stamp(sb+1, W_VTS)
        g("s_barrier")
        g(f"v_mov_b32 v{U0}, {L_OS}")
        for k in range(8):
            g(f"ds_read_b128 v[{XA+4*k}:{XA+4*k+3}], v{U0} offset:{k*16}")
        accs = [YP, U2, XA+32, XA+34]
        for k in range(8):
            g(f"s_waitcnt lgkmcnt({7-k})")
            for r in range(4*k, 4*k+4):
                src = XA + (r & ~1)
                dst = accs[r & 3]
                sel = "op_sel:[1,0,0] op_sel_hi:[1,1,1]" if r & 1 else "op_sel_hi:[0,1,1]"
                if r < 4:
                    sel2 = "op_sel:[1,0] op_sel_hi:[1,1]" if r & 1 else "op_sel_hi:[0,1]"
                    g(f"v_pk_mul_f32 v[{dst}:{dst+1}], v[{src}:{src+1}], v[{WO+2*r}:{WO+2*r+1}] {sel2}")
                else:
                    g(f"v_pk_fma_f32 v[{dst}:{dst+1}], v[{src}:{src+1}], v[{WO+2*r}:{WO+2*r+1}], v[{dst}:{dst+1}] {sel}")
        g(f"""
        v_pk_add_f32 v[{YP}:{YP+1}], v[{YP}:{YP+1}], v[{U2}:{U2+1}]
        v_pk_add_f32 v[{XA+32}:{XA+33}], v[{XA+32}:{XA+33}], v[{XA+34}:{XA+35}]
        v_pk_add_f32 v[{YP}:{YP+1}], v[{YP}:{YP+1}], v[{XA+32}:{XA+33}]
        """)
        pub_y(g, 2*layer)
        g.stamp(sb+2, W_VTS)
        if layer == 0:
            g("s_barrier\ns_barrier")
        def red():
            reducer(g, 2*layer, 16)
            g.stamp(sb+3, W_VTS)
            reducer(g, 2*layer + 1, 28)
            g.stamp(sb+4, W_VTS)
        only(g, 2, red)
        if layer == 0:
            g("s_barrier")
    g(f"s_branch {lend}")


def w_wave_F(g, lend):
    g("; ---------------- W wave, role F (wq/q, FFN) ----------------")
    g(f"""
    s_and_b32 s32, s35, 1
    s_lshr_b32 s33, s35, 1
    s_sub_u32 s30, s5, 16
    s_lshl_b32 s40, s30, 1
    s_add_u32 s40, s40, s32
    """)
    l23 = g.label("f23"); lj = g.label("fj")
    g(f"""
    s_cmp_ge_u32 s35, 2
    s_cbranch_scc1 {l23}
    """)
    g(f"""
    v_mov_b32 v{XST}, 0
    v_mov_b32 v{XST+1}, 0
    v_mov_b32 v{XST+2}, 0
    v_mov_b32 v{XST+3}, 0
    s_mov_b64 exec, s[36:37]
    buffer_load_dwordx4 v[{XST}:{XST+3}], v{vXSt}, s[12:15], 0 offen
    s_mov_b64 exec, -1
    s_lshl_b32 s28, s4, 10
    s_lshl_b32 s29, s30, 6
    s_add_u32 s28, s28, s29
    s_mul_i32 s29, s35, {224*8192}
    s_add_u32 s28, s28, s29
    s_sub_u32 s29, {448*8192}, s28
    """)
    srd_off(g, 16, 70, 71, 28, "s29")
    g(f"""
    v_lshrrev_b32 v{U2}, 2, v0
    v_lshlrev_b32 v{U0}, 13, v{U2}
    v_and_b32 v{U1}, 3, v0
    v_lshl_add_u32 v{U0}, v{U1}, 4, v{U0}
    """)
    for jj in range(14):
        g(f"s_mov_b32 s28, {jj*16*8192}")
        g(f"buffer_load_dwordx4 v[{XA+4*jj}:{XA+4*jj+3}], v{U0}, s[16:19], s28 offen nt")
    g("s_barrier")
    g(f"""
    v_lshrrev_b32 v{U3}, 1, v{U1}
    v_and_b32 v{U1}, 1, v{U1}
    s_movk_i32 s28, 14336
    v_mul_lo_u32 v{U3}, v{U3}, s28
    v_lshl_add_u32 v{U3}, v{U2}, 5, v{U3}
    v_lshl_add_u32 v{U3}, v{U1}, 4, v{U3}
    s_mul_i32 s28, s35, {224*32}
    s_add_u32 s28, s28, {L_WO}
    v_add_u32 v{U4}, s28, v{U3}
    """)
    addr_setup(g)
    g(f"""
    v_add_u32 v{vTRQ}, {L_WO - L_IMG}, v{vTR}
    s_waitcnt vmcnt(14)
    """)
    stats_serial(g)
    for k in range(4):
        g(f"""
        v_lshlrev_b32 v{SS1}, 16, v{XST+k}
        v_and_b32 v{SS2}, 0xffff0000, v{XST+k}
        v_sub_f32 v{SS1}, v{SS1}, v{U1}
        v_sub_f32 v{SS2}, v{SS2}, v{U1}
        """)
        if g.mimic:
            g(f"""
            v_cvt_pk_bf16_f32 v{U3}, v{SS1}, v{SS2}
            v_lshlrev_b32 v{SS1}, 16, v{U3}
            v_and_b32 v{SS2}, 0xffff0000, v{U3}
            """)
        g(f"""
        v_mul_f32 v{SS1}, v{SS1}, v{U2}
        v_mul_f32 v{SS2}, v{SS2}, v{U2}
        v_cvt_pk_bf16_f32 v{XST+k}, v{SS1}, v{SS2}
        """)
    g(f"""
    s_mov_b64 exec, s[36:37]
    ds_write_b128 v{vXSt}, v[{XST}:{XST+3}] offset:{L_XS}
    s_mov_b64 exec, -1
    """)
    for jj in range(14):
        g(f"s_waitcnt vmcnt({13-jj})")
        g(f"ds_write_b128 v{U4}, v[{XA+4*jj}:{XA+4*jj+3}] offset:{jj*512}")
        if jj % 8 == 7: g("s_waitcnt lgkmcnt(0)")
    g(TCALC)
    lsp = g.label("spin"); lsd = g.label("spind")
    g(f"""
    s_lshl_b32 s28, s35, 2
    s_add_u32 s28, s28, {L_TL + 8}
    v_mov_b32 v{U0}, s28
    v_mov_b32 v{U1}, 1
    ds_write_b32 v{U0}, v{U1}
    v_xor_b32 v{U0}, 4, v{U0}
    s_mov_b32 s34, 0
    {lsp}:
    ds_read_b32 v{U1}, v{U0}
    s_waitcnt lgkmcnt(0)
    v_readfirstlane_b32 s28, v{U1}
    s_cmp_eq_u32 s28, 1
    s_cbranch_scc1 {lsd}
    s_add_u32 s34, s34, 1
    s_cmp_lt_u32 s34, {POLL_LIMIT*8}
    s_cbranch_scc1 {lsp}
    {lsd}:
    """)
    tr_reads(g, WQB, vTRQ)
    q_stage(g, 0, 0)
    g.stamp(3, W_VTS)
    g(f"""
    s_lshl_b32 s28, s35, 2
    s_add_u32 s28, s28, {L_TL + 16}
    v_mov_b32 v{U0}, s28
    v_mov_b32 v{U1}, 1
    s_waitcnt vmcnt(0)
    ds_write_b32 v{U0}, v{U1}
    """)
    colsum(g, WQB, CSQ)

    g(f"s_branch {lj}")
    g(f"{l23}:")
    only(g, 3, lambda: clears(g, "F"))
    g("s_barrier")
    addr_setup(g)
    def hp():
        hello_pub(g)
        if g.hmode != "bk":
            g(f"s_sleep {g.hsleep}")
            hello_poll(g)
    only(g, 3, hp)
    g(f"{lj}:")
    g(f"""
    s_sub_u32 s30, s5, 16
    s_mul_i32 s28, s4, 448
    s_lshl_b32 s29, s30, 5
    s_add_u32 s28, s28, s29
    s_sub_u32 s29, {448*3584}, s28
    s_cmp_lt_u32 s5, 30
    s_cselect_b32 s28, s28, 0
    s_cselect_b32 s29, s29, 0
    s_cmp_eq_u32 s32, 0
    s_cselect_b32 s16, s76, s78
    s_cselect_b32 s17, s77, s79
    s_add_u32 s16, s16, s28
    s_addc_u32 s17, s17, 0
    s_mov_b32 s18, s29
    s_mov_b32 s19, 0x00020000
    s_mul_i32 s28, s4, 224
    s_lshl_b32 s29, s30, 4
    s_add_u32 s28, s28, s29
    s_lshl_b32 s29, s32, 3
    s_add_u32 s28, s28, s29
    s_mul_i32 s28, s28, 896
    s_cmp_lt_u32 s5, 30
    s_cselect_b32 s28, s28, 0
    s_cselect_b32 s29, {8*896}, 0
    """)
    srd_off(g, 24, 80, 81, 28, "s29")
    g(f"""
    v_lshrrev_b32 v{U0}, 1, v0
    s_mul_i32 s28, s33, 224
    v_add_u32 v{U0}, s28, v{U0}
    s_movk_i32 s28, 3584
    v_mul_lo_u32 v{vHA}, v{U0}, s28
    v_and_b32 v{U1}, 1, v0
    v_lshl_add_u32 v{vHA}, v{U1}, 4, v{vHA}
    s_movk_i32 s28, 14336
    v_mul_lo_u32 v{vHM}, v{U1}, s28
    v_lshl_add_u32 v{vHM}, v{U0}, 5, v{vHM}
    s_lshl_b32 s28, s32, 4
    s_add_u32 s28, s28, {L_IMG}
    v_add_u32 v{vHM}, s28, v{vHM}
    s_mul_i32 s28, s33, 448
    v_lshlrev_b32 v{vXSW}, 3, v0
    v_add_u32 v{vXSW}, s28, v{vXSW}
    v_lshlrev_b32 v{vCOL}, 1, v{vXSW}
    s_waitcnt lgkmcnt(0)
    """)
    g.stamp(4, W_VTS)
    g("s_barrier")
    g.ts_zero_late()
    if g.hmode == "bk":
        only(g, 3, lambda: hello_poll(g))
    def ffn_loads(lo, hi, thr):
        for k in range(lo, hi):
            if thr: g(f"s_waitcnt vmcnt({thr-1})")
            if k < 7:
                g(f"s_mov_b32 s28, {k*32*3584}")
                g(f"buffer_load_dwordx4 v[{XA+4*k}:{XA+4*k+3}], v{vHA}, s[16:19], s28 offen nt")
            else:
                f = k - 7
                g("s_mov_b64 exec, s[36:37]")
                g(f"s_movk_i32 s28, {f*896}")
                g(f"buffer_load_dwordx2 v[{WD+4*f+2}:{WD+4*f+3}], v{vXSW}, s[24:27], s28 offen nt")
                g("s_mov_b64 exec, -1")
    ffn_loads(0, g.early, 0)
    for layer in range(2):
        sb = 5 + layer*8
        g.stamp(sb, W_VTS)
        g("s_barrier")
        if layer == 0:
            read_fast(g)
            g("s_barrier")
            ffn_loads(g.early, 15, 0)
            for jj in range(7):
                g(f"s_waitcnt vmcnt({14-jj})")
                g(f"ds_write_b128 v{vHM}, v[{XA+4*jj}:{XA+4*jj+3}] offset:{jj*1024}")
            g("s_waitcnt vmcnt(0)")
            for f in range(8):
                r = WD + 4*f
                g(f"""
                v_lshlrev_b32 v{r}, 16, v{r+2}
                v_and_b32 v{r+1}, 0xffff0000, v{r+2}
                v_lshlrev_b32 v{r+2}, 16, v{r+3}
                v_and_b32 v{r+3}, 0xffff0000, v{r+3}
                """)
            g("s_waitcnt lgkmcnt(0)")
            g.stamp(sb+1, W_VTS)
            g("s_barrier")
            load_WB(g)
        else:
            g(f"""
            s_cmp_ge_u32 s5, 30
            s_cbranch_scc1 {lend}
            """)
        lx = g.label("nox")
        g(f"""
        s_cmp_ge_u32 s5, 30
        s_cbranch_scc1 {lx}
        """)
        only(g, 2, lambda: x_gather(g, 2*layer, 2*layer + 1))
        g(f"{lx}:")
        g.stamp(sb+2, W_VTS)
        g("s_barrier")
        lf = g.label("noffn")
        g(f"""
        s_cmp_ge_u32 s5, 30
        s_cbranch_scc1 {lf}
        """)
        gemv16(g, L_XS + (2*layer+1)*1024, WB, CS, U4)
        if g.mimic:
            g(f"""
            v_cvt_pk_bf16_f32 v{U3}, v{U4}, v{U4}
            v_lshlrev_b32 v{U4}, 16, v{U3}
            """)
        g(f"""
        v_mul_f32 v{U0}, s49, v{U4}
        v_exp_f32 v{U0}, v{U0}
        v_mov_b32_dpp v{U3}, v{U4} row_ror:8 row_mask:0xf bank_mask:0xf
        v_add_f32 v{U0}, 1.0, v{U0}
        v_rcp_f32 v{U0}, v{U0}
        s_nop 0
        v_mul_f32 v{U0}, v{U0}, v{U4}
        """)
        if g.mimic:
            g(f"""
            v_cvt_pk_bf16_f32 v{U1}, v{U0}, v{U0}
            v_lshlrev_b32 v{U0}, 16, v{U1}
            """)
        g(f"v_mul_f32 v{U0}, v{U0}, v{U3}")
        if g.mimic:
            g(f"""
            v_cvt_pk_bf16_f32 v{U1}, v{U0}, v{U0}
            v_lshlrev_b32 v{U0}, 16, v{U1}
            """)
        g(f"""
        v_mov_b32 v{Y4}, 0
        v_mov_b32 v{Y4+1}, 0
        v_mov_b32 v{Y4+2}, 0
        v_mov_b32 v{Y4+3}, 0
        """)
        for f in range(8):
            for c in range(4):
                g(f"v_fmac_f32_dpp v{Y4+c}, v{U0}, v{WD+4*f+c} row_newbcast:{f} row_mask:0xf bank_mask:0xf")
        g(f"""
        s_lshl_b32 s28, s40, 11
        s_lshl_b32 s29, s4, 16
        s_add_u32 s28, s28, s29
        s_add_u32 s28, s28, {WS_YB + (2*layer+1)*8*65536}
        s_mov_b64 exec, s[36:37]
        """)
        g.pub(f"buffer_store_dwordx4 v[{Y4}:{Y4+3}], v{vCOL}, s[8:11], s28 offen")
        g("s_mov_b64 exec, -1")
        g(f"{lf}:")
        g.stamp(sb+3, W_VTS)
        if layer == 0:
            only(g, 2, lambda: x_gather(g, 1, 2))
            g.stamp(sb+4, W_VTS)
            g("s_barrier")
            lq = g.label("noq")
            g(f"""
            s_cmp_ge_u32 s35, 2
            s_cbranch_scc1 {lq}
            """)
            q_stage(g, 1, 2)
            g(f"{lq}:")
            g.stamp(sb+6, W_VTS)


def w_wave(g):
    g.ts_begin(W_TS)
    for idx in (0, 3, 4, 5):
        g.tsmap[idx] = g.tsfree.pop(0)
    g.stamp(0, W_VTS, 1)
    g(f"""
    s_sub_u32 s35, s3, 4
    v_cmp_gt_u32 s[36:37], 56, v0
    s_mul_i32 s28, s35, 448
    v_lshlrev_b32 v{vCOL}, 3, v0
    v_add_u32 v{vCOL}, s28, v{vCOL}
    v_lshrrev_b32 v{vXSW}, 1, v{vCOL}
    v_lshlrev_b32 v{vXSt}, 4, v0
    """)
    srd(g, 12, 64, 65, 896)
    srd(g, 20, 82, 83, 896)
    if "--dbgtime" in sys.argv:
        g("s_memrealtime s[90:91]")
        srd(g, 96, 84, 85, 256)
    lF = g.label("roleF"); lend = g.label("wend")
    g(f"""
    s_cmp_ge_u32 s5, 16
    s_cbranch_scc1 {lF}
    """)
    w_wave_R(g, lend)
    g(f"{lF}:")
    w_wave_F(g, lend)
    g(f"{lend}:")
    g.stamp(31, W_VTS, 1)
    dump_ts(g, W_VTS)
    g("s_endpgm")


HEADER = open("cdna_kernels/" + NAME + ".s.ref").read().split("; Override launch")[0]


def build(ts=False, mimic=True, sleep=0, thr=(3, 0, 6)):
    g = Gen(ts, mimic, sleep, thr)
    g.L.append(HEADER.rstrip("\n"))
    g.L.append(f"; @launch grid=(256,1,1) block=(512,1,1) lds={LDS_BYTES}")
    g.L.append('.amdgcn_target "amdgcn-amd-amdhsa--gfx950"')
    g.L.append(".text")
    g.L.append(f".globl {KNAME}")
    g.L.append(".p2align 8")
    g.L.append(f".type {KNAME},@function")
    g.L.append(f"{KNAME}:")
    PERM = ""
    if "--perm" in sys.argv:
        PERM = "s_lshr_b32 s4, s2, 5\ns_lshl_b32 s5, s2, 3\ns_and_b32 s5, s5, 0xff\ns_or_b32 s2, s4, s5"
    g(f"""
    s_cmp_ge_u32 s2, 256
    s_cbranch_scc1 L_exit
    s_load_dwordx16 s[64:79], s[0:1], 0
    s_load_dwordx8 s[80:87], s[0:1], 64
    v_lshrrev_b32 v1, 6, v0
    v_and_b32 v0, 63, v0
    v_readfirstlane_b32 s3, v1
    v_and_b32 v1, 15, v0
    v_lshrrev_b32 v2, 4, v0
    {PERM}
    s_and_b32 s4, s2, 7
    s_lshr_b32 s5, s2, 3
    s_mov_b32 s7, 0
    s_waitcnt lgkmcnt(0)
    """)
    srd(g, 8, 86, 87, WS_SIZE)
    g(f"""
    s_cmp_lg_u32 s3, 6
    s_cbranch_scc1 L_noreset
    v_mov_b32 v3, {L_TL + 8}
    v_mov_b32 v4, 0
    v_mov_b32 v5, 0
    ds_write_b64 v3, v[4:5]
    ds_write_b64 v3, v[4:5] offset:8
    s_waitcnt lgkmcnt(0)
    L_noreset:
    s_load_dword s50, s[86:87], {WS_EPOCH}
    s_cmp_ge_u32 s3, 4
    s_cbranch_scc1 L_wwave
    """)
    a_wave(g)
    g("L_wwave:")
    w_wave(g)
    g("L_exit:")
    g("s_endpgm")
    g.L.append('.section .rodata,"a"')
    g.L.append(".p2align 6")
    g.L.append(f".amdhsa_kernel {KNAME}")
    for d in ["next_free_vgpr 256", "next_free_sgpr 102", "accum_offset 256", "group_segment_fixed_size 0",
              "kernarg_size 96", "user_sgpr_count 2", "user_sgpr_kernarg_segment_ptr 1",
              "system_sgpr_workgroup_id_x 1", "float_denorm_mode_32 3"]:
        g.L.append("  .amdhsa_" + d)
    g.L.append(".end_amdhsa_kernel")
    return "\n".join(g.L) + "\n"


if __name__ == "__main__":
    out = sys.argv[1] if len(sys.argv) > 1 else "cdna_kernels/" + NAME + ".s"
    ts = 3 if "--ts3" in sys.argv else 2 if "--ts" in sys.argv else (1 if "--ts1" in sys.argv else 0)
    mimic = "--mimic" in sys.argv
    sleep = int(sys.argv[sys.argv.index("--sleep")+1]) if "--sleep" in sys.argv else 0
    thr = tuple(int(x) for x in sys.argv[sys.argv.index("--thr")+1].split(",")) if "--thr" in sys.argv else (3, 0, 6)
    txt = build(ts, mimic, sleep, thr)
    if "--nont" in sys.argv:
        txt = txt.replace(" nt\n", "\n")
    open(out, "w").write(txt)
    print("wrote", out)
```
